```python
import torch

def _softmax(x, axis=-1):
    return torch.softmax(x, dim=axis)
def _gelu(x):
    return torch.nn.functional.gelu(x, approximate="tanh")
def _silu(x):
    return torch.nn.functional.silu(x)
def _sigmoid(x):
    return torch.sigmoid(x)
def _layernorm(x, axis=-1, eps=1e-5):
    m = x.mean(dim=axis, keepdim=True)
    v = x.var(dim=axis, keepdim=True, unbiased=False)
    return (x - m) / torch.sqrt(v + eps)
def _scatter_add(tgt, idx, src, axis=0):
    return tgt.clone().index_add_(axis, idx, src)
def _segment_sum(src, seg, n):
    out = torch.zeros((n,) + src.shape[1:], dtype=src.dtype)
    return out.index_add_(0, seg, src)
def _pad(x, pw):
    flat = tuple(v for pair in reversed(pw) for v in pair)
    return torch.nn.functional.pad(x, flat)

kernel_name = 'concat_heads__linear_kernel_hedgehog__grouped_kv_mqa__prompt'

def setup_inputs():

    _w = (lambda a: (lambda t: t.to(torch.bfloat16) if t.is_floating_point() else t)(torch.as_tensor(a)))
    def _A_setup():
        B, S, D, H = 1, 2048, 1024, 32
        Dh = D // H
        return {
            "x": _w((lambda *s: torch.randn(*s, dtype=torch.bfloat16) * 0.4)(B, S, D)),
            "wqkv": _w((lambda *s: torch.randn(*s, dtype=torch.bfloat16) * 0.4)(D, 3 * D)),
            "w_phi": _w((lambda *s: torch.randn(*s, dtype=torch.bfloat16) * 0.4)(H, Dh, Dh) * (Dh ** -0.5)),
            "wo": _w((lambda *s: torch.randn(*s, dtype=torch.bfloat16) * 0.05)(D, D)),
        }
    _A_in = _A_setup()

    def _B_setup():
        B, S, D, H = 1, 2048, 1024, 32
        Dh = D // H
        return {
            "x": _w((lambda *s: torch.randn(*s, dtype=torch.bfloat16) * 0.05)(B, S, D)),
            "wq": _w((lambda *s: torch.randn(*s, dtype=torch.bfloat16) * 0.8)(D, H * Dh)),
            "wk": _w((lambda *s: torch.randn(*s, dtype=torch.bfloat16) * 0.8)(D, Dh)),
            "wv": _w((lambda *s: torch.randn(*s, dtype=torch.bfloat16) * 0.1)(D, Dh)),
            "wo": _w((lambda *s: torch.randn(*s, dtype=torch.bfloat16) * 0.1)(H * Dh, D)),
        }
    _B_in = _B_setup()

    return {
        "A_x": _A_in["x"],
        "A_wqkv": _A_in["wqkv"],
        "A_w_phi": _A_in["w_phi"],
        "A_wo": _A_in["wo"],
        "B_x": _B_in["x"],
        "B_wq": _B_in["wq"],
        "B_wk": _B_in["wk"],
        "B_wv": _B_in["wv"],
        "B_wo": _B_in["wo"],
    }

def reference(A_x, A_wqkv, A_w_phi, A_wo, B_x, B_wq, B_wk, B_wv, B_wo):
    def _A_ref(x, wqkv, w_phi, wo):
        B, S, D = x.shape
        H = 32; Dh = D // H
        qkv = (lambda x, *d: x.permute(*d))((x @ wqkv).reshape(B, S, 3, H, Dh), 2, 0, 3, 1, 4)
        q, k, v = qkv[0], qkv[1], qkv[2]
        pq = torch.einsum("bhsd,hdf->bhsf", q, w_phi)
        pk = torch.einsum("bhsd,hdf->bhsf", k, w_phi)
        phi_q = torch.concatenate([_softmax(pq, axis=-1), _softmax(-pq, axis=-1)], axis=-1)
        phi_k = torch.concatenate([_softmax(pk, axis=-1), _softmax(-pk, axis=-1)], axis=-1)
        kv = torch.einsum("bhsf,bhsd->bhfd", phi_k, v)
        z  = torch.einsum("bhsf->bhf", phi_k)
        num = torch.einsum("bhqf,bhfd->bhqd", phi_q, kv)
        den = torch.einsum("bhqf,bhf->bhq", phi_q, z)[..., None] + 1e-6
        o = num / den
        return (lambda x, *d: x.permute(*d))(o, 0, 2, 1, 3).reshape(B, S, D) @ wo

    def _B_ref(x, wq, wk, wv, wo):
        B, S, D = x.shape
        H = 32
        Dh = D // H
        q = (lambda x, *d: x.permute(*d))((x @ wq).reshape(B, S, H, Dh), 0, 2, 1, 3)
        k = x @ wk
        v = x @ wv
        scores = torch.einsum("bhqd,bkd->bhqk", q, k) * (Dh ** -0.5)
        p = _softmax(scores, axis=-1)
        o = torch.einsum("bhqk,bkd->bhqd", p, v)
        return (lambda x, *d: x.permute(*d))(o, 0, 2, 1, 3).reshape(B, S, H * Dh) @ wo

    a = _A_ref(A_x, A_wqkv, A_w_phi, A_wo)
    b = _B_ref(B_x, B_wq, B_wk, B_wv, B_wo)
    return torch.concatenate([a, b], axis=-1)
```

```python
import re, copy

TRANS = ('v_exp_f32', 'v_log_f32', 'v_rcp_f32', 'v_rsq_f32', 'v_sqrt_f32', 'v_sin_f32', 'v_cos_f32')
RMW = ('v_fmac_f32', 'v_pk_fmac_f16', 'v_dot2c_f32_bf16', 'v_writelane_b32')
NODST_S = ('s_cmp', 's_waitcnt', 's_barrier', 's_nop', 's_branch', 's_cbranch', 's_endpgm', 's_setprio',
           's_sleep', 's_bitcmp', 's_sethalt')

reg_re = re.compile(r'^(-|\|)?(?:abs\()?([vsa])(?:(\d+)|\[(\d+):(\d+)\])\)?\|?$')


def parse_reg(tok):
    tok = tok.strip()
    if tok in ('vcc',):
        return ('s', {106, 107})
    if tok == 'vcc_lo':
        return ('s', {106})
    if tok == 'vcc_hi':
        return ('s', {107})
    if tok == 'exec':
        return ('s', {126, 127})
    if tok == 'exec_lo':
        return ('s', {126})
    if tok == 'exec_hi':
        return ('s', {127})
    if tok == 'm0':
        return ('s', {124})
    m = reg_re.match(tok)
    if not m:
        return None
    k = m.group(2)
    if m.group(3) is not None:
        return (k, {int(m.group(3))})
    return (k, set(range(int(m.group(4)), int(m.group(5)) + 1)))


class Inst:
    __slots__ = ('text', 'op', 'kind', 'vd', 'vs', 'sd', 'ss', 'passes', 'srcA', 'srcC', 'dstt', 'ws', 'label',
                 'target', 'dpp', 'lds', 'wide', 'trans', 'wait', 'isnop', 'auto')

    def __init__(self, text):
        self.text = text
        self.kind = None
        self.vd = set(); self.vs = set(); self.sd = set(); self.ss = set()
        self.passes = 0; self.srcA = set(); self.srcC = set(); self.dstt = None
        self.ws = 1; self.label = None; self.target = None; self.dpp = False; self.lds = False
        self.wide = False; self.trans = False; self.wait = None; self.isnop = False; self.auto = False
        t = text.split(';')[0].strip()
        if not t or t.startswith('.'):
            self.kind = 'dir'; self.ws = 0; self.op = ''
            return
        if t.endswith(':'):
            self.kind = 'label'; self.label = t[:-1]; self.ws = 0; self.op = ''
            return
        parts = t.split(None, 1)
        op = parts[0]; self.op = op
        rest = parts[1] if len(parts) > 1 else ''
        ops = []; cur = ''; depth = 0
        for ch in rest:
            if ch == '[': depth += 1
            if ch == ']': depth -= 1
            if ch == ',' and depth == 0:
                ops.append(cur.strip()); cur = ''
            else:
                cur += ch
        if cur.strip(): ops.append(cur.strip())
        mods = ''
        if ops:
            last = ops[-1].split(None, 1)
            if len(last) > 1 and not op.startswith('s_waitcnt'):
                ops[-1] = last[0]; mods = last[1]
        regs = [parse_reg(o) for o in ops]

        def addsrc(r):
            if r is None: return
            if r[0] == 'v': self.vs |= r[1]
            elif r[0] == 's': self.ss |= r[1]

        def adddst(r):
            if r is None: return
            if r[0] == 'v': self.vd |= r[1]
            elif r[0] == 's': self.sd |= r[1]

        if op.startswith('v_mfma'):
            self.kind = 'mfma'
            self.passes = 8 if '32x32x16' in op else 4 if '16x16x32' in op else None
            assert self.passes
            adddst(regs[0]); self.dstt = (op, min(regs[0][1]), max(regs[0][1]))
            for r in regs[1:3]:
                addsrc(r); self.srcA |= r[1]
            if regs[3] is not None:
                addsrc(regs[3]); self.srcC = set(regs[3][1])
        elif op.startswith('v_'):
            self.kind = 'valu'
            base = op.replace('_e32', '').replace('_e64', '').replace('_dpp', '')
            self.trans = base in TRANS
            self.dpp = ('row_' in mods) or ('quad_perm' in mods) or ('wave_' in mods)
            if base.startswith('v_permlane') or base == 'v_swap_b32':
                for r in regs[:2]:
                    adddst(r); addsrc(r)
            elif base.startswith('v_nop'):
                pass
            elif '_co_' in base:
                adddst(regs[0]); adddst(regs[1])
                for r in regs[2:]: addsrc(r)
            else:
                adddst(regs[0])
                for r in regs[1:]: addsrc(r)
                if base in RMW or self.dpp: addsrc(regs[0])
        elif op.startswith('ds_'):
            self.kind = 'ds'
            if op.startswith('ds_read') or 'permute' in op or 'swizzle' in op or '_rtn' in op:
                adddst(regs[0])
                for r in regs[1:]: addsrc(r)
            else:
                for r in regs: addsrc(r)
        elif op.startswith('buffer_') or op.startswith('global_'):
            self.kind = 'vmem'
            self.lds = bool(re.search(r'\blds\b', mods))
            if 'load' in op and not self.lds:
                adddst(regs[0])
                for r in regs[1:]: addsrc(r)
            else:
                for r in regs: addsrc(r)
                if 'store' in op and ('x4' in op or 'x3' in op):
                    self.wide = regs[0][1] if op.startswith('buffer_') else regs[1][1]
            if self.lds: self.ss.add(124)
        elif op.startswith('s_'):
            if op.startswith('s_load') or op.startswith('s_memtime') or op.startswith('s_memrealtime'):
                self.kind = 'smem'
                adddst(regs[0])
                for r in regs[1:]: addsrc(r)
            else:
                self.kind = 'salu'
                if op == 's_nop':
                    self.ws = int(ops[0], 0) + 1; self.isnop = True
                elif op == 's_waitcnt':
                    w = {}
                    for m in re.finditer(r'(vmcnt|lgkmcnt|expcnt)\((\d+)\)', rest):
                        w[m.group(1)] = int(m.group(2))
                    self.wait = w
                elif op.startswith('s_branch') or op.startswith('s_cbranch'):
                    self.target = ops[0]
                elif any(op.startswith(p) for p in NODST_S):
                    for r in regs: addsrc(r)
                else:
                    adddst(regs[0])
                    for r in regs[1:]: addsrc(r)
                    if 'saveexec' in op:
                        self.sd |= {126, 127}; self.ss |= {126, 127}
        else:
            raise ValueError('unknown instruction: ' + text)


class HState:
    def __init__(self):
        self.recent = []
        self.lgkm = []
        self.vm = []

    def clone(self):
        h = HState()
        h.recent = list(self.recent); h.lgkm = list(self.lgkm); h.vm = list(self.vm)
        return h

    def need(self, c):
        best = 0; why = None
        for p, age in self.recent:
            req = 0
            if p.kind == 'valu':
                if c.kind == 'mfma' and (p.vd & c.vs): req = max(req, 2)
                if c.kind == 'valu':
                    if p.trans and not c.trans and (p.vd & c.vs): req = max(req, 1)
                    if c.op.startswith('v_permlane') and (p.vd & c.vs): req = max(req, 2)
                    if c.dpp and (p.vd & c.vs): req = max(req, 2)
                    if c.op.startswith('v_readlane') or c.op.startswith('v_readfirstlane'):
                        if p.vd & c.vs: req = max(req, 1)
                        if (p.sd & c.ss): req = max(req, 4)
                    if c.op.startswith('v_writelane') and (p.sd & c.ss): req = max(req, 4)
                    if p.sd & c.ss: req = max(req, 2)
                if c.kind == 'mfma' and (p.sd & c.ss): req = max(req, 2)
                if c.kind == 'vmem' and (p.sd & c.ss): req = max(req, 5)
                if p.trans and c.kind in ('vmem', 'ds') and (p.vd & c.vs): req = max(req, 1)
            elif p.kind == 'mfma':
                P = p.passes
                if c.kind == 'mfma':
                    if p.vd & c.srcA: req = max(req, P + 4)
                    if p.vd & c.srcC:
                        same = (c.op == p.op and c.srcC == p.vd)
                        if not same: req = max(req, P + 2)
                    if (p.vd & c.vd) and not (c.op == p.op and c.vd == p.vd): req = max(req, P + 2)
                elif c.kind == 'valu':
                    if p.vd & (c.vs | c.vd): req = max(req, P + 4)
                    if p.srcC & c.vd: req = max(req, P - 1)
                elif c.kind in ('vmem', 'ds'):
                    if p.vd & (c.vs | c.vd): req = max(req, P + 4)
                    if p.srcC & c.vd: req = max(req, P - 1)
            elif p.kind == 'salu':
                if 124 in p.sd and c.kind == 'vmem' and c.lds: req = max(req, 1)
            elif p.kind == 'vmem' and p.wide:
                if c.kind == 'valu' and (p.wide & c.vd): req = max(req, 2)
                elif c.kind in ('mfma', 'vmem', 'ds') and (p.wide & c.vd): req = max(req, 2)
            if req - age > best:
                best = req - age; why = p.text
        return best, why

    def wait_problem(self, c):
        usedv = c.vs | c.vd; useds = c.ss | c.sd
        for k, rv, rs, t in self.lgkm:
            if (rv & usedv) or (rs & useds):
                if c.kind == 'ds' and k == 'ds' and not (rv & c.vs):
                    continue
                return 'lgkm pending: ' + t
        for rv, t in self.vm:
            if rv & usedv:
                if c.kind == 'vmem' and not (rv & c.vs): continue
                return 'vm pending: ' + t
        return None

    def step(self, c):
        if c.ws:
            self.recent = [(p, a + c.ws) for p, a in self.recent if a + c.ws < 24]
        if c.kind in ('valu', 'mfma', 'salu', 'vmem'):
            self.recent.append((c, 0))
        if c.kind == 'ds':
            self.lgkm.append(('ds', set(c.vd), set(), c.text))
        elif c.kind == 'smem':
            self.lgkm.append(('smem', set(), set(c.sd), c.text))
        elif c.kind == 'vmem':
            self.vm.append((set(c.vd), c.text))
        if c.wait is not None:
            if 'lgkmcnt' in c.wait:
                n = c.wait['lgkmcnt']
                if n == 0:
                    self.lgkm = []
                elif not any(k == 'smem' for k, _, _, _ in self.lgkm):
                    self.lgkm = self.lgkm[len(self.lgkm) - n:] if len(self.lgkm) > n else self.lgkm
            if 'vmcnt' in c.wait:
                n = c.wait['vmcnt']
                if n == 0:
                    self.vm = []
                elif len(self.vm) > n:
                    self.vm = self.vm[len(self.vm) - n:]


class Asm:
    def __init__(self):
        self.insts = []
        self.h = HState()
        self.autopad = True
        self.autowait = True
        self.nlab = 0
        self.padded = 0

    def __call__(self, text):
        for line in text.split('\n'):
            line = line.strip()
            if not line: continue
            self.emit(line)

    def emit(self, line):
        c = Inst(line)
        if c.kind not in ('dir', 'label'):
            if self.autowait:
                self._autowait(c)
            n, why = self.h.need(c)
            if n > 0:
                if self.autopad:
                    while n > 0:
                        k = min(n, 16)
                        nop = Inst(f's_nop {k - 1}'); nop.auto = True
                        self.insts.append(nop); self.h.step(nop); n -= k
                        self.padded += 1
                else:
                    raise RuntimeError(f'hazard: {line}  needs {n} more after {why}')
            self.h.step(c)
            if c.op in ('s_branch', 's_endpgm'):
                self.h = HState()
        self.insts.append(c)

    def _autowait(self, c):
        usedv = c.vs | c.vd; useds = c.ss | c.sd
        h = self.h
        w = []
        idx = None
        for k, (kind, rv, rs, t) in enumerate(h.lgkm):
            if (rv & usedv) or (rs & useds):
                if c.kind == 'ds' and kind == 'ds' and not (rv & c.vs): continue
                idx = k
        if idx is not None:
            n = len(h.lgkm) - 1 - idx
            if any(kind == 'smem' for kind, _, _, _ in h.lgkm): n = 0
            w.append(f'lgkmcnt({min(n, 15)})')
        idx = None
        for k, (rv, t) in enumerate(h.vm):
            if rv & usedv:
                if c.kind == 'vmem' and not (rv & c.vs): continue
                idx = k
        if idx is not None:
            n = len(h.vm) - 1 - idx
            w.append(f'vmcnt({min(n, 63)})')
        if w:
            wi = Inst('s_waitcnt ' + ' '.join(w))
            self.insts.append(wi); self.h.step(wi)

    def label(self, prefix='L'):
        self.nlab += 1
        return f'{prefix}_{self.nlab}'

    def text(self):
        out = []
        for i in self.insts:
            if i.kind in ('label',) or i.text.startswith('.'):
                out.append(i.text)
            else:
                out.append('  ' + i.text)
        return '\n'.join(out) + '\n'

    def verify(self, depth=600, verbose=True):
        insts = self.insts
        labels = {i.label: k for k, i in enumerate(insts) if i.kind == 'label'}
        problems = []
        seen = set()

        def walk(k, h, budget, top):
            while k < len(insts) and budget > 0:
                c = insts[k]
                if c.kind in ('dir', 'label'):
                    k += 1; continue
                n, why = h.need(c)
                if n > 0:
                    problems.append(f'HAZARD @{k}: {c.text}  (+{n}) after {why}')
                w = h.wait_problem(c)
                if w:
                    problems.append(f'WAIT @{k}: {c.text}  <- {w}')
                h.step(c)
                budget -= 1
                if c.op == 's_endpgm':
                    if not top: return
                    h = HState(); k += 1; continue
                if c.target is not None:
                    tk = labels[c.target]
                    if top:
                        walk(tk, h.clone(), depth, False)
                    elif c.op == 's_branch':
                        k = tk; continue
                    if c.op == 's_branch':
                        h = HState()
                k += 1

        walk(0, HState(), 10 ** 9, True)
        uniq = []
        for p in problems:
            if p not in seen:
                seen.add(p); uniq.append(p)
        if verbose:
            for p in uniq[:60]: print(p)
            print(f'verify: {len(uniq)} problems, {len(insts)} lines, {self.padded} auto nops')
        return uniq
```

```python
from asmlib import Asm

MB = 1 << 20
QA = 0
QB = 4 * MB
KV = 8 * MB
KVP = 9 * MB
ZP = 13 * MB
KN = 13 * MB + 256 * 1024
VM = KN + 256
WPF = 13 * MB + 512 * 1024
OA = 16 * MB
OB = 20 * MB
WS_SIZE = 0x10000000
LOG2E = 0x3fb8aa3b
KSCALE = 1.4426950408889634 / (32 ** 0.5)


def f32bits(x):
    import struct
    return struct.unpack('<I', struct.pack('<f', x))[0]


def vr(a, n=1):
    return f'v{a}' if n == 1 else f'v[{a}:{a + n - 1}]'


def sr(a, n=1):
    return f's{a}' if n == 1 else f's[{a}:{a + n - 1}]'


def mfma32(d, a, b, c=None):
    cs = vr(d, 16) if c is None else (c if isinstance(c, str) else vr(c, 16))
    return f'v_mfma_f32_32x32x16_bf16 {vr(d, 16)}, {vr(a, 4)}, {vr(b, 4)}, {cs}'


def mfma16(d, a, b, c=None):
    cs = vr(d, 4) if c is None else (c if isinstance(c, str) else vr(c, 4))
    return f'v_mfma_f32_16x16x32_bf16 {vr(d, 4)}, {vr(a, 4)}, {vr(b, 4)}, {cs}'


def cvtpk(d, a, b=None):
    b = a + 1 if b is None else b
    return f'v_cvt_pk_bf16_f32 v{d}, v{a}, v{b}'


def make_srd(A, s, lo, hi, size):
    A(f's_mov_b32 s{s}, {lo}')
    A(f's_and_b32 s{s + 1}, {hi}, 0xffff')
    A(f's_mov_b32 s{s + 2}, {size}')
    A(f's_mov_b32 s{s + 3}, 0x00020000')


def emit_selector(A, vsel, lane, t0, t1):
    A(f'v_lshrrev_b32 v{t0}, 4, v{lane}')
    A(f'v_lshrrev_b32 v{t1}, 2, v{lane}')
    A(f'v_xor_b32 v{t0}, v{t0}, v{t1}')
    A(f'v_and_b32 v{t0}, 1, v{t0}')
    A(f'v_cmp_eq_u32 vcc, 0, v{t0}')
    A(f'v_mov_b32 v{t1}, 0x3f803f80')
    A(f'v_cndmask_b32 v{vsel}, 0, v{t1}, vcc')
    for k in range(1, 4):
        A(f'v_mov_b32 v{vsel + k}, v{vsel}')


def dual_softmax(A, P, E, OUT, T, sC):
    mx, mn, t0, t1, sp, sn = T, T + 1, T + 2, T + 3, T + 4, T + 6
    A(f'v_max3_f32 v{mx}, v{P}, v{P + 1}, v{P + 2}')
    A(f'v_min3_f32 v{mn}, v{P}, v{P + 1}, v{P + 2}')
    for r in range(3, 15, 2):
        A(f'v_max3_f32 v{mx}, v{mx}, v{P + r}, v{P + r + 1}')
        A(f'v_min3_f32 v{mn}, v{mn}, v{P + r}, v{P + r + 1}')
    A(f'v_max_f32 v{mx}, v{mx}, v{P + 15}')
    A(f'v_min_f32 v{mn}, v{mn}, v{P + 15}')
    A(f'v_mov_b32 v{t0}, v{mx}')
    A(f'v_mov_b32 v{t1}, v{mn}')
    A(f'v_permlane32_swap_b32 v{mx}, v{t0}')
    A(f'v_permlane32_swap_b32 v{mn}, v{t1}')
    A(f'v_max_f32 v{mx}, v{mx}, v{t0}')
    A(f'v_min_f32 v{mn}, v{mn}, v{t1}')
    A(f'v_mul_f32 v{t0}, s{sC}, v{mx}')
    A(f'v_mul_f32 v{mx}, s{sC}, v{mn}')
    for r in range(0, 16, 2):
        A(f'v_pk_fma_f32 {vr(E + r, 2)}, {vr(P + r, 2)}, {sr(sC, 2)}, {vr(t0, 2)} op_sel_hi:[1,0,0] neg_lo:[0,0,1] neg_hi:[0,0,1]')
        A(f'v_pk_fma_f32 {vr(P + r, 2)}, {vr(P + r, 2)}, {sr(sC, 2)}, {vr(mx, 2)} op_sel_hi:[1,0,0] neg_lo:[1,0,0] neg_hi:[1,0,0]')
    for r in range(16):
        A(f'v_exp_f32 v{E + r}, v{E + r}')
        A(f'v_exp_f32 v{P + r}, v{P + r}')
    A(f'v_pk_add_f32 {vr(sp, 2)}, {vr(E, 2)}, {vr(E + 2, 2)}')
    A(f'v_pk_add_f32 {vr(sn, 2)}, {vr(P, 2)}, {vr(P + 2, 2)}')
    for r in range(4, 16, 2):
        A(f'v_pk_add_f32 {vr(sp, 2)}, {vr(sp, 2)}, {vr(E + r, 2)}')
        A(f'v_pk_add_f32 {vr(sn, 2)}, {vr(sn, 2)}, {vr(P + r, 2)}')
    A(f'v_add_f32 v{sp}, v{sp}, v{sp + 1}')
    A(f'v_add_f32 v{sn}, v{sn}, v{sn + 1}')
    A(f'v_mov_b32 v{sp + 1}, v{sp}')
    A(f'v_mov_b32 v{sn + 1}, v{sn}')
    A(f'v_permlane32_swap_b32 v{sp}, v{sp + 1}')
    A(f'v_permlane32_swap_b32 v{sn}, v{sn + 1}')
    A(f'v_add_f32 v{sp}, v{sp}, v{sp + 1}')
    A(f'v_add_f32 v{sn}, v{sn}, v{sn + 1}')
    A(f'v_rcp_f32 v{sp}, v{sp}')
    A(f'v_rcp_f32 v{sn}, v{sn}')
    for r in range(0, 16, 2):
        A(f'v_pk_mul_f32 {vr(E + r, 2)}, {vr(E + r, 2)}, {vr(sp, 2)} op_sel_hi:[1,0]')
        A(f'v_pk_mul_f32 {vr(P + r, 2)}, {vr(P + r, 2)}, {vr(sn, 2)} op_sel_hi:[1,0]')
    for r in range(0, 16, 2):
        A(cvtpk(OUT + r // 2, E + r))
        A(cvtpk(OUT + 8 + r // 2, P + r))


def dpp_max_reduce(A, v):
    for ctl in ('row_shr:1', 'row_shr:2', 'row_shr:4', 'row_shr:8', 'row_bcast:15 row_mask:0xa', 'row_bcast:31 row_mask:0xc'):
        A(f'v_max_f32_dpp v{v}, v{v}, v{v} {ctl}')


STAMPS = False
STAMP_BASE = 24 * MB


def stamp(A, i):
    if STAMPS:
        A(f's_memrealtime s[{70 + 2 * i}:{71 + 2 * i}]' if STAMPS == 2 else f's_memtime s[{70 + 2 * i}:{71 + 2 * i}]')


def stamp_flush(A, n, kidx, swave='s5', waveadd=0, srd=48):
    if not STAMPS: return
    A('s_waitcnt lgkmcnt(0)')
    A('s_lshl_b32 s68, s2, 3')
    A(f's_add_u32 s68, s68, {swave}')
    A(f's_add_u32 s68, s68, {waveadd}')
    A('s_lshl_b32 s68, s68, 6')
    A(f's_add_u32 s68, s68, {STAMP_BASE + kidx * MB}')
    A('v_mov_b32 v1, 0')
    A('s_mov_b64 exec, 1')
    for i in range(n):
        A(f'v_mov_b32 v3, s{70 + 2 * i}')
        A(f'buffer_store_dword v3, v1, s[{srd}:{srd + 3}], s68 offen offset:{4 * i}')
    A('s_mov_b64 exec, -1')


LX = 0
LW = 98304
LE = 147456
K1_LDS = 159744
SCR = 32768

sX, sW, sE, sWS = 36, 40, 44, 48
sLX, sLW, sLE, sGX, sGW, sGE, sT, sLDW4, sLDW64, sT2, sT3, sT4 = 52, 53, 54, 55, 56, 57, 58, 59, 60, 61, 62, 63
sC = 64
sWM, sWN = 12, 13
vLANE = 2
vXA = 4
vEXA = 10
vWA = 16
vEWA = 20
XF = 24
WF = 56
EXF = 88
EWF = 96
EACC = 112
ACC = 128


def acc(mb, nb):
    return ACC + (mb * 4 + nb) * 4


def eacc(mbl, nbl):
    return EACC + (mbl * 2 + nbl) * 4


def k1_loader(A, isB):
    n = 13 if isB else 12
    vX0, vX1, vW0, vW1, vE = 4, 5, 6, 7, 8
    t0, t1, t2, t3 = 10, 11, 12, 13
    A('s_sub_u32 s5, s5, 4')
    A(f'v_lshrrev_b32 v{t0}, 3, v{vLANE}')
    A('s_lshl_b32 s9, s5, 6')
    A(f'v_add_u32 v{t0}, s9, v{t0}')
    A(f'v_lshlrev_b32 v{t0}, 11, v{t0}')
    A(f'v_lshrrev_b32 v{t1}, 4, v{vLANE}')
    A(f'v_and_b32 v{t2}, 7, v{vLANE}')
    A(f'v_xor_b32 v{t2}, v{t2}, v{t1}')
    A(f'v_lshl_add_u32 v{vX0}, v{t2}, 4, v{t0}')
    A(f'v_xor_b32 v{t2}, 4, v{t2}')
    A(f'v_lshl_add_u32 v{vX1}, v{t2}, 4, v{t0}')
    for bit, vW in ((0, vW0), (1, vW1)):
        A(f'v_bfe_u32 v{t0}, v{vLANE}, 1, 3')
        A(f'v_xor_b32 v{t0}, v{t0}, v{t1}')
        if bit: A(f'v_xor_b32 v{t0}, 4, v{t0}')
        A(f'v_mul_lo_u32 v{vW}, v{t1}, s35')
        A(f'v_bfe_u32 v{t2}, v{t0}, 1, 1')
        A(f'v_mul_lo_u32 v{t2}, v{t2}, s15')
        A(f'v_add_u32 v{vW}, v{vW}, v{t2}')
        A(f'v_lshrrev_b32 v{t2}, 2, v{t0}')
        A(f'v_mul_lo_u32 v{t2}, v{t2}, s34')
        A(f'v_add_u32 v{vW}, v{vW}, v{t2}')
        A(f'v_and_b32 v{t2}, 1, v{t0}')
        A(f'v_lshl_add_u32 v{vW}, v{t2}, 5, v{vW}')
        A(f'v_and_b32 v{t2}, 1, v{vLANE}')
        A(f'v_lshl_add_u32 v{vW}, v{t2}, 4, v{vW}')
        A(f'v_add_u32 v{vW}, s14, v{vW}')
    if isB:
        A(f'v_lshlrev_b32 v{vE}, 4, v{vLANE}')
        A(f'v_and_b32 v{t2}, 32, v{vLANE}')
        A(f'v_xor_b32 v{vE}, v{vE}, v{t2}')
    else:
        A(f'v_lshlrev_b32 v{vE}, 4, v{vLANE}')
    A(f's_lshl_b32 s{sLX}, s5, 13')
    A(f's_lshl_b32 s{sLW}, s5, 12')
    A(f's_add_u32 s{sLW}, s{sLW}, {LW}')
    A(f's_lshl_b32 s{sLE}, s5, 10')
    A(f's_mov_b32 s{sGE}, s{sLE}')
    A(f's_add_u32 s{sLE}, s{sLE}, {LE}')
    A(f's_mov_b32 s{sGX}, 0')
    A(f's_lshl_b32 s{sLDW4}, s35, 2')
    A(f's_lshl_b32 s{sLDW64}, s35, 6')
    A(f's_lshl_b32 s{sGW}, s{sLDW4}, 2')
    A(f's_mul_i32 s{sGW}, s{sGW}, s5')
    if not isB:
        A(f's_mov_b32 m0, s{sLE}')
        A('s_nop 0')
        A(f'buffer_load_dwordx4 v{vE}, {sr(sE, 4)}, s{sGE} offen lds')

    def issue():
        order = [('x', 0), ('w', 0), ('x', 1), ('x', 2), ('w', 1), ('x', 3), ('x', 4), ('w', 2), ('x', 5), ('x', 6), ('w', 3), ('x', 7)]
        first_w = True
        for kind, j in order:
            if kind == 'x':
                A(f's_add_u32 m0, s{sLX}, {j * 1024}')
                A(f's_add_u32 s{sT}, s{sGX}, {j * 16384}')
                A(f'buffer_load_dwordx4 v{vX0 + (j & 1)}, {sr(sX, 4)}, s{sT} offen lds')
            else:
                A(f's_add_u32 m0, s{sLW}, {j * 1024}')
                if first_w:
                    A(f's_mov_b32 s{sT2}, s{sGW}')
                    first_w = False
                else:
                    A(f's_add_u32 s{sT2}, s{sT2}, s{sLDW4}')
                A(f'buffer_load_dwordx4 v{vW0 + (j >> 1)}, {sr(sW, 4)}, s{sT2} offen lds')
        if isB:
            A(f's_mov_b32 m0, s{sLE}')
            A('s_nop 0')
            A(f'buffer_load_dwordx4 v{vE}, {sr(sE, 4)}, s{sGE} offen lds')
            A(f's_add_u32 s{sGE}, s{sGE}, 4096')
        A(f's_add_u32 s{sGX}, s{sGX}, 128')
        A(f's_add_u32 s{sGW}, s{sGW}, s{sLDW64}')
        A(f's_add_u32 s{sLX}, s{sLX}, 32768')
        A(f's_add_u32 s{sLW}, s{sLW}, 16384')
        A(f's_add_u32 s{sLE}, s{sLE}, 4096')
        A(f's_cmp_ge_u32 s{sLX}, {LW}')
        A(f's_cselect_b32 s{sT}, 98304, 0')
        A(f's_cselect_b32 s{sT2}, 49152, 0')
        A(f's_cselect_b32 s{sT3}, 12288, 0')
        A(f's_sub_u32 s{sLX}, s{sLX}, s{sT}')
        A(f's_sub_u32 s{sLW}, s{sLW}, s{sT2}')
        A(f's_sub_u32 s{sLE}, s{sLE}, s{sT3}')

    stamp(A, 1)
    for _ in range(3):
        issue()
    stamp(A, 2)
    A(f's_waitcnt vmcnt({2 * n})')
    stamp(A, 3)
    A('s_barrier')
    A('s_mov_b32 s11, 13')
    L = A.label('K1LD')
    A(f'{L}:')
    A(f's_waitcnt vmcnt({n})')
    A('s_barrier')
    issue()
    A('s_sub_u32 s11, s11, 1')
    A('s_cmp_lg_u32 s11, 0')
    A(f's_cbranch_scc1 {L}')
    A(f's_waitcnt vmcnt({n})')
    A('s_barrier')
    A('s_waitcnt vmcnt(0)')
    stamp(A, 4)
    A('s_barrier')
    A('s_barrier')
    stamp(A, 5)
    stamp_flush(A, 6, 0, waveadd=4)
    A('s_endpgm')


def rdX(stage, s, mb):
    return f'ds_read_b128 {vr(XF + 4 * mb, 4)}, v{vXA + stage * 2 + s} offset:{mb * 2048}'


def rdW(stage, s, nb, u):
    return f'ds_read_b64_tr_b16 {vr(WF + s * 16 + 4 * nb + 2 * u, 2)}, v{vWA + nb} offset:{stage * 16384 + s * 8192 + u * 1024}'


def rdEX(stage, s, mbl):
    return f'ds_read_b128 {vr(EXF + 4 * mbl, 4)}, v{vEXA + stage * 2 + s} offset:{mbl * 2048}'


def rdEW(stage, s, nbl, u):
    return f'ds_read_b64_tr_b16 {vr(EWF + s * 8 + 4 * nbl + 2 * u, 2)}, v{vEWA + nbl} offset:{stage * 4096 + s * 2048 + u * 256}'


BPOS = 6


def all_reads(stage, s, extra):
    r = [rdX(stage, s, 0)]
    for nb in range(4):
        r += [rdW(stage, s, nb, 0), rdW(stage, s, nb, 1)]
    r += [rdX(stage, s, mb) for mb in range(1, 8)]
    if extra:
        for nbl in range(2):
            r += [rdEW(stage, s, nbl, 0), rdEW(stage, s, nbl, 1)]
        r += [rdEX(stage, s, 0), rdEX(stage, s, 1)]
    return r


def kstep(A, stage, ver, last):
    extra = ver in ('qk', 'qv')
    for s in range(2):
        mf = []
        for mb in range(8):
            for nb in range(4):
                x = XF + 4 * mb; w = WF + s * 16 + 4 * nb
                normal = (ver == 'kv' and nb >= 2)
                m = mfma16(acc(mb, nb), x, w) if normal else mfma16(acc(mb, nb), w, x)
                mf.append((m, ('x', mb) if nb == 3 else None))
        if extra:
            for mbl in range(2):
                for nbl in range(2):
                    x = EXF + 4 * mbl; w = EWF + s * 8 + 4 * nbl
                    m = mfma16(eacc(mbl, nbl), x, w) if ver == 'qv' else mfma16(eacc(mbl, nbl), w, x)
                    mf.append((m, ('e', mbl) if nbl == 1 else None))
        if s == 0:
            nst, ns = stage, 1
        else:
            nst, ns = (stage + 1) % 3, 0
        none = (s == 1 and last)
        wq = []
        if not none:
            for nb in range(4):
                wq += [rdW(nst, ns, nb, 0), rdW(nst, ns, nb, 1)]
            if extra:
                for nbl in range(2):
                    wq += [rdEW(nst, ns, nbl, 0), rdEW(nst, ns, nbl, 1)]
        xq = []
        for k, (m, fr) in enumerate(mf):
            if s == 1 and k == BPOS:
                A('s_waitcnt lgkmcnt(0)')
                A('s_barrier')
            A(m)
            if fr and not none:
                xq.append(rdX(nst, ns, fr[1]) if fr[0] == 'x' else rdEX(nst, ns, fr[1]))
            if s == 1 and k < BPOS: continue
            if xq:
                A(xq.pop(0))
            elif wq:
                A(wq.pop(0))
        for r in xq + wq: A(r)


def k1_compute(A, ver):
    extra = ver in ('qk', 'qv')
    t0, t1, t2, t3 = XF, XF + 1, XF + 2, XF + 3
    r16, g = XF + 4, XF + 5
    A(f'v_and_b32 v{r16}, 15, v{vLANE}')
    A(f'v_lshrrev_b32 v{g}, 4, v{vLANE}')
    A(f's_lshl_b32 s9, s{sWM}, 14')
    A(f'v_lshlrev_b32 v{t0}, 7, v{r16}')
    A(f'v_add_u32 v{t0}, s9, v{t0}')
    A(f'v_lshrrev_b32 v{t1}, 1, v{r16}')
    A(f'v_xor_b32 v{t1}, v{t1}, v{g}')
    for s in range(2):
        A(f'v_xor_b32 v{t2}, {4 * s}, v{t1}')
        A(f'v_lshl_add_u32 v{vXA + s}, v{t2}, 4, v{t0}')
        A(f'v_add_u32 v{vXA + 2 + s}, 0x8000, v{vXA + s}')
        A(f'v_add_u32 v{vXA + 4 + s}, 0x10000, v{vXA + s}')
    if extra:
        A('s_and_b32 s9, s7, 7')
        A('s_lshr_b32 s9, s9, 1')
        A('s_lshl_b32 s9, s9, 1')
        A('s_add_u32 s9, s9, s5')
        A(f's_mov_b32 s{sT4}, s9')
        A('s_lshl_b32 s9, s9, 12')
        for k in range(6):
            A(f'v_add_u32 v{vEXA + k}, s9, v{vXA + k}')
    A(f'v_bfe_u32 v{t0}, v{vLANE}, 2, 2')
    A(f'v_lshl_add_u32 v{t1}, v{g}, 3, v{t0}')
    A(f'v_and_b32 v{t2}, 1, v{g}')
    A(f'v_lshl_add_u32 v{t0}, v{t2}, 2, v{t0}')
    A(f'v_and_b32 v{t3}, 3, v{vLANE}')
    A(f'v_lshlrev_b32 v{t3}, 3, v{t3}')
    if extra:
        A(f'v_lshl_add_u32 v{vEWA}, v{t1}, 6, v{t3}')
        A(f'v_add_u32 v{vEWA}, {LE}, v{vEWA}')
        A(f'v_lshl_add_u32 v{vEWA}, v{t2}, 5, v{vEWA}')
        A(f'v_xor_b32 v{vEWA + 1}, 32, v{vEWA}')
    A(f'v_lshl_add_u32 v{t1}, v{t1}, 8, v{t3}')
    A(f'v_add_u32 v{t1}, {LW}, v{t1}')
    A(f's_lshl_b32 s9, s{sWN}, 2')
    A(f'v_xor_b32 v{t0}, s9, v{t0}')
    for nb in range(4):
        A(f'v_xor_b32 v{t2}, {nb}, v{t0}')
        A(f'v_lshl_add_u32 v{vWA + nb}, v{t2}, 5, v{t1}')
    for r in range(EACC if extra else ACC, 256):
        A(f'v_mov_b32 v{r}, 0')
    stamp(A, 1)
    A('s_barrier')
    stamp(A, 2)
    cap = []
    kstep(cap.append, 2, ver, False)
    cap = cap[cap.index('s_barrier'):]
    for r in cap:
        if r.startswith('ds_read'): A(r)
    A('s_mov_b32 s11, 5')
    L = A.label('K1C')
    A('.p2align 6')
    A(f'{L}:')
    for st in range(3):
        kstep(A, st, ver, False)
    A('s_sub_u32 s11, s11, 1')
    A('s_cmp_lg_u32 s11, 0')
    A(f's_cbranch_scc1 {L}')
    kstep(A, 0, ver, True)
    stamp(A, 3)
    if ver == 'kv':
        k1_epi_kv(A)
    else:
        k1_epi_q(A, ver)
    stamp(A, 4)
    if STAMPS: A('s_waitcnt vmcnt(0)')
    stamp(A, 5)
    stamp_flush(A, 6, 0)
    A('s_endpgm')


def k1_epi_q(A, ver):
    vo, t0, t1 = 4, 5, 6
    A(f'v_and_b32 v{t0}, 15, v{vLANE}')
    A(f'v_lshrrev_b32 v{t1}, 5, v{vLANE}')
    A(f'v_lshl_add_u32 v{t0}, v{t1}, 5, v{t0}')
    A(f'v_lshlrev_b32 v{vo}, 4, v{t0}')
    A(f'v_bfe_u32 v{t1}, v{vLANE}, 4, 1')
    A(f'v_lshl_add_u32 v{vo}, v{t1}, 10, v{vo}')
    A('s_and_b32 s9, s7, 7')
    A('s_lshl_b32 s9, s9, 2')
    A(f's_lshl_b32 s10, s{sWN}, 1')
    A('s_add_u32 s9, s9, s10')
    A('s_lshl_b32 s9, s9, 6')
    A('s_lshl_b32 s10, s6, 3')
    A('s_add_u32 s9, s9, s10')
    A(f's_lshl_b32 s10, s{sWM}, 2')
    A('s_add_u32 s9, s9, s10')
    A('s_lshl_b32 s9, s9, 11')
    A('s_add_u32 s9, s9, s8')
    k = 0
    for jn in range(2):
        for mb in range(8):
            tmp = XF + (k % 8) * 4
            k += 1
            for nbl in range(2):
                for x in range(2):
                    A(cvtpk(tmp + 2 * nbl + x, acc(mb, 2 * jn + nbl) + 2 * x))
            if mb % 4 == 0:
                A(f's_add_u32 s10, s9, {jn * 131072 + (mb >> 2) * 4096}')
            A(f'buffer_store_dwordx4 {vr(tmp, 4)}, v{vo}, {sr(sWS, 4)}, s10 offen offset:{((mb >> 1) & 1) * 2048 + (mb & 1) * 256}')
    if ver in ('qk', 'qv'):
        tmp = WF
        nr = 8
        A(f's_lshl_b32 s9, s6, 15')
        A(f's_lshl_b32 s10, s{sT4}, 11')
        A('s_add_u32 s9, s9, s10')
        A(f's_add_u32 s9, s9, {KV + (16384 if ver == "qv" else 0)}')
        if ver == 'qk':
            vk = 7
            A(f'v_and_b32 v{t0}, 4, v{vLANE}')
            A(f'v_lshlrev_b32 v{t0}, 2, v{t0}')
            A(f'v_and_b32 v{t1}, 8, v{vLANE}')
            A(f'v_lshrrev_b32 v{t1}, 1, v{t1}')
            A(f'v_or_b32 v{t0}, v{t0}, v{t1}')
            A(f'v_and_b32 v{t1}, 3, v{vLANE}')
            A(f'v_or_b32 v{t0}, v{t0}, v{t1}')
            A(f'v_and_b32 v{t1}, 32, v{vLANE}')
            A(f'v_or_b32 v{t0}, v{t0}, v{t1}')
            A(f'v_lshlrev_b32 v{vk}, 4, v{t0}')
            A(f'v_bfe_u32 v{t1}, v{vLANE}, 4, 1')
            A(f'v_lshl_add_u32 v{vk}, v{t1}, 10, v{vk}')
            A(f's_mov_b32 s10, {f32bits(KSCALE)}')
            for r in range(16):
                A(f'v_mul_f32 v{EACC + r}, s10, v{EACC + r}')
            for mbl in range(2):
                A(f'v_mul_f32 v{nr + mbl}, v{eacc(mbl, 0)}, v{eacc(mbl, 0)}')
                for r in range(1, 8):
                    A(f'v_fmac_f32 v{nr + mbl}, v{eacc(mbl, 0) + r}, v{eacc(mbl, 0) + r}')
            A(f'v_permlane16_swap_b32 v{nr}, v{nr + 1}')
            A(f'v_add_f32 v{nr}, v{nr}, v{nr + 1}')
            A(f'v_mov_b32 v{nr + 1}, v{nr}')
            A(f'v_permlane32_swap_b32 v{nr}, v{nr + 1}')
            A(f'v_add_f32 v{nr}, v{nr}, v{nr + 1}')
            for mbl in range(2):
                for nbl in range(2):
                    for x in range(2):
                        A(cvtpk(tmp + 4 * mbl + 2 * nbl + x, eacc(mbl, nbl) + 2 * x))
                A(f'buffer_store_dwordx4 {vr(tmp + 4 * mbl, 4)}, v{vk}, {sr(sWS, 4)}, s9 offen offset:{mbl * 128}')
        else:
            A(f'v_max3_f32 v{nr}, |v{EACC}|, |v{EACC + 1}|, |v{EACC + 2}|')
            for r in range(3, 15, 2):
                A(f'v_max3_f32 v{nr}, v{nr}, |v{EACC + r}|, |v{EACC + r + 1}|')
            A(f'v_max_f32 v{nr}, v{nr}, |v{EACC + 15}|')
            for nbl in range(2):
                for mbl in range(2):
                    for x in range(2):
                        A(cvtpk(tmp + 4 * nbl + 2 * mbl + x, eacc(mbl, nbl) + 2 * x))
                A(f'buffer_store_dwordx4 {vr(tmp + 4 * nbl, 4)}, v{vo}, {sr(sWS, 4)}, s9 offen offset:{nbl * 256}')
        dpp_max_reduce(A, nr)
        A('s_lshl_b32 s9, s6, 3')
        A(f's_add_u32 s9, s9, s{sT4}')
        A('s_lshl_b32 s9, s9, 2')
        A(f's_add_u32 s9, s9, {KN if ver == "qk" else VM}')
        A(f'v_mov_b32 v{nr + 1}, 0')
        A('s_mov_b32 exec_lo, 0')
        A('s_mov_b32 exec_hi, 0x80000000')
        A(f'buffer_store_dword v{nr}, v{nr + 1}, {sr(sWS, 4)}, s9 offen')
        A('s_mov_b64 exec, -1')


def k1_epi_kv(A):
    KF = 48
    VF = 80
    PHI = 48
    PHT = 64
    WPH = 112
    PK = lambda i: ACC + 32 * i
    ET = ACC + 16
    KV0 = ACC + 48
    KV1 = ACC + 80
    Z = 16
    SEL = 24
    T = 28
    aW = 36
    aR = 40
    aP = 42
    vo = 43
    t0, t1, t2, t3 = 44, 45, 46, 47
    l31, hh = 4, 5
    A(f's_mov_b32 s{sC}, {LOG2E}')
    A(f's_mov_b32 s{sC + 1}, {LOG2E}')
    A(f'v_and_b32 v{l31}, 31, v{vLANE}')
    A(f'v_lshrrev_b32 v{hh}, 5, v{vLANE}')
    A(f'v_bfe_u32 v{t0}, v{vLANE}, 2, 2')
    A(f'v_lshl_add_u32 v{t1}, v{hh}, 3, v{t0}')
    A(f'v_bfe_u32 v{t2}, v{vLANE}, 4, 1')
    A(f'v_and_b32 v{t3}, 3, v{vLANE}')
    A(f'v_lshl_add_u32 v{t3}, v{t2}, 2, v{t3}')
    A(f'v_lshlrev_b32 v{aP}, 3, v{t3}')
    A(f'v_lshl_add_u32 v{aP}, v{t1}, 6, v{aP}')
    A(f's_lshl_b32 s9, s{sWN}, 11')
    A(f's_add_u32 s9, s9, {LE}')
    A(f'v_add_u32 v{aP}, s9, v{aP}')
    for t in range(2):
        for u in range(2):
            A(f'ds_read_b64_tr_b16 {vr(WPH + 4 * t + 2 * u, 2)}, v{aP} offset:{t * 256 + u * 1024}')
    A('s_lshl_b32 s9, s5, 14')
    A(f's_add_u32 s9, s9, {SCR}')
    A(f'v_lshrrev_b32 v{t2}, 1, v{t1}')
    A(f'v_xor_b32 v{t2}, v{t2}, v{t3}')
    A(f'v_lshlrev_b32 v{t1}, 6, v{t1}')
    A(f'v_add_u32 v{t1}, s9, v{t1}')
    A(f'v_lshl_add_u32 v{aR}, v{t2}, 3, v{t1}')
    A(f'v_xor_b32 v{t2}, 2, v{t2}')
    A(f'v_lshl_add_u32 v{aR + 1}, v{t2}, 3, v{t1}')
    A(f'v_add_u32 v{aR + 1}, 256, v{aR + 1}')
    A(f'v_bfe_u32 v{t0}, v{l31}, 1, 3')
    A(f'v_xor_b32 v{t0}, v{t0}, v{hh}')
    A(f'v_lshlrev_b32 v{t1}, 6, v{l31}')
    A(f'v_add_u32 v{t1}, s9, v{t1}')
    for a in range(4):
        A(f'v_xor_b32 v{t2}, {2 * a}, v{t0}')
        A(f'v_lshl_add_u32 v{aW + a}, v{t2}, 3, v{t1}')
    emit_selector(A, SEL, vLANE, t0, t1)
    A(f'v_lshlrev_b32 v{vo}, 4, v{vLANE}')
    for i in range(4):
        for mbl in range(2):
            for nbl in range(2):
                for x in range(2):
                    A(cvtpk(KF + i * 8 + 4 * mbl + 2 * nbl + x, acc(2 * i + mbl, nbl) + 2 * x))
        for mbl in range(2):
            for nbl in range(2):
                for x in range(2):
                    A(cvtpk(VF + i * 8 + 4 * nbl + 2 * mbl + x, acc(2 * i + mbl, 2 + nbl) + 2 * x))
        for x in range(4):
            A(f'v_permlane16_swap_b32 v{KF + i * 8 + x}, v{KF + i * 8 + 4 + x}')
        for x in range(4):
            A(f'v_permlane16_swap_b32 v{VF + i * 8 + x}, v{VF + i * 8 + 4 + x}')
        A(mfma32(PK(i), WPH, KF + i * 8, '0'))
        A(mfma32(PK(i), WPH + 4, KF + i * 8 + 4))
    Lsk = A.label('K1WP')
    A(f's_or_b32 s9, s6, s{sWM}')
    A('s_cmp_lg_u32 s9, 0')
    A(f's_cbranch_scc1 {Lsk}')
    A('s_lshl_b32 s9, s7, 1')
    A(f's_add_u32 s9, s9, s{sWN}')
    A('s_lshl_b32 s9, s9, 11')
    A(f's_add_u32 s9, s9, {WPF}')
    for t in range(2):
        A(f'buffer_store_dwordx4 {vr(WPH + 4 * t, 4)}, v{vo}, {sr(sWS, 4)}, s9 offen offset:{t * 1024}')
    A(f'{Lsk}:')
    for i in range(4):
        dual_softmax(A, PK(i), ET, PHI, T, sC)
        for fb in range(2):
            for a in range(4):
                A(f'ds_write_b64 v{aW + a}, {vr(PHI + fb * 8 + 2 * a, 2)} offset:{i * 4096 + fb * 2048}')
        for fb in range(2):
            for t in range(2):
                for u in range(2):
                    A(f'ds_read_b64_tr_b16 {vr(PHT + (fb * 2 + t) * 4 + 2 * u, 2)}, v{aR + t} offset:{i * 4096 + fb * 2048 + u * 1024}')
        for fb in range(2):
            kv = KV0 if fb == 0 else KV1
            for t in range(2):
                first = (i == 0 and t == 0)
                A(mfma32(kv, PHT + (fb * 2 + t) * 4, VF + i * 8 + 4 * t, '0' if first else None))
                A(mfma16(Z + 4 * fb, SEL, PHT + (fb * 2 + t) * 4, '0' if first else None))
    A('s_lshl_b32 s9, s7, 1')
    A(f's_add_u32 s9, s9, s{sWN}')
    A('s_lshl_b32 s9, s9, 4')
    A('s_lshl_b32 s10, s6, 1')
    A('s_add_u32 s9, s9, s10')
    A(f's_add_u32 s9, s9, s{sWM}')
    A('s_lshl_b32 s10, s9, 13')
    A(f's_add_u32 s10, s10, {KVP}')
    for fb in range(2):
        kv = KV0 if fb == 0 else KV1
        for q in range(4):
            A(f'buffer_store_dwordx4 {vr(kv + 4 * q, 4)}, v{vo}, {sr(sWS, 4)}, s10 offen offset:{q * 1024}')
        if fb == 0:
            A('s_add_u32 s10, s10, 4096')
    A('s_lshl_b32 s10, s9, 8')
    A(f's_add_u32 s10, s10, {ZP}')
    A(f'v_lshlrev_b32 v{t0}, 2, v{vLANE}')
    A('s_mov_b32 exec_hi, 0')
    for fb in range(2):
        A(f'buffer_store_dword v{Z + 4 * fb}, v{t0}, {sr(sWS, 4)}, s10 offen offset:{fb * 128}')
    A('s_mov_b64 exec, -1')


def k1(A):
    A('k1_kernel:')
    A('s_cmp_ge_u32 s2, 256')
    A('s_cbranch_scc0 K1_go')
    A('s_endpgm')
    A('K1_go:')
    stamp(A, 0)
    A('s_load_dwordx16 s[16:31], s[0:1], 0')
    A('s_load_dwordx2 s[32:33], s[0:1], 88')
    A('v_lshrrev_b32 v1, 6, v0')
    A(f'v_and_b32 v{vLANE}, 63, v0')
    A('v_readfirstlane_b32 s5, v1')
    A('s_and_b32 s3, s2, 7')
    A('s_lshr_b32 s4, s2, 3')
    A('s_and_b32 s9, s4, 3')
    A('s_lshr_b32 s10, s4, 2')
    A('s_and_b32 s6, s3, 1')
    A('s_lshl_b32 s6, s6, 2')
    A('s_add_u32 s6, s6, s9')
    A('s_lshr_b32 s7, s3, 1')
    A('s_lshl_b32 s7, s7, 3')
    A('s_add_u32 s7, s7, s10')
    A(f's_bfe_u32 s{sWM}, s5, 0x10001')
    A(f's_and_b32 s{sWN}, s5, 1')
    A('s_lshl_b32 s9, s7, 7')
    A('s_add_u32 s9, s9, 2048')
    A('s_and_b32 s10, s7, 7')
    A('s_lshl_b32 s10, s10, 8')
    A('s_cmp_lt_u32 s7, 16')
    A('s_cselect_b32 s14, s9, s10')
    A('s_cselect_b32 s15, 2048, 64')
    A('s_cselect_b32 s34, 64, 128')
    A('s_movk_i32 s35, 6144')
    A(f's_mov_b32 s{sW + 2}, 0x600000')
    A(f's_movk_i32 s{sE + 2}, 4096')
    A('s_waitcnt lgkmcnt(0)')
    A('s_cmp_ge_u32 s7, 24')
    A('s_cselect_b32 s35, 2048, s35')
    A(f's_cselect_b32 s8, {QB}, {QA}')
    A(f's_cselect_b32 s{sX}, s24, s16')
    A(f's_cselect_b32 s{sX + 1}, s25, s17')
    A(f's_cselect_b32 s{sW}, s26, s18')
    A(f's_cselect_b32 s{sW + 1}, s27, s19')
    A(f's_cselect_b32 s{sW + 2}, 0x200000, s{sW + 2}')
    A(f's_cselect_b32 s{sE + 2}, 65536, s{sE + 2}')
    A('s_lshl_b32 s9, s6, 19')
    A(f's_add_u32 s{sX}, s{sX}, s9')
    A(f's_addc_u32 s{sX + 1}, s{sX + 1}, 0')
    A(f's_and_b32 s{sX + 1}, s{sX + 1}, 0xffff')
    A(f's_mov_b32 s{sX + 2}, 0x80000')
    A(f's_mov_b32 s{sX + 3}, 0x00020000')
    A(f's_and_b32 s{sW + 1}, s{sW + 1}, 0xffff')
    A(f's_mov_b32 s{sW + 3}, 0x00020000')
    A('s_and_b32 s9, s7, 15')
    A('s_lshl_b32 s9, s9, 12')
    A('s_add_u32 s20, s20, s9')
    A('s_addc_u32 s21, s21, 0')
    A('s_bitcmp1_b32 s7, 0')
    A('s_cselect_b32 s28, s30, s28')
    A('s_cselect_b32 s29, s31, s29')
    A('s_cmp_ge_u32 s7, 24')
    A(f's_cselect_b32 s{sE}, s28, s20')
    A(f's_cselect_b32 s{sE + 1}, s29, s21')
    A(f's_and_b32 s{sE + 1}, s{sE + 1}, 0xffff')
    A(f's_mov_b32 s{sE + 3}, 0x00020000')
    make_srd(A, sWS, 's32', 's33', WS_SIZE)
    A('s_cmp_ge_u32 s5, 4')
    A('s_cbranch_scc1 K1_loader')
    A('s_cmp_lt_u32 s7, 16')
    A('s_cbranch_scc1 K1_kv')
    A('s_cmp_lt_u32 s7, 24')
    A('s_cbranch_scc1 K1_q')
    A('s_cmp_ge_u32 s5, 2')
    A('s_cbranch_scc1 K1_q')
    A('s_bitcmp1_b32 s7, 0')
    A('s_cbranch_scc1 K1_qv')
    k1_compute(A, 'qk')
    A('K1_qv:')
    k1_compute(A, 'qv')
    A('K1_q:')
    k1_compute(A, 'q')
    A('K1_kv:')
    k1_compute(A, 'kv')
    A('K1_loader:')
    A('s_cmp_ge_u32 s7, 24')
    A('s_cbranch_scc1 K1_loaderB')
    k1_loader(A, False)
    A('K1_loaderB:')
    k1_loader(A, True)
```

```python
import os
import gen_k1
from gen_k1 import (vr, sr, mfma32, mfma16, cvtpk, make_srd, emit_selector, dual_softmax, dpp_max_reduce,
                    stamp, stamp_flush, f32bits, QA, QB, KV, KVP, ZP, KN, VM, WPF, OA, OB, WS_SIZE, LOG2E)

KVF = 131072
ZF = KVF + 4096
K2_LDS = ZF + 128
K2_VGPR = 232
XCH = 0

sWS = 48
sC = 64
sPERM, sFLAG = 66, 67
sDG, sDL, sT, sT2 = 52, 53, 54, 55
vLANE = 2
vL16, vCur, vNext, vT0, vT1 = 3, 4, 5, 6, 7
vQ = 8
vK = 24
vV = 40
vS = 56
vP = 88
vO = 104
vL = 136
vSEL = 144
vPHI = 148
vKVP = 164
vZ = 228
vM = 230
PACK = os.environ.get('PACK', 'perm')


def pack(d, a):
    if PACK == 'perm':
        return f'v_perm_b32 v{d}, v{a + 1}, v{a}, s{sPERM}'
    return cvtpk(d, a)


def softmax_valu(x):
    S = vS + 16 * x; P = vP + 8 * x
    va = []
    for i in range(8):
        va += [f'v_exp_f32 v{S + 2 * i}, v{S + 2 * i}', f'v_exp_f32 v{S + 2 * i + 1}, v{S + 2 * i + 1}']
        if i > 0: va.append(pack(P + i - 1, S + 2 * (i - 1)))
    va.append(pack(P + 7, S + 14))
    return va


def qk(x, kb):
    S = vS + 16 * x
    return [mfma32(S, vK + 8 * kb, vQ + 8 * x, '0'), mfma32(S, vK + 8 * kb + 4, vQ + 8 * x + 4)]


def pv(x, vb):
    O = vO + 16 * x; P = vP + 8 * x; L = vL + 4 * x
    return ([mfma32(O, vV + 8 * vb, P), mfma32(O, vV + 8 * vb + 4, P + 4)],
            [mfma16(L, vSEL, P), mfma16(L, vSEL, P + 4)])


def phase(A, x, kb, vb, extra):
    q = qk(1 - x, kb)
    o, l = pv(1 - x, vb)
    mf = [q[0], o[0], q[1], l[0], o[1], l[1]]
    cnt = [5, 5, 5, 2, 5, 2]
    va = softmax_valu(x)
    k = 0
    extra = list(extra)
    for m, n in zip(mf, cnt):
        A(m)
        for _ in range(n):
            A(va[k]); k += 1
        if extra:
            for e in extra.pop(0): A(e)
    assert k == len(va) and not extra


def rdK(kb, addr, blk, t):
    return f'ds_read_b128 {vr(vK + 8 * kb + 4 * t, 4)}, v{addr} offset:{blk * 2048 + t * 1024}'


def rdV(vb, addr, blk, t):
    return f'ds_read_b128 {vr(vV + 8 * vb + 4 * t, 4)}, v{addr} offset:{16384 + blk * 2048 + t * 1024}'


def dma_chunk(A):
    for i in range(4):
        A(f's_add_u32 m0, s{sDL}, {i * 1024}')
        A(f's_add_u32 s{sT}, s{sDG}, {i * 1024}')
        A(f'buffer_load_dwordx4 v{vL16}, {sr(sWS, 4)}, s{sT} offen lds')
    A(f's_add_u32 s{sDG}, s{sDG}, 32768')
    A(f's_add_u32 s{sDL}, s{sDL}, 32768')
    A(f's_and_b32 s{sDL}, s{sDL}, 0x1ffff')


def k2(A):
    A('k2_kernel:')
    A('s_cmp_ge_u32 s2, 256')
    A('s_cbranch_scc0 K2_go')
    A('s_endpgm')
    A('K2_go:')
    stamp(A, 0)
    A('s_load_dwordx2 s[32:33], s[0:1], 88')
    A('v_lshrrev_b32 v1, 6, v0')
    A(f'v_and_b32 v{vLANE}, 63, v0')
    A('v_readfirstlane_b32 s5, v1')
    A(f'v_lshlrev_b32 v{vL16}, 4, v{vLANE}')
    A(f'v_lshlrev_b32 v{vT0}, 2, v{vLANE}')
    A('s_and_b32 s3, s2, 7')
    A('s_lshl_b32 s7, s3, 2')
    A('s_bfe_u32 s4, s2, 0x20003')
    A('s_add_u32 s7, s7, s4')
    A('s_lshr_b32 s6, s2, 5')
    A('s_lshl_b32 s8, s7, 6')
    A('s_lshl_b32 s9, s6, 3')
    A('s_add_u32 s8, s8, s9')
    A('s_add_u32 s9, s8, s5')
    A('s_lshl_b32 s9, s9, 11')
    A('s_xor_b32 s10, s5, 1')
    A('s_add_u32 s10, s8, s10')
    A('s_lshl_b32 s10, s10, 11')
    A(f's_add_u32 s12, s9, {QB}')
    A(f's_add_u32 s13, s10, {QB}')
    A('s_lshl_b32 s14, s7, 11')
    A(f's_add_u32 s14, s14, {WPF}')
    A(f's_mov_b32 s15, {KN}')
    A(f's_lshl_b32 s{sDL}, s5, 12')
    A(f's_add_u32 s{sDG}, s{sDL}, {KV}')
    A(f's_mov_b32 s{sC}, {LOG2E}')
    A(f's_mov_b32 s{sC + 1}, {LOG2E}')
    A(f's_mov_b32 s{sPERM}, 0x07060302')
    A('s_waitcnt lgkmcnt(0)')
    make_srd(A, sWS, 's32', 's33', WS_SIZE)
    QAF = vKVP
    WF = vKVP + 8
    T = vKVP + 16
    vKN, vVM = vKVP + 24, vKVP + 25
    q2 = vKVP + 26
    for t in range(2):
        A(f'buffer_load_dwordx4 {vr(QAF + 4 * t, 4)}, v{vL16}, {sr(sWS, 4)}, s9 offen offset:{t * 1024}')
        A(f'buffer_load_dwordx4 {vr(WF + 4 * t, 4)}, v{vL16}, {sr(sWS, 4)}, s14 offen offset:{t * 1024}')
    dma_chunk(A)
    for t in range(2):
        A(f'buffer_load_dwordx4 {vr(vQ + 4 * t, 4)}, v{vL16}, {sr(sWS, 4)}, s12 offen offset:{t * 1024}')
        A(f'buffer_load_dwordx4 {vr(vQ + 8 + 4 * t, 4)}, v{vL16}, {sr(sWS, 4)}, s13 offen offset:{t * 1024}')
    A(f'buffer_load_dword v{vKN}, v{vT0}, {sr(sWS, 4)}, s15 offen')
    A(f'buffer_load_dword v{vVM}, v{vT0}, {sr(sWS, 4)}, s15 offen offset:256')
    for _ in range(3):
        dma_chunk(A)
    A('s_and_b32 s3, s5, 1')
    A('s_lshl_b32 s3, s3, 13')
    A(f'v_add_u32 v{vCur}, s3, v{vL16}')
    A(f'v_add_u32 v{vNext}, 0x8000, v{vCur}')
    for r in list(range(vO, vO + 32)) + list(range(vL, vL + 8)) + list(range(vP + 8, vP + 16)) + list(range(vV + 8, vV + 16)):
        A(f'v_mov_b32 v{r}, 0')
    emit_selector(A, vSEL, vLANE, vT0, vT1)
    stamp(A, 1)
    A(mfma32(vS, WF, QAF, '0'))
    A(mfma32(vS, WF + 4, QAF + 4))
    dual_softmax(A, vS, vS + 16, vPHI, T, sC)
    A(f'v_mov_b32 v{q2}, 0')
    A(f'v_mov_b32 v{q2 + 1}, 0')
    for r in range(8):
        A(f'v_dot2c_f32_bf16 v{q2}, v{vQ + r}, v{vQ + r}')
        A(f'v_dot2c_f32_bf16 v{q2 + 1}, v{vQ + 8 + r}, v{vQ + 8 + r}')
    dpp_max_reduce(A, vKN)
    dpp_max_reduce(A, vVM)
    A(f'v_mov_b32 v{q2 + 2}, v{q2}')
    A(f'v_mov_b32 v{q2 + 3}, v{q2 + 1}')
    A(f'v_permlane32_swap_b32 v{q2}, v{q2 + 2}')
    A(f'v_permlane32_swap_b32 v{q2 + 1}, v{q2 + 3}')
    A(f'v_add_f32 v{q2}, v{q2}, v{q2 + 2}')
    A(f'v_add_f32 v{q2 + 1}, v{q2 + 1}, v{q2 + 3}')
    A(f'v_readlane_b32 s3, v{vKN}, 63')
    A(f'v_readlane_b32 s4, v{vVM}, 63')
    A(f'v_mul_f32 v{q2}, s3, v{q2}')
    A(f'v_mul_f32 v{q2 + 1}, s3, v{q2 + 1}')
    A(f'v_mov_b32 v{q2 + 2}, s4')
    A(f's_mov_b32 s3, {f32bits(3400.0)}')
    A(f'v_cmp_nge_f32 s[16:17], s3, v{q2}')
    A(f'v_cmp_nge_f32 s[18:19], s3, v{q2 + 1}')
    A(f's_mov_b32 s3, {f32bits(2.0 ** 50)}')
    A(f'v_cmp_nge_f32 s[20:21], s3, v{q2 + 2}')
    A(f's_mov_b32 s3, {f32bits(2.0 ** -30)}')
    A(f'v_cmp_nle_f32 s[22:23], s3, v{q2 + 2}')
    A('s_or_b64 s[16:17], s[16:17], s[18:19]')
    A('s_or_b64 s[20:21], s[20:21], s[22:23]')
    A('s_or_b64 s[16:17], s[16:17], s[20:21]')
    A(f's_or_b32 s{sFLAG}, s16, s17')
    stamp(A, 2)
    A('s_waitcnt vmcnt(12)')
    A('s_barrier')
    stamp(A, 3)
    if gen_k1.STAMPS: A('s_waitcnt lgkmcnt(0)')
    A(rdK(0, vCur, 0, 0)); A(rdK(0, vCur, 0, 1))
    A(rdV(0, vCur, 0, 0)); A(rdV(0, vCur, 0, 1))
    A(rdK(1, vCur, 1, 0)); A(rdK(1, vCur, 1, 1))
    for m in qk(0, 0): A(m)
    A('s_mov_b32 s11, 0')
    A('s_nop 10')
    L = A.label('K2L')
    A('.p2align 6')
    A(f'{L}:')
    for j in range(4):
        phase(A, 0, j & 1, (j - 1) & 1, [])
        if j == 2:
            A('s_waitcnt vmcnt(4)')
            A('s_barrier')
            Ln = A.label('K2N'); Lk = A.label('K2K')
            A('s_sub_u32 s3, s11, 1')
            A('s_cmp_lt_u32 s3, 4')
            A(f's_cbranch_scc0 {Lk}')
            dma_chunk(A)
            A(f'{Lk}:')
            A('s_cmp_eq_u32 s11, 5')
            A(f's_cbranch_scc0 {Ln}')
            A('s_lshl_b32 s3, s7, 17')
            A('s_lshl_b32 s4, s5, 10')
            A('s_add_u32 s3, s3, s4')
            A(f's_add_u32 s3, s3, {KVP}')
            for p in range(16):
                A(f'buffer_load_dwordx4 {vr(vKVP + 4 * p, 4)}, v{vL16}, {sr(sWS, 4)}, s3 offen')
                if p < 15: A('s_add_u32 s3, s3, 8192')
            A(f'v_lshrrev_b32 v{vT0}, 2, v{vLANE}')
            A(f'v_lshlrev_b32 v{vT0}, 8, v{vT0}')
            A(f'v_and_b32 v{vT1}, 3, v{vLANE}')
            A(f'v_lshl_add_u32 v{vT0}, v{vT1}, 3, v{vT0}')
            A('s_lshl_b32 s3, s7, 12')
            A('s_lshl_b32 s4, s5, 5')
            A('s_add_u32 s3, s3, s4')
            A(f's_add_u32 s3, s3, {ZP}')
            A(f'buffer_load_dwordx2 {vr(vZ, 2)}, v{vT0}, {sr(sWS, 4)}, s3 offen')
            A(f'{Ln}:')
        va, vblk = (vCur, j + 1) if j + 1 < 4 else (vNext, j + 1 - 4)
        ka, kblk = (vCur, j + 2) if j + 2 < 4 else (vNext, j + 2 - 4)
        ex = [[], [], [rdV((j + 1) & 1, va, vblk, 0)], [rdV((j + 1) & 1, va, vblk, 1)],
              [rdK(j & 1, ka, kblk, 0)], [rdK(j & 1, ka, kblk, 1)]]
        phase(A, 1, (j + 1) & 1, j & 1, ex)
    A(f'v_mov_b32 v{vCur}, v{vNext}')
    A(f'v_add_u32 v{vNext}, 0x8000, v{vNext}')
    A(f'v_and_b32 v{vNext}, 0x1ffff, v{vNext}')
    A('s_add_u32 s11, s11, 1')
    A('s_cmp_lg_u32 s11, 8')
    A(f's_cbranch_scc1 {L}')
    o, l = pv(1, 1)
    for m in (o[0], l[0], o[1], l[1]): A(m)
    stamp(A, 4)
    A(f's_cmp_lg_u32 s{sFLAG}, 0')
    A('s_cbranch_scc1 K2_fallback')
    A('K2_tail:')
    A('s_waitcnt vmcnt(0) lgkmcnt(0)')
    A('s_mul_i32 s3, s5, 4352')
    A(f'v_add_u32 v{vT0}, s3, v{vL16}')
    A('s_xor_b32 s4, s5, 1')
    A('s_mul_i32 s4, s4, 4352')
    A(f'v_add_u32 v{vT1}, s4, v{vL16}')
    n = 16
    while n > 1:
        n //= 2
        for p in range(n):
            for x in (0, 2):
                A(f'v_pk_add_f32 {vr(vKVP + 4 * p + x, 2)}, {vr(vKVP + 4 * p + x, 2)}, {vr(vKVP + 4 * (p + n) + x, 2)}')
    for qd in range(4):
        A(f'ds_write_b128 v{vT0}, {vr(vO + 16 + 4 * qd, 4)} offset:{XCH + qd * 1024}')
    A(f'v_lshlrev_b32 v{vK}, 2, v{vLANE}')
    A(f'v_add_u32 v{vK + 1}, s4, v{vK}')
    A(f'v_add_u32 v{vK}, s3, v{vK}')
    A(f'ds_write_b32 v{vK}, v{vL + 4} offset:{XCH + 4096}')
    A(cvtpk(vKVP + 4, vKVP))
    A(cvtpk(vKVP + 5, vKVP + 2))
    A('s_lshr_b32 s3, s5, 1')
    A('s_lshl_b32 s3, s3, 10')
    A('s_and_b32 s4, s5, 1')
    A('s_lshl_b32 s4, s4, 3')
    A('s_add_u32 s3, s3, s4')
    A(f's_add_u32 s3, s3, {KVF}')
    A(f'v_add_u32 v{vK + 2}, s3, v{vL16}')
    A(f'ds_write_b64 v{vK + 2}, {vr(vKVP + 4, 2)}')
    A(f'v_permlane16_swap_b32 v{vZ}, v{vZ + 1}')
    A(f'v_add_f32 v{vZ}, v{vZ}, v{vZ + 1}')
    A(f'v_add_f32_dpp v{vZ}, v{vZ}, v{vZ} row_shr:4 row_mask:0xf bank_mask:0xf')
    A(f'v_add_f32_dpp v{vZ}, v{vZ}, v{vZ} row_shr:8 row_mask:0xf bank_mask:0xf')
    A(f'v_mov_b32 v{vZ + 1}, v{vZ}')
    A(f'v_permlane32_swap_b32 v{vZ}, v{vZ + 1}')
    A(f'v_add_f32 v{vZ}, v{vZ}, v{vZ + 1}')
    A(cvtpk(vZ, vZ, vZ))
    A('s_lshr_b32 s3, s5, 1')
    A('s_lshl_b32 s3, s3, 5')
    A('s_add_u32 s3, s3, s4')
    A(f's_add_u32 s3, s3, {ZF}')
    A(f'v_and_b32 v{vK + 3}, 2, v{vLANE}')
    A(f'v_lshlrev_b32 v{vK + 3}, 3, v{vK + 3}')
    A(f'v_and_b32 v{vK + 4}, 1, v{vLANE}')
    A(f'v_lshl_add_u32 v{vK + 3}, v{vK + 4}, 2, v{vK + 3}')
    A(f'v_bfe_u32 v{vK + 4}, v{vLANE}, 4, 1')
    A(f'v_lshl_add_u32 v{vK + 3}, v{vK + 4}, 1, v{vK + 3}')
    A(f'v_add_u32 v{vK + 3}, s3, v{vK + 3}')
    A('s_mov_b32 exec_lo, 0xf000f000')
    A('s_mov_b32 exec_hi, 0')
    A(f'ds_write_b16 v{vK + 3}, v{vZ}')
    A('s_mov_b64 exec, -1')
    A(f'v_lshrrev_b32 v{vK + 4}, 5, v{vLANE}')
    A(f'v_lshlrev_b32 v{vK + 4}, 4, v{vK + 4}')
    A(f'v_add_u32 v{vK + 4}, {ZF}, v{vK + 4}')
    A(f'v_add_u32 v{vK + 5}, {KVF}, v{vL16}')
    A(f'v_and_b32 v{vK + 6}, 31, v{vLANE}')
    A(f'v_lshlrev_b32 v{vK + 6}, 11, v{vK + 6}')
    A(f'v_and_b32 v{vK + 7}, 32, v{vLANE}')
    A(f'v_add_u32 v{vK + 6}, v{vK + 6}, v{vK + 7}')
    A('s_lshl_b32 s3, s6, 3')
    A('s_add_u32 s3, s3, s5')
    A('s_lshl_b32 s3, s3, 16')
    A('s_lshl_b32 s4, s7, 6')
    A('s_add_u32 s3, s3, s4')
    A(f's_add_u32 s4, s3, {OA}')
    A(f's_add_u32 s3, s3, {OB}')
    A('s_waitcnt lgkmcnt(0)')
    A('s_barrier')
    KF = vKVP + 8
    ZFr = vKVP + 24
    X = vS
    XL = vV
    NUM = vO + 16
    DEN = vS + 16
    for f in range(4):
        A(f'ds_read_b128 {vr(KF + 4 * f, 4)}, v{vK + 5} offset:{f * 1024}')
        A(f'ds_read_b128 {vr(ZFr + 4 * f, 4)}, v{vK + 4} offset:{f * 32}')
    A(f'ds_read_b32 v{XL}, v{vK + 1} offset:{XCH + 4096}')
    for qd in range(4):
        A(f'ds_read_b128 {vr(X + 4 * qd, 4)}, v{vT1} offset:{XCH + qd * 1024}')
    for f in range(4):
        A(mfma32(DEN, ZFr + 4 * f, vPHI + 4 * f, '0' if f == 0 else None))
        A(mfma32(NUM, KF + 4 * f, vPHI + 4 * f, '0' if f == 0 else None))
    A(f'v_add_f32 v{vL}, v{vL}, v{XL}')
    A(f'v_rcp_f32 v{vL}, v{vL}')
    for r in range(0, 16, 2):
        A(f'v_pk_add_f32 {vr(vO + r, 2)}, {vr(vO + r, 2)}, {vr(X + r, 2)}')
    for r in range(0, 16, 2):
        A(f'v_pk_mul_f32 {vr(vO + r, 2)}, {vr(vO + r, 2)}, {vr(vL, 2)} op_sel_hi:[1,0]')
    for r in range(0, 16, 2):
        A(cvtpk(vP + r // 2, vO + r))
    for x in range(2):
        A(f'buffer_store_dwordx4 {vr(vP + 4 * x, 4)}, v{vK + 6}, {sr(sWS, 4)}, s3 offen offset:{16 * x}')
    A(f'v_add_f32 v{DEN}, {f32bits(1e-6)}, v{DEN}')
    A(f'v_rcp_f32 v{DEN}, v{DEN}')
    for r in range(0, 16, 2):
        A(f'v_pk_mul_f32 {vr(NUM + r, 2)}, {vr(NUM + r, 2)}, {vr(DEN, 2)} op_sel_hi:[1,0]')
    for r in range(0, 16, 2):
        A(cvtpk(vP + 8 + r // 2, NUM + r))
    for x in range(2):
        A(f'buffer_store_dwordx4 {vr(vP + 8 + 4 * x, 4)}, v{vK + 6}, {sr(sWS, 4)}, s4 offen offset:{16 * x}')
    if gen_k1.STAMPS: A('s_waitcnt vmcnt(0)')
    stamp(A, 5)
    stamp_flush(A, 6, 1)
    A('s_endpgm')

    A('K2_fallback:')
    A('s_waitcnt vmcnt(0) lgkmcnt(0)')
    A(f'v_mov_b32 v{vM}, 0xff800000')
    A(f'v_mov_b32 v{vM + 1}, 0xff800000')
    A('s_mov_b32 s11, 0')
    L1 = A.label('K2F')
    A(f'{L1}:')
    A('s_lshr_b32 s3, s11, 3')
    A('s_lshl_b32 s3, s3, 15')
    A('s_and_b32 s4, s11, 7')
    A('s_lshl_b32 s4, s4, 11')
    A('s_add_u32 s3, s3, s4')
    A(f's_add_u32 s3, s3, {KV}')
    for t in range(2):
        A(f'buffer_load_dwordx4 {vr(vK + 4 * t, 4)}, v{vL16}, {sr(sWS, 4)}, s3 offen offset:{t * 1024}')
    for x in range(2):
        for m in qk(x, 0): A(m)
    for x in range(2):
        for r in range(0, 16, 2):
            A(f'v_max3_f32 v{vM + x}, v{vM + x}, v{vS + 16 * x + r}, v{vS + 16 * x + r + 1}')
    A('s_add_u32 s11, s11, 1')
    A('s_cmp_lg_u32 s11, 64')
    A(f's_cbranch_scc1 {L1}')
    for x in range(2):
        A(f'v_mov_b32 v{vT0}, v{vM + x}')
        A(f'v_permlane32_swap_b32 v{vM + x}, v{vT0}')
        A(f'v_max_f32 v{vM + x}, v{vM + x}, v{vT0}')
        A(f'v_add_f32 v{vM + x}, {f32bits(11.0)}, v{vM + x}')
    for r in list(range(vO, vO + 32)) + list(range(vL, vL + 8)):
        A(f'v_mov_b32 v{r}, 0')
    A('s_mov_b32 s11, 0')
    A('s_and_b32 s12, s5, 1')
    A('s_lshl_b32 s12, s12, 13')
    A(f's_add_u32 s12, s12, {KV}')
    L2 = A.label('K2G')
    A(f'{L2}:')
    A('s_lshr_b32 s3, s11, 2')
    A('s_lshl_b32 s3, s3, 15')
    A('s_and_b32 s4, s11, 3')
    A('s_lshl_b32 s4, s4, 11')
    A('s_add_u32 s3, s3, s4')
    A('s_add_u32 s3, s3, s12')
    A('s_add_u32 s4, s3, 16384')
    for t in range(2):
        A(f'buffer_load_dwordx4 {vr(vK + 4 * t, 4)}, v{vL16}, {sr(sWS, 4)}, s3 offen offset:{t * 1024}')
    for t in range(2):
        A(f'buffer_load_dwordx4 {vr(vV + 4 * t, 4)}, v{vL16}, {sr(sWS, 4)}, s4 offen offset:{t * 1024}')
    for x in range(2):
        for m in qk(x, 0): A(m)
    for x in range(2):
        for r in range(16):
            A(f'v_sub_f32 v{vS + 16 * x + r}, v{vS + 16 * x + r}, v{vM + x}')
        for v in softmax_valu(x): A(v)
    for x in range(2):
        o, l = pv(x, 0)
        for m in o + l: A(m)
    A('s_add_u32 s11, s11, 1')
    A('s_cmp_lg_u32 s11, 32')
    A(f's_cbranch_scc1 {L2}')
    A('s_nop 15')
    A('s_branch K2_tail')
```

```python
import os
import gen_k1
from gen_k1 import (vr, sr, mfma16, cvtpk, make_srd, stamp, stamp_flush, OA, OB, WS_SIZE)

NS = 5
STG = 32768
LWO = 16384
K3_LDS = NS * STG
K3_VGPR = 144
BPOS = int(os.environ.get('K3_BPOS', '3'))

sX, sW, sO, sWS = 36, 40, 44, 48
sL, sGX, sGW, sT, sD, sCnt = 52, 53, 54, 55, 56, 57
sWM, sWN = 12, 13
vLANE = 2
vXA = 4
vWA = 6
XF = 16
WF = 48
ACC = 80


def acc(mb, nb):
    return ACC + (mb * 4 + nb) * 4


def rdX(s, mb):
    return f'ds_read_b128 {vr(XF + 16 * s + 4 * mb, 4)}, v{vXA + s} offset:{mb * 2048}'


def rdW(s, nb, u):
    return f'ds_read_b64_tr_b16 {vr(WF + 16 * s + 4 * nb + 2 * u, 2)}, v{vWA + nb} offset:{s * 8192 + u * 2048}'


def reads(s):
    r = [rdW(s, 0, 0), rdW(s, 0, 1), rdX(s, 0), rdW(s, 1, 0), rdW(s, 1, 1), rdW(s, 2, 0), rdW(s, 2, 1),
         rdW(s, 3, 0), rdW(s, 3, 1), rdX(s, 1), rdX(s, 2), rdX(s, 3)]
    return r


def kstep(A):
    for s in range(2):
        rq = reads(1 - s)
        k = 0
        for mb in range(4):
            for nb in range(4):
                if s == 1 and k == 0:
                    A(f's_add_u32 s{sCnt}, s{sCnt}, 1')
                    A(f's_cmp_eq_u32 s{sCnt}, {NS}')
                    A(f's_cselect_b32 s{sD}, s15, {STG}')
                    A(f's_cselect_b32 s{sCnt}, 0, s{sCnt}')
                if s == 1 and k == BPOS:
                    A('s_waitcnt lgkmcnt(0)')
                    A('s_barrier')
                A(mfma16(acc(mb, nb), WF + 16 * s + 4 * nb, XF + 16 * s + 4 * mb))
                if s == 1 and k < BPOS:
                    for a in range(6):
                        if a * BPOS // 6 == k:
                            A(f'v_add_u32 v{vXA + a}, s{sD}, v{vXA + a}')
                elif rq:
                    A(rq.pop(0))
                k += 1
        for r in rq: A(r)


def k3_loader(A):
    n = 8
    vX0, vX1, vW = 4, 5, 6
    t0, t1, t2 = 10, 11, 12
    A('s_sub_u32 s5, s5, 4')
    A(f'v_lshrrev_b32 v{t0}, 3, v{vLANE}')
    A('s_lshl_b32 s9, s5, 5')
    A(f'v_add_u32 v{t0}, s9, v{t0}')
    A(f'v_lshlrev_b32 v{t0}, 11, v{t0}')
    A(f'v_lshrrev_b32 v{t1}, 4, v{vLANE}')
    A(f'v_and_b32 v{t2}, 7, v{vLANE}')
    A(f'v_xor_b32 v{t2}, v{t2}, v{t1}')
    A(f'v_lshl_add_u32 v{vX0}, v{t2}, 4, v{t0}')
    A(f'v_xor_b32 v{t2}, 4, v{t2}')
    A(f'v_lshl_add_u32 v{vX1}, v{t2}, 4, v{t0}')
    A('s_and_b32 s9, s5, 1')
    A('s_lshl_b32 s9, s9, 2')
    A(f'v_bfe_u32 v{t0}, v{vLANE}, 1, 3')
    A(f'v_xor_b32 v{t0}, v{t0}, v{t1}')
    A(f'v_xor_b32 v{t0}, s9, v{t0}')
    A('s_lshl_b32 s9, s5, 4')
    A(f'v_add_u32 v{t1}, s9, v{t1}')
    A(f'v_lshlrev_b32 v{vW}, 11, v{t1}')
    A(f'v_lshl_add_u32 v{vW}, v{t0}, 5, v{vW}')
    A(f'v_and_b32 v{t2}, 1, v{vLANE}')
    A(f'v_lshl_add_u32 v{vW}, v{t2}, 4, v{vW}')
    A(f's_lshl_b32 s{sL}, s5, 12')
    A(f's_mov_b32 s{sGX}, 0')
    A(f's_lshl_b32 s{sGW}, s7, 8')

    def issue():
        for j in range(4):
            A(f's_add_u32 m0, s{sL}, {LWO + j * 1024}')
            A(f's_add_u32 s{sT}, s{sGW}, {j * 8192}')
            A(f'buffer_load_dwordx4 v{vW}, {sr(sW, 4)}, s{sT} offen lds')
            A(f's_add_u32 m0, s{sL}, {j * 1024}')
            A(f's_add_u32 s{sT}, s{sGX}, {j * 16384}')
            A(f'buffer_load_dwordx4 v{vX0 + (j & 1)}, {sr(sX, 4)}, s{sT} offen lds')
        A(f's_add_u32 s{sGX}, s{sGX}, 128')
        A(f's_add_u32 s{sGW}, s{sGW}, 131072')
        A(f's_add_u32 s{sL}, s{sL}, {STG}')
        A(f's_cmp_ge_u32 s{sL}, {NS * STG}')
        A(f's_cselect_b32 s{sT}, {NS * STG}, 0')
        A(f's_sub_u32 s{sL}, s{sL}, s{sT}')

    stamp(A, 1)
    for _ in range(NS):
        issue()
    stamp(A, 2)
    A(f's_waitcnt vmcnt({(NS - 1) * n})')
    stamp(A, 3)
    A('s_barrier')
    A(f's_mov_b32 s11, {16 - NS}')
    L = A.label('K3LD')
    A(f'{L}:')
    A(f's_waitcnt vmcnt({(NS - 2) * n})')
    A('s_barrier')
    issue()
    A('s_sub_u32 s11, s11, 1')
    A('s_cmp_lg_u32 s11, 0')
    A(f's_cbranch_scc1 {L}')
    for i in range(NS - 2, -1, -1):
        A(f's_waitcnt vmcnt({i * n})')
        A('s_barrier')
    stamp(A, 4)
    A('s_barrier')
    stamp(A, 5)
    stamp_flush(A, 6, 2, waveadd=4)
    A('s_endpgm')


def k3_compute(A):
    t0, t1, t2, t3, r16, g = XF, XF + 1, XF + 2, XF + 3, XF + 4, XF + 5
    A(f'v_and_b32 v{r16}, 15, v{vLANE}')
    A(f'v_lshrrev_b32 v{g}, 4, v{vLANE}')
    A(f's_lshl_b32 s9, s{sWM}, 13')
    A(f'v_lshlrev_b32 v{t0}, 7, v{r16}')
    A(f'v_add_u32 v{t0}, s9, v{t0}')
    A(f'v_lshrrev_b32 v{t1}, 1, v{r16}')
    A(f'v_xor_b32 v{t1}, v{t1}, v{g}')
    A(f'v_lshl_add_u32 v{vXA}, v{t1}, 4, v{t0}')
    A(f'v_xor_b32 v{vXA + 1}, 64, v{vXA}')
    A(f'v_bfe_u32 v{t0}, v{vLANE}, 2, 2')
    A(f'v_and_b32 v{t2}, 1, v{g}')
    A(f'v_lshl_add_u32 v{t1}, v{t2}, 4, v{t0}')
    A(f'v_lshrrev_b32 v{t3}, 1, v{g}')
    A(f'v_lshl_add_u32 v{t1}, v{t3}, 2, v{t1}')
    A(f'v_lshl_add_u32 v{t0}, v{t2}, 2, v{t0}')
    A(f'v_and_b32 v{t3}, 3, v{vLANE}')
    A(f'v_lshlrev_b32 v{t3}, 3, v{t3}')
    A(f'v_lshl_add_u32 v{t1}, v{t1}, 8, v{t3}')
    A(f'v_add_u32 v{t1}, {LWO}, v{t1}')
    A(f's_lshl_b32 s9, s{sWN}, 2')
    A(f'v_xor_b32 v{t0}, s9, v{t0}')
    for nb in range(4):
        A(f'v_xor_b32 v{t2}, {nb}, v{t0}')
        A(f'v_lshl_add_u32 v{vWA + nb}, v{t2}, 5, v{t1}')
    vo = 10
    A(f'v_lshlrev_b32 v{vo}, 12, v{r16}')
    A(f'v_and_b32 v{t2}, 1, v{g}')
    A(f'v_lshl_add_u32 v{vo}, v{t2}, 5, v{vo}')
    A(f'v_lshrrev_b32 v{t2}, 1, v{g}')
    A(f'v_lshl_add_u32 v{vo}, v{t2}, 4, v{vo}')
    A('s_lshl_b32 s14, s6, 19')
    A(f's_lshl_b32 s9, s{sWM}, 18')
    A('s_add_u32 s14, s14, s9')
    A('s_lshl_b32 s9, s8, 11')
    A('s_add_u32 s14, s14, s9')
    A('s_lshl_b32 s9, s7, 8')
    A('s_add_u32 s14, s14, s9')
    A(f's_lshl_b32 s9, s{sWN}, 7')
    A('s_add_u32 s14, s14, s9')
    for r in range(ACC, ACC + 64):
        A(f'v_mov_b32 v{r}, 0')
    A(f's_mov_b32 s{sCnt}, 0')
    A(f's_mov_b32 s15, {(-(NS - 1) * STG) & 0xffffffff}')
    stamp(A, 1)
    A('s_barrier')
    stamp(A, 2)
    if gen_k1.STAMPS: A('s_waitcnt lgkmcnt(0)')
    for r in reads(0): A(r)
    A('s_mov_b32 s11, 16')
    L = A.label('K3C')
    A('.p2align 6')
    A(f'{L}:')
    kstep(A)
    A('s_sub_u32 s11, s11, 1')
    A('s_cmp_lg_u32 s11, 0')
    A(f's_cbranch_scc1 {L}')
    stamp(A, 3)
    A('s_waitcnt lgkmcnt(0)')
    k = 0
    for mb in range(4):
        for pr in range(2):
            tmp = XF + (k % 8) * 4
            k += 1
            for x in range(2):
                A(cvtpk(tmp + x, acc(mb, 2 * pr) + 2 * x))
                A(cvtpk(tmp + 2 + x, acc(mb, 2 * pr + 1) + 2 * x))
            for x in range(2):
                A(f'v_permlane16_swap_b32 v{tmp + x}, v{tmp + 2 + x}')
            A(f'buffer_store_dwordx4 {vr(tmp, 4)}, v{vo}, {sr(sO, 4)}, s14 offen offset:{pr * 64}')
        if mb < 3: A('s_add_u32 s14, s14, 65536')
    stamp(A, 4)
    if gen_k1.STAMPS: A('s_waitcnt vmcnt(0)')
    stamp(A, 5)
    stamp_flush(A, 6, 2)
    A('s_endpgm')


def k3(A):
    A('k3_kernel:')
    A('s_cmp_ge_u32 s2, 256')
    A('s_cbranch_scc0 K3_go')
    A('s_endpgm')
    A('K3_go:')
    stamp(A, 0)
    A('s_load_dwordx2 s[16:17], s[0:1], 24')
    A('s_load_dwordx4 s[20:23], s[0:1], 64')
    A('s_load_dwordx2 s[32:33], s[0:1], 88')
    A('v_lshrrev_b32 v1, 6, v0')
    A(f'v_and_b32 v{vLANE}, 63, v0')
    A('v_readfirstlane_b32 s5, v1')
    A('s_bfe_u32 s8, s2, 0x10002')
    A('s_and_b32 s6, s2, 3')
    A('s_lshl_b32 s6, s6, 2')
    A('s_bfe_u32 s9, s2, 0x20003')
    A('s_add_u32 s6, s6, s9')
    A('s_lshr_b32 s7, s2, 5')
    A(f's_bfe_u32 s{sWM}, s5, 0x10001')
    A(f's_and_b32 s{sWN}, s5, 1')
    A('s_lshl_b32 s9, s6, 18')
    A('s_lshl_b32 s10, s8, 22')
    A('s_add_u32 s9, s9, s10')
    A(f's_add_u32 s9, s9, {OA}')
    A('s_waitcnt lgkmcnt(0)')
    A('s_cmp_eq_u32 s8, 0')
    A('s_cselect_b32 s16, s16, s20')
    A('s_cselect_b32 s17, s17, s21')
    make_srd(A, sW, 's16', 's17', 0x200000)
    make_srd(A, sO, 's22', 's23', 0x800000)
    make_srd(A, sWS, 's32', 's33', WS_SIZE)
    A('s_add_u32 s32, s32, s9')
    A('s_addc_u32 s33, s33, 0')
    make_srd(A, sX, 's32', 's33', 0x40000)
    A('s_cmp_ge_u32 s5, 4')
    A('s_cbranch_scc1 K3_loader')
    k3_compute(A)
    A('K3_loader:')
    k3_loader(A)
```

```python
import sys
from asmlib import Asm
import gen_k1
NAME='concat_heads__linear_kernel_hedgehog__grouped_kv_mqa__prompt'
REF=open(f'cdna_kernels/{NAME}.s.ref').read().split('\n')
def desc(name, vgpr, sgpr=96):
    acc=(vgpr+3)//4*4
    return f""".section .rodata,"a"
.p2align 6
.amdhsa_kernel {name}
  .amdhsa_next_free_vgpr {vgpr}
  .amdhsa_next_free_sgpr {sgpr}
  .amdhsa_accum_offset {acc}
  .amdhsa_group_segment_fixed_size 0
  .amdhsa_kernarg_size 96
  .amdhsa_user_sgpr_count 2
  .amdhsa_user_sgpr_kernarg_segment_ptr 1
  .amdhsa_system_sgpr_workgroup_id_x 1
.end_amdhsa_kernel
"""
def build(stages, out):
    ks=[]
    if 1 in stages: ks.append(('k1_kernel', gen_k1.k1, 256, 512, gen_k1.K1_LDS, 256))
    if 2 in stages:
        import gen_k2
        ks.append(('k2_kernel', gen_k2.k2, 256, 512, gen_k2.K2_LDS, gen_k2.K2_VGPR))
    if 3 in stages:
        import gen_k3
        ks.append(('k3_kernel', gen_k3.k3, 256, gen_k3.K3_THREADS, gen_k3.K3_LDS, gen_k3.K3_VGPR))
    head=[l for l in REF if l.startswith(';') and '@launch' not in l and not l.startswith('; Override') and not l.startswith('; grid=')]
    head=head[:13]
    txt='\n'.join(head)+'\n'
    for n,f,g,b,l,v in ks:
        txt+=f'; @launch kernel={n} grid=({g},1,1) block=({b},1,1) lds={l}\n'
    txt+='.amdgcn_target "amdgcn-amd-amdhsa--gfx950"\n'
    nprob=0
    for n,f,g,b,l,v in ks:
        A=Asm()
        f(A)
        nprob+=len(A.verify())
        txt+=f'.text\n.globl {n}\n.p2align 8\n.type {n},@function\n'+A.text()
        txt+=desc(n,v)
    open(out,'w').write(txt)
    return nprob
if __name__=='__main__':
    import os
    gen_k1.STAMPS=int(os.environ.get('STAMPS','0'))
    st=[int(c) for c in (sys.argv[1] if len(sys.argv)>1 else '123')]
    out=sys.argv[2] if len(sys.argv)>2 else f'cdna_kernels/{NAME}.s'
    sys.exit(1 if build(st,out) else 0)
```

```python
from asmlib import Asm

MB = 1 << 20
QA = 0
QB = 4 * MB
KV = 8 * MB
KVP = 9 * MB
ZP = 13 * MB
KN = 13 * MB + 256 * 1024
VM = KN + 256
WPF = 13 * MB + 512 * 1024
OA = 16 * MB
OB = 20 * MB
WS_SIZE = 0x10000000
LOG2E = 0x3fb8aa3b
KSCALE = 1.4426950408889634 / (32 ** 0.5)


def f32bits(x):
    import struct
    return struct.unpack('<I', struct.pack('<f', x))[0]


def vr(a, n=1):
    return f'v{a}' if n == 1 else f'v[{a}:{a + n - 1}]'


def sr(a, n=1):
    return f's{a}' if n == 1 else f's[{a}:{a + n - 1}]'


def mfma32(d, a, b, c=None):
    cs = vr(d, 16) if c is None else (c if isinstance(c, str) else vr(c, 16))
    return f'v_mfma_f32_32x32x16_bf16 {vr(d, 16)}, {vr(a, 4)}, {vr(b, 4)}, {cs}'


def mfma16(d, a, b, c=None):
    cs = vr(d, 4) if c is None else (c if isinstance(c, str) else vr(c, 4))
    return f'v_mfma_f32_16x16x32_bf16 {vr(d, 4)}, {vr(a, 4)}, {vr(b, 4)}, {cs}'


def cvtpk(d, a, b=None):
    b = a + 1 if b is None else b
    return f'v_cvt_pk_bf16_f32 v{d}, v{a}, v{b}'


def make_srd(A, s, lo, hi, size):
    A(f's_mov_b32 s{s}, {lo}')
    A(f's_and_b32 s{s + 1}, {hi}, 0xffff')
    A(f's_mov_b32 s{s + 2}, {size}')
    A(f's_mov_b32 s{s + 3}, 0x00020000')


def emit_selector(A, vsel, lane, t0, t1):
    A(f'v_lshrrev_b32 v{t0}, 4, v{lane}')
    A(f'v_lshrrev_b32 v{t1}, 2, v{lane}')
    A(f'v_xor_b32 v{t0}, v{t0}, v{t1}')
    A(f'v_and_b32 v{t0}, 1, v{t0}')
    A(f'v_cmp_eq_u32 vcc, 0, v{t0}')
    A(f'v_mov_b32 v{t1}, 0x3f803f80')
    A(f'v_cndmask_b32 v{vsel}, 0, v{t1}, vcc')
    for k in range(1, 4):
        A(f'v_mov_b32 v{vsel + k}, v{vsel}')


def dual_softmax(A, P, E, OUT, T, sC):
    mx, mn, t0, t1, sp, sn = T, T + 1, T + 2, T + 3, T + 4, T + 6
    A(f'v_max3_f32 v{mx}, v{P}, v{P + 1}, v{P + 2}')
    A(f'v_min3_f32 v{mn}, v{P}, v{P + 1}, v{P + 2}')
    for r in range(3, 15, 2):
        A(f'v_max3_f32 v{mx}, v{mx}, v{P + r}, v{P + r + 1}')
        A(f'v_min3_f32 v{mn}, v{mn}, v{P + r}, v{P + r + 1}')
    A(f'v_max_f32 v{mx}, v{mx}, v{P + 15}')
    A(f'v_min_f32 v{mn}, v{mn}, v{P + 15}')
    A(f'v_mov_b32 v{t0}, v{mx}')
    A(f'v_mov_b32 v{t1}, v{mn}')
    A(f'v_permlane32_swap_b32 v{mx}, v{t0}')
    A(f'v_permlane32_swap_b32 v{mn}, v{t1}')
    A(f'v_max_f32 v{mx}, v{mx}, v{t0}')
    A(f'v_min_f32 v{mn}, v{mn}, v{t1}')
    A(f'v_mul_f32 v{t0}, s{sC}, v{mx}')
    A(f'v_mul_f32 v{mx}, s{sC}, v{mn}')
    for r in range(0, 16, 2):
        A(f'v_pk_fma_f32 {vr(E + r, 2)}, {vr(P + r, 2)}, {sr(sC, 2)}, {vr(t0, 2)} op_sel_hi:[1,0,0] neg_lo:[0,0,1] neg_hi:[0,0,1]')
        A(f'v_pk_fma_f32 {vr(P + r, 2)}, {vr(P + r, 2)}, {sr(sC, 2)}, {vr(mx, 2)} op_sel_hi:[1,0,0] neg_lo:[1,0,0] neg_hi:[1,0,0]')
    for r in range(16):
        A(f'v_exp_f32 v{E + r}, v{E + r}')
        A(f'v_exp_f32 v{P + r}, v{P + r}')
    A(f'v_pk_add_f32 {vr(sp, 2)}, {vr(E, 2)}, {vr(E + 2, 2)}')
    A(f'v_pk_add_f32 {vr(sn, 2)}, {vr(P, 2)}, {vr(P + 2, 2)}')
    for r in range(4, 16, 2):
        A(f'v_pk_add_f32 {vr(sp, 2)}, {vr(sp, 2)}, {vr(E + r, 2)}')
        A(f'v_pk_add_f32 {vr(sn, 2)}, {vr(sn, 2)}, {vr(P + r, 2)}')
    A(f'v_add_f32 v{sp}, v{sp}, v{sp + 1}')
    A(f'v_add_f32 v{sn}, v{sn}, v{sn + 1}')
    A(f'v_mov_b32 v{sp + 1}, v{sp}')
    A(f'v_mov_b32 v{sn + 1}, v{sn}')
    A(f'v_permlane32_swap_b32 v{sp}, v{sp + 1}')
    A(f'v_permlane32_swap_b32 v{sn}, v{sn + 1}')
    A(f'v_add_f32 v{sp}, v{sp}, v{sp + 1}')
    A(f'v_add_f32 v{sn}, v{sn}, v{sn + 1}')
    A(f'v_rcp_f32 v{sp}, v{sp}')
    A(f'v_rcp_f32 v{sn}, v{sn}')
    for r in range(0, 16, 2):
        A(f'v_pk_mul_f32 {vr(E + r, 2)}, {vr(E + r, 2)}, {vr(sp, 2)} op_sel_hi:[1,0]')
        A(f'v_pk_mul_f32 {vr(P + r, 2)}, {vr(P + r, 2)}, {vr(sn, 2)} op_sel_hi:[1,0]')
    for r in range(0, 16, 2):
        A(cvtpk(OUT + r // 2, E + r))
        A(cvtpk(OUT + 8 + r // 2, P + r))


def dpp_max_reduce(A, v):
    for ctl in ('row_shr:1', 'row_shr:2', 'row_shr:4', 'row_shr:8', 'row_bcast:15 row_mask:0xa', 'row_bcast:31 row_mask:0xc'):
        A(f'v_max_f32_dpp v{v}, v{v}, v{v} {ctl}')


STAMPS = False
STAMP_BASE = 24 * MB


def stamp(A, i):
    if STAMPS:
        A(f's_memrealtime s[{70 + 2 * i}:{71 + 2 * i}]' if STAMPS == 2 else f's_memtime s[{70 + 2 * i}:{71 + 2 * i}]')


def stamp_flush(A, n, kidx, swave='s5', waveadd=0, srd=48):
    if not STAMPS: return
    A('s_waitcnt lgkmcnt(0)')
    A('s_lshl_b32 s68, s2, 3')
    A(f's_add_u32 s68, s68, {swave}')
    A(f's_add_u32 s68, s68, {waveadd}')
    A('s_lshl_b32 s68, s68, 6')
    A(f's_add_u32 s68, s68, {STAMP_BASE + kidx * MB}')
    A('v_mov_b32 v1, 0')
    A('s_mov_b64 exec, 1')
    for i in range(n):
        A(f'v_mov_b32 v3, s{70 + 2 * i}')
        A(f'buffer_store_dword v3, v1, s[{srd}:{srd + 3}], s68 offen offset:{4 * i}')
    A('s_mov_b64 exec, -1')


LX = 0
LW = 98304
LE = 147456
K1_LDS = 159744
SCR = 32768

sX, sW, sE, sWS = 36, 40, 44, 48
sLX, sLW, sLE, sGX, sGW, sGE, sT, sLDW4, sLDW64, sT2, sT3, sT4 = 52, 53, 54, 55, 56, 57, 58, 59, 60, 61, 62, 63
sC = 64
sK, sLDWK = 66, 67
import os
ROT = int(os.environ.get('ROT', '0'))
sWM, sWN = 12, 13
vLANE = 2
vXA = 4
vEXA = 10
vWA = 16
vEWA = 20
XF = 24
WF = 56
EXF = 88
EWF = 96
EACC = 112
ACC = 128


def acc(mb, nb):
    return ACC + (mb * 4 + nb) * 4


def eacc(mbl, nbl):
    return EACC + (mbl * 2 + nbl) * 4


def k1_loader(A, isB):
    n = 13 if isB else 12
    vX0, vX1, vW0, vW1, vE = 4, 5, 6, 7, 8
    t0, t1, t2, t3 = 10, 11, 12, 13
    A('s_sub_u32 s5, s5, 4')
    A(f'v_lshrrev_b32 v{t0}, 3, v{vLANE}')
    A('s_lshl_b32 s9, s5, 6')
    A(f'v_add_u32 v{t0}, s9, v{t0}')
    A(f'v_lshlrev_b32 v{t0}, 11, v{t0}')
    A(f'v_lshrrev_b32 v{t1}, 4, v{vLANE}')
    A(f'v_and_b32 v{t2}, 7, v{vLANE}')
    A(f'v_xor_b32 v{t2}, v{t2}, v{t1}')
    A(f'v_lshl_add_u32 v{vX0}, v{t2}, 4, v{t0}')
    A(f'v_xor_b32 v{t2}, 4, v{t2}')
    A(f'v_lshl_add_u32 v{vX1}, v{t2}, 4, v{t0}')
    for bit, vW in ((0, vW0), (1, vW1)):
        A(f'v_bfe_u32 v{t0}, v{vLANE}, 1, 3')
        A(f'v_xor_b32 v{t0}, v{t0}, v{t1}')
        if bit: A(f'v_xor_b32 v{t0}, 4, v{t0}')
        A(f'v_mul_lo_u32 v{vW}, v{t1}, s35')
        A(f'v_bfe_u32 v{t2}, v{t0}, 1, 1')
        A(f'v_mul_lo_u32 v{t2}, v{t2}, s15')
        A(f'v_add_u32 v{vW}, v{vW}, v{t2}')
        A(f'v_lshrrev_b32 v{t2}, 2, v{t0}')
        A(f'v_mul_lo_u32 v{t2}, v{t2}, s34')
        A(f'v_add_u32 v{vW}, v{vW}, v{t2}')
        A(f'v_and_b32 v{t2}, 1, v{t0}')
        A(f'v_lshl_add_u32 v{vW}, v{t2}, 5, v{vW}')
        A(f'v_and_b32 v{t2}, 1, v{vLANE}')
        A(f'v_lshl_add_u32 v{vW}, v{t2}, 4, v{vW}')
        A(f'v_add_u32 v{vW}, s14, v{vW}')
    if isB:
        A(f'v_lshlrev_b32 v{vE}, 4, v{vLANE}')
        A(f'v_and_b32 v{t2}, 32, v{vLANE}')
        A(f'v_xor_b32 v{vE}, v{vE}, v{t2}')
    else:
        A(f'v_lshlrev_b32 v{vE}, 4, v{vLANE}')
    A(f's_lshl_b32 s{sLX}, s5, 13')
    A(f's_lshl_b32 s{sLW}, s5, 12')
    A(f's_add_u32 s{sLW}, s{sLW}, {LW}')
    A(f's_lshl_b32 s{sLE}, s5, 10')
    A(f's_mov_b32 s{sGE}, s{sLE}')
    A(f's_add_u32 s{sLE}, s{sLE}, {LE}')
    A(f's_mov_b32 s{sGX}, 0')
    A(f's_lshl_b32 s{sLDW4}, s35, 2')
    A(f's_lshl_b32 s{sLDW64}, s35, 6')
    A(f's_lshl_b32 s{sGW}, s{sLDW4}, 2')
    A(f's_mul_i32 s{sGW}, s{sGW}, s5')
    if ROT:
        A(f's_mul_i32 s{sK}, s3, {ROT}')
        A(f's_and_b32 s{sK}, s{sK}, 15')
        A(f's_lshl_b32 s{sGX}, s{sK}, 7')
        A(f's_mul_i32 s{sT}, s{sK}, s{sLDW64}')
        A(f's_add_u32 s{sGW}, s{sGW}, s{sT}')
        A(f's_lshl_b32 s{sLDWK}, s35, 10')
        if isB:
            A(f's_lshl_b32 s{sT}, s{sK}, 12')
            A(f's_add_u32 s{sGE}, s{sGE}, s{sT}')
    if not isB:
        A(f's_mov_b32 m0, s{sLE}')
        A('s_nop 0')
        A(f'buffer_load_dwordx4 v{vE}, {sr(sE, 4)}, s{sGE} offen lds')

    def issue():
        order = [('x', 0), ('w', 0), ('x', 1), ('x', 2), ('w', 1), ('x', 3), ('x', 4), ('w', 2), ('x', 5), ('x', 6), ('w', 3), ('x', 7)]
        first_w = True
        for kind, j in order:
            if kind == 'x':
                A(f's_add_u32 m0, s{sLX}, {j * 1024}')
                A(f's_add_u32 s{sT}, s{sGX}, {j * 16384}')
                A(f'buffer_load_dwordx4 v{vX0 + (j & 1)}, {sr(sX, 4)}, s{sT} offen lds')
            else:
                A(f's_add_u32 m0, s{sLW}, {j * 1024}')
                if first_w:
                    A(f's_mov_b32 s{sT2}, s{sGW}')
                    first_w = False
                else:
                    A(f's_add_u32 s{sT2}, s{sT2}, s{sLDW4}')
                A(f'buffer_load_dwordx4 v{vW0 + (j >> 1)}, {sr(sW, 4)}, s{sT2} offen lds')
        if isB:
            A(f's_mov_b32 m0, s{sLE}')
            A('s_nop 0')
            A(f'buffer_load_dwordx4 v{vE}, {sr(sE, 4)}, s{sGE} offen lds')
            A(f's_add_u32 s{sGE}, s{sGE}, 4096')
        A(f's_add_u32 s{sGX}, s{sGX}, 128')
        A(f's_add_u32 s{sGW}, s{sGW}, s{sLDW64}')
        if ROT:
            A(f's_add_u32 s{sK}, s{sK}, 1')
            A(f's_cmp_eq_u32 s{sK}, 16')
            A(f's_cselect_b32 s{sT}, 2048, 0')
            A(f's_cselect_b32 s{sT2}, s{sLDWK}, 0')
            A(f's_cselect_b32 s{sT3}, 65536, 0')
            A(f's_sub_u32 s{sGX}, s{sGX}, s{sT}')
            A(f's_sub_u32 s{sGW}, s{sGW}, s{sT2}')
            if isB: A(f's_sub_u32 s{sGE}, s{sGE}, s{sT3}')
        A(f's_add_u32 s{sLX}, s{sLX}, 32768')
        A(f's_add_u32 s{sLW}, s{sLW}, 16384')
        A(f's_add_u32 s{sLE}, s{sLE}, 4096')
        A(f's_cmp_ge_u32 s{sLX}, {LW}')
        A(f's_cselect_b32 s{sT}, 98304, 0')
        A(f's_cselect_b32 s{sT2}, 49152, 0')
        A(f's_cselect_b32 s{sT3}, 12288, 0')
        A(f's_sub_u32 s{sLX}, s{sLX}, s{sT}')
        A(f's_sub_u32 s{sLW}, s{sLW}, s{sT2}')
        A(f's_sub_u32 s{sLE}, s{sLE}, s{sT3}')

    stamp(A, 1)
    for _ in range(2):
        issue()
    stamp(A, 2)
    A(f's_waitcnt vmcnt({n})')
    stamp(A, 3)
    A('s_barrier')
    issue()
    A('s_mov_b32 s11, 13')
    L = A.label('K1LD')
    A(f'{L}:')
    A(f's_waitcnt vmcnt({n})')
    A('s_barrier')
    issue()
    A('s_sub_u32 s11, s11, 1')
    A('s_cmp_lg_u32 s11, 0')
    A(f's_cbranch_scc1 {L}')
    A(f's_waitcnt vmcnt({n})')
    A('s_barrier')
    A('s_waitcnt vmcnt(0)')
    stamp(A, 4)
    A('s_barrier')
    A('s_barrier')
    stamp(A, 5)
    stamp_flush(A, 6, 0, waveadd=4)
    A('s_endpgm')


def rdX(stage, s, mb):
    return f'ds_read_b128 {vr(XF + 4 * mb, 4)}, v{vXA + stage * 2 + s} offset:{mb * 2048}'


def rdW(stage, s, nb, u):
    return f'ds_read_b64_tr_b16 {vr(WF + s * 16 + 4 * nb + 2 * u, 2)}, v{vWA + nb} offset:{stage * 16384 + s * 8192 + u * 1024}'


def rdEX(stage, s, mbl):
    return f'ds_read_b128 {vr(EXF + 4 * mbl, 4)}, v{vEXA + stage * 2 + s} offset:{mbl * 2048}'


def rdEW(stage, s, nbl, u):
    return f'ds_read_b64_tr_b16 {vr(EWF + s * 8 + 4 * nbl + 2 * u, 2)}, v{vEWA + nbl} offset:{stage * 4096 + s * 2048 + u * 256}'


BPOS = 6


def all_reads(stage, s, extra):
    r = [rdX(stage, s, 0)]
    for nb in range(4):
        r += [rdW(stage, s, nb, 0), rdW(stage, s, nb, 1)]
    r += [rdX(stage, s, mb) for mb in range(1, 8)]
    if extra:
        for nbl in range(2):
            r += [rdEW(stage, s, nbl, 0), rdEW(stage, s, nbl, 1)]
        r += [rdEX(stage, s, 0), rdEX(stage, s, 1)]
    return r


def kstep(A, stage, ver, last):
    extra = ver in ('qk', 'qv')
    for s in range(2):
        mf = []
        for mb in range(8):
            for nb in range(4):
                x = XF + 4 * mb; w = WF + s * 16 + 4 * nb
                normal = (ver == 'kv' and nb >= 2)
                m = mfma16(acc(mb, nb), x, w) if normal else mfma16(acc(mb, nb), w, x)
                mf.append((m, ('x', mb) if nb == 3 else None))
        if extra:
            for mbl in range(2):
                for nbl in range(2):
                    x = EXF + 4 * mbl; w = EWF + s * 8 + 4 * nbl
                    m = mfma16(eacc(mbl, nbl), x, w) if ver == 'qv' else mfma16(eacc(mbl, nbl), w, x)
                    mf.append((m, ('e', mbl) if nbl == 1 else None))
        if s == 0:
            nst, ns = stage, 1
        else:
            nst, ns = (stage + 1) % 3, 0
        none = (s == 1 and last)
        wq = []
        if not none:
            for nb in range(4):
                wq += [rdW(nst, ns, nb, 0), rdW(nst, ns, nb, 1)]
            if extra:
                for nbl in range(2):
                    wq += [rdEW(nst, ns, nbl, 0), rdEW(nst, ns, nbl, 1)]
        xq = []
        for k, (m, fr) in enumerate(mf):
            if s == 1 and k == BPOS:
                A('s_waitcnt lgkmcnt(0)')
                A('s_barrier')
            A(m)
            if fr and not none:
                xq.append(rdX(nst, ns, fr[1]) if fr[0] == 'x' else rdEX(nst, ns, fr[1]))
            if s == 1 and k < BPOS: continue
            if xq:
                A(xq.pop(0))
            elif wq:
                A(wq.pop(0))
        for r in xq + wq: A(r)


def k1_compute(A, ver):
    extra = ver in ('qk', 'qv')
    t0, t1, t2, t3 = XF, XF + 1, XF + 2, XF + 3
    r16, g = XF + 4, XF + 5
    A(f'v_and_b32 v{r16}, 15, v{vLANE}')
    A(f'v_lshrrev_b32 v{g}, 4, v{vLANE}')
    A(f's_lshl_b32 s9, s{sWM}, 14')
    A(f'v_lshlrev_b32 v{t0}, 7, v{r16}')
    A(f'v_add_u32 v{t0}, s9, v{t0}')
    A(f'v_lshrrev_b32 v{t1}, 1, v{r16}')
    A(f'v_xor_b32 v{t1}, v{t1}, v{g}')
    for s in range(2):
        A(f'v_xor_b32 v{t2}, {4 * s}, v{t1}')
        A(f'v_lshl_add_u32 v{vXA + s}, v{t2}, 4, v{t0}')
        A(f'v_add_u32 v{vXA + 2 + s}, 0x8000, v{vXA + s}')
        A(f'v_add_u32 v{vXA + 4 + s}, 0x10000, v{vXA + s}')
    if extra:
        A('s_and_b32 s9, s7, 7')
        A('s_lshr_b32 s9, s9, 1')
        A('s_lshl_b32 s9, s9, 1')
        A('s_add_u32 s9, s9, s5')
        A(f's_mov_b32 s{sT4}, s9')
        A('s_lshl_b32 s9, s9, 12')
        for k in range(6):
            A(f'v_add_u32 v{vEXA + k}, s9, v{vXA + k}')
    A(f'v_bfe_u32 v{t0}, v{vLANE}, 2, 2')
    A(f'v_lshl_add_u32 v{t1}, v{g}, 3, v{t0}')
    A(f'v_and_b32 v{t2}, 1, v{g}')
    A(f'v_lshl_add_u32 v{t0}, v{t2}, 2, v{t0}')
    A(f'v_and_b32 v{t3}, 3, v{vLANE}')
    A(f'v_lshlrev_b32 v{t3}, 3, v{t3}')
    if extra:
        A(f'v_lshl_add_u32 v{vEWA}, v{t1}, 6, v{t3}')
        A(f'v_add_u32 v{vEWA}, {LE}, v{vEWA}')
        A(f'v_lshl_add_u32 v{vEWA}, v{t2}, 5, v{vEWA}')
        A(f'v_xor_b32 v{vEWA + 1}, 32, v{vEWA}')
    A(f'v_lshl_add_u32 v{t1}, v{t1}, 8, v{t3}')
    A(f'v_add_u32 v{t1}, {LW}, v{t1}')
    A(f's_lshl_b32 s9, s{sWN}, 2')
    A(f'v_xor_b32 v{t0}, s9, v{t0}')
    for nb in range(4):
        A(f'v_xor_b32 v{t2}, {nb}, v{t0}')
        A(f'v_lshl_add_u32 v{vWA + nb}, v{t2}, 5, v{t1}')
    for r in range(EACC if extra else ACC, 256):
        A(f'v_mov_b32 v{r}, 0')
    stamp(A, 1)
    A('s_barrier')
    stamp(A, 2)
    cap = []
    kstep(cap.append, 2, ver, False)
    cap = cap[cap.index('s_barrier'):]
    for r in cap:
        if r.startswith('ds_read'): A(r)
    A('s_mov_b32 s11, 5')
    L = A.label('K1C')
    A('.p2align 6')
    A(f'{L}:')
    for st in range(3):
        kstep(A, st, ver, False)
    A('s_sub_u32 s11, s11, 1')
    A('s_cmp_lg_u32 s11, 0')
    A(f's_cbranch_scc1 {L}')
    kstep(A, 0, ver, True)
    stamp(A, 3)
    if ver == 'kv':
        k1_epi_kv(A)
    else:
        k1_epi_q(A, ver)
    stamp(A, 4)
    if STAMPS: A('s_waitcnt vmcnt(0)')
    stamp(A, 5)
    stamp_flush(A, 6, 0)
    A('s_endpgm')


def k1_epi_q(A, ver):
    vo, t0, t1 = 4, 5, 6
    A(f'v_and_b32 v{t0}, 15, v{vLANE}')
    A(f'v_lshrrev_b32 v{t1}, 5, v{vLANE}')
    A(f'v_lshl_add_u32 v{t0}, v{t1}, 5, v{t0}')
    A(f'v_lshlrev_b32 v{vo}, 4, v{t0}')
    A(f'v_bfe_u32 v{t1}, v{vLANE}, 4, 1')
    A(f'v_lshl_add_u32 v{vo}, v{t1}, 10, v{vo}')
    A('s_and_b32 s9, s7, 7')
    A('s_lshl_b32 s9, s9, 2')
    A(f's_lshl_b32 s10, s{sWN}, 1')
    A('s_add_u32 s9, s9, s10')
    A('s_lshl_b32 s9, s9, 6')
    A('s_lshl_b32 s10, s6, 3')
    A('s_add_u32 s9, s9, s10')
    A(f's_lshl_b32 s10, s{sWM}, 2')
    A('s_add_u32 s9, s9, s10')
    A('s_lshl_b32 s9, s9, 11')
    A('s_add_u32 s9, s9, s8')
    k = 0
    for jn in range(2):
        for mb in range(8):
            tmp = XF + (k % 8) * 4
            k += 1
            for nbl in range(2):
                for x in range(2):
                    A(cvtpk(tmp + 2 * nbl + x, acc(mb, 2 * jn + nbl) + 2 * x))
            if mb % 4 == 0:
                A(f's_add_u32 s10, s9, {jn * 131072 + (mb >> 2) * 4096}')
            A(f'buffer_store_dwordx4 {vr(tmp, 4)}, v{vo}, {sr(sWS, 4)}, s10 offen offset:{((mb >> 1) & 1) * 2048 + (mb & 1) * 256}')
    if ver in ('qk', 'qv'):
        tmp = WF
        nr = 8
        A(f's_lshl_b32 s9, s6, 15')
        A(f's_lshl_b32 s10, s{sT4}, 11')
        A('s_add_u32 s9, s9, s10')
        A(f's_add_u32 s9, s9, {KV + (16384 if ver == "qv" else 0)}')
        if ver == 'qk':
            vk = 7
            A(f'v_and_b32 v{t0}, 4, v{vLANE}')
            A(f'v_lshlrev_b32 v{t0}, 2, v{t0}')
            A(f'v_and_b32 v{t1}, 8, v{vLANE}')
            A(f'v_lshrrev_b32 v{t1}, 1, v{t1}')
            A(f'v_or_b32 v{t0}, v{t0}, v{t1}')
            A(f'v_and_b32 v{t1}, 3, v{vLANE}')
            A(f'v_or_b32 v{t0}, v{t0}, v{t1}')
            A(f'v_and_b32 v{t1}, 32, v{vLANE}')
            A(f'v_or_b32 v{t0}, v{t0}, v{t1}')
            A(f'v_lshlrev_b32 v{vk}, 4, v{t0}')
            A(f'v_bfe_u32 v{t1}, v{vLANE}, 4, 1')
            A(f'v_lshl_add_u32 v{vk}, v{t1}, 10, v{vk}')
            A(f's_mov_b32 s10, {f32bits(KSCALE)}')
            for r in range(16):
                A(f'v_mul_f32 v{EACC + r}, s10, v{EACC + r}')
            for mbl in range(2):
                A(f'v_mul_f32 v{nr + mbl}, v{eacc(mbl, 0)}, v{eacc(mbl, 0)}')
                for r in range(1, 8):
                    A(f'v_fmac_f32 v{nr + mbl}, v{eacc(mbl, 0) + r}, v{eacc(mbl, 0) + r}')
            A(f'v_permlane16_swap_b32 v{nr}, v{nr + 1}')
            A(f'v_add_f32 v{nr}, v{nr}, v{nr + 1}')
            A(f'v_mov_b32 v{nr + 1}, v{nr}')
            A(f'v_permlane32_swap_b32 v{nr}, v{nr + 1}')
            A(f'v_add_f32 v{nr}, v{nr}, v{nr + 1}')
            for mbl in range(2):
                for nbl in range(2):
                    for x in range(2):
                        A(cvtpk(tmp + 4 * mbl + 2 * nbl + x, eacc(mbl, nbl) + 2 * x))
                A(f'buffer_store_dwordx4 {vr(tmp + 4 * mbl, 4)}, v{vk}, {sr(sWS, 4)}, s9 offen offset:{mbl * 128}')
        else:
            A(f'v_max3_f32 v{nr}, |v{EACC}|, |v{EACC + 1}|, |v{EACC + 2}|')
            for r in range(3, 15, 2):
                A(f'v_max3_f32 v{nr}, v{nr}, |v{EACC + r}|, |v{EACC + r + 1}|')
            A(f'v_max_f32 v{nr}, v{nr}, |v{EACC + 15}|')
            for nbl in range(2):
                for mbl in range(2):
                    for x in range(2):
                        A(cvtpk(tmp + 4 * nbl + 2 * mbl + x, eacc(mbl, nbl) + 2 * x))
                A(f'buffer_store_dwordx4 {vr(tmp + 4 * nbl, 4)}, v{vo}, {sr(sWS, 4)}, s9 offen offset:{nbl * 256}')
        dpp_max_reduce(A, nr)
        A('s_lshl_b32 s9, s6, 3')
        A(f's_add_u32 s9, s9, s{sT4}')
        A('s_lshl_b32 s9, s9, 2')
        A(f's_add_u32 s9, s9, {KN if ver == "qk" else VM}')
        A(f'v_mov_b32 v{nr + 1}, 0')
        A('s_mov_b32 exec_lo, 0')
        A('s_mov_b32 exec_hi, 0x80000000')
        A(f'buffer_store_dword v{nr}, v{nr + 1}, {sr(sWS, 4)}, s9 offen')
        A('s_mov_b64 exec, -1')


def k1_epi_kv(A):
    KF = 48
    VF = 80
    PHI = 48
    PHT = 64
    WPH = 112
    PK = lambda i: ACC + 32 * i
    ET = ACC + 16
    KV0 = ACC + 48
    KV1 = ACC + 80
    Z = 16
    SEL = 24
    T = 28
    aW = 36
    aR = 40
    aP = 42
    vo = 43
    t0, t1, t2, t3 = 44, 45, 46, 47
    l31, hh = 4, 5
    A(f's_mov_b32 s{sC}, {LOG2E}')
    A(f's_mov_b32 s{sC + 1}, {LOG2E}')
    A(f'v_and_b32 v{l31}, 31, v{vLANE}')
    A(f'v_lshrrev_b32 v{hh}, 5, v{vLANE}')
    A(f'v_bfe_u32 v{t0}, v{vLANE}, 2, 2')
    A(f'v_lshl_add_u32 v{t1}, v{hh}, 3, v{t0}')
    A(f'v_bfe_u32 v{t2}, v{vLANE}, 4, 1')
    A(f'v_and_b32 v{t3}, 3, v{vLANE}')
    A(f'v_lshl_add_u32 v{t3}, v{t2}, 2, v{t3}')
    A(f'v_lshlrev_b32 v{aP}, 3, v{t3}')
    A(f'v_lshl_add_u32 v{aP}, v{t1}, 6, v{aP}')
    A(f's_lshl_b32 s9, s{sWN}, 11')
    A(f's_add_u32 s9, s9, {LE}')
    A(f'v_add_u32 v{aP}, s9, v{aP}')
    for t in range(2):
        for u in range(2):
            A(f'ds_read_b64_tr_b16 {vr(WPH + 4 * t + 2 * u, 2)}, v{aP} offset:{t * 256 + u * 1024}')
    A('s_lshl_b32 s9, s5, 14')
    A(f's_add_u32 s9, s9, {SCR}')
    A(f'v_lshrrev_b32 v{t2}, 1, v{t1}')
    A(f'v_xor_b32 v{t2}, v{t2}, v{t3}')
    A(f'v_lshlrev_b32 v{t1}, 6, v{t1}')
    A(f'v_add_u32 v{t1}, s9, v{t1}')
    A(f'v_lshl_add_u32 v{aR}, v{t2}, 3, v{t1}')
    A(f'v_xor_b32 v{t2}, 2, v{t2}')
    A(f'v_lshl_add_u32 v{aR + 1}, v{t2}, 3, v{t1}')
    A(f'v_add_u32 v{aR + 1}, 256, v{aR + 1}')
    A(f'v_bfe_u32 v{t0}, v{l31}, 1, 3')
    A(f'v_xor_b32 v{t0}, v{t0}, v{hh}')
    A(f'v_lshlrev_b32 v{t1}, 6, v{l31}')
    A(f'v_add_u32 v{t1}, s9, v{t1}')
    for a in range(4):
        A(f'v_xor_b32 v{t2}, {2 * a}, v{t0}')
        A(f'v_lshl_add_u32 v{aW + a}, v{t2}, 3, v{t1}')
    emit_selector(A, SEL, vLANE, t0, t1)
    A(f'v_lshlrev_b32 v{vo}, 4, v{vLANE}')
    for i in range(4):
        for mbl in range(2):
            for nbl in range(2):
                for x in range(2):
                    A(cvtpk(KF + i * 8 + 4 * mbl + 2 * nbl + x, acc(2 * i + mbl, nbl) + 2 * x))
        for mbl in range(2):
            for nbl in range(2):
                for x in range(2):
                    A(cvtpk(VF + i * 8 + 4 * nbl + 2 * mbl + x, acc(2 * i + mbl, 2 + nbl) + 2 * x))
        for x in range(4):
            A(f'v_permlane16_swap_b32 v{KF + i * 8 + x}, v{KF + i * 8 + 4 + x}')
        for x in range(4):
            A(f'v_permlane16_swap_b32 v{VF + i * 8 + x}, v{VF + i * 8 + 4 + x}')
        A(mfma32(PK(i), WPH, KF + i * 8, '0'))
        A(mfma32(PK(i), WPH + 4, KF + i * 8 + 4))
    Lsk = A.label('K1WP')
    A(f's_or_b32 s9, s6, s{sWM}')
    A('s_cmp_lg_u32 s9, 0')
    A(f's_cbranch_scc1 {Lsk}')
    A('s_lshl_b32 s9, s7, 1')
    A(f's_add_u32 s9, s9, s{sWN}')
    A('s_lshl_b32 s9, s9, 11')
    A(f's_add_u32 s9, s9, {WPF}')
    for t in range(2):
        A(f'buffer_store_dwordx4 {vr(WPH + 4 * t, 4)}, v{vo}, {sr(sWS, 4)}, s9 offen offset:{t * 1024}')
    A(f'{Lsk}:')
    for i in range(4):
        dual_softmax(A, PK(i), ET, PHI, T, sC)
        for fb in range(2):
            for a in range(4):
                A(f'ds_write_b64 v{aW + a}, {vr(PHI + fb * 8 + 2 * a, 2)} offset:{i * 4096 + fb * 2048}')
        for fb in range(2):
            for t in range(2):
                for u in range(2):
                    A(f'ds_read_b64_tr_b16 {vr(PHT + (fb * 2 + t) * 4 + 2 * u, 2)}, v{aR + t} offset:{i * 4096 + fb * 2048 + u * 1024}')
        for fb in range(2):
            kv = KV0 if fb == 0 else KV1
            for t in range(2):
                first = (i == 0 and t == 0)
                A(mfma32(kv, PHT + (fb * 2 + t) * 4, VF + i * 8 + 4 * t, '0' if first else None))
                A(mfma16(Z + 4 * fb, SEL, PHT + (fb * 2 + t) * 4, '0' if first else None))
    A('s_lshl_b32 s9, s7, 1')
    A(f's_add_u32 s9, s9, s{sWN}')
    A('s_lshl_b32 s9, s9, 4')
    A('s_lshl_b32 s10, s6, 1')
    A('s_add_u32 s9, s9, s10')
    A(f's_add_u32 s9, s9, s{sWM}')
    A('s_lshl_b32 s10, s9, 13')
    A(f's_add_u32 s10, s10, {KVP}')
    for fb in range(2):
        kv = KV0 if fb == 0 else KV1
        for q in range(4):
            A(f'buffer_store_dwordx4 {vr(kv + 4 * q, 4)}, v{vo}, {sr(sWS, 4)}, s10 offen offset:{q * 1024}')
        if fb == 0:
            A('s_add_u32 s10, s10, 4096')
    A('s_lshl_b32 s10, s9, 8')
    A(f's_add_u32 s10, s10, {ZP}')
    A(f'v_lshlrev_b32 v{t0}, 2, v{vLANE}')
    A('s_mov_b32 exec_hi, 0')
    for fb in range(2):
        A(f'buffer_store_dword v{Z + 4 * fb}, v{t0}, {sr(sWS, 4)}, s10 offen offset:{fb * 128}')
    A('s_mov_b64 exec, -1')


def k1(A):
    A('k1_kernel:')
    A('s_cmp_ge_u32 s2, 256')
    A('s_cbranch_scc0 K1_go')
    A('s_endpgm')
    A('K1_go:')
    stamp(A, 0)
    A('s_load_dwordx16 s[16:31], s[0:1], 0')
    A('s_load_dwordx2 s[32:33], s[0:1], 88')
    A('v_lshrrev_b32 v1, 6, v0')
    A(f'v_and_b32 v{vLANE}, 63, v0')
    A('v_readfirstlane_b32 s5, v1')
    A('s_and_b32 s3, s2, 7')
    A('s_lshr_b32 s4, s2, 3')
    A('s_and_b32 s9, s4, 3')
    A('s_lshr_b32 s10, s4, 2')
    A('s_and_b32 s6, s3, 1')
    A('s_lshl_b32 s6, s6, 2')
    A('s_add_u32 s6, s6, s9')
    A('s_lshr_b32 s7, s3, 1')
    A('s_lshl_b32 s7, s7, 3')
    A('s_add_u32 s7, s7, s10')
    A(f's_bfe_u32 s{sWM}, s5, 0x10001')
    A(f's_and_b32 s{sWN}, s5, 1')
    A('s_lshl_b32 s9, s7, 7')
    A('s_add_u32 s9, s9, 2048')
    A('s_and_b32 s10, s7, 7')
    A('s_lshl_b32 s10, s10, 8')
    A('s_cmp_lt_u32 s7, 16')
    A('s_cselect_b32 s14, s9, s10')
    A('s_cselect_b32 s15, 2048, 64')
    A('s_cselect_b32 s34, 64, 128')
    A('s_movk_i32 s35, 6144')
    A(f's_mov_b32 s{sW + 2}, 0x600000')
    A(f's_movk_i32 s{sE + 2}, 4096')
    A('s_waitcnt lgkmcnt(0)')
    A('s_cmp_ge_u32 s7, 24')
    A('s_cselect_b32 s35, 2048, s35')
    A(f's_cselect_b32 s8, {QB}, {QA}')
    A(f's_cselect_b32 s{sX}, s24, s16')
    A(f's_cselect_b32 s{sX + 1}, s25, s17')
    A(f's_cselect_b32 s{sW}, s26, s18')
    A(f's_cselect_b32 s{sW + 1}, s27, s19')
    A(f's_cselect_b32 s{sW + 2}, 0x200000, s{sW + 2}')
    A(f's_cselect_b32 s{sE + 2}, 65536, s{sE + 2}')
    A('s_lshl_b32 s9, s6, 19')
    A(f's_add_u32 s{sX}, s{sX}, s9')
    A(f's_addc_u32 s{sX + 1}, s{sX + 1}, 0')
    A(f's_and_b32 s{sX + 1}, s{sX + 1}, 0xffff')
    A(f's_mov_b32 s{sX + 2}, 0x80000')
    A(f's_mov_b32 s{sX + 3}, 0x00020000')
    A(f's_and_b32 s{sW + 1}, s{sW + 1}, 0xffff')
    A(f's_mov_b32 s{sW + 3}, 0x00020000')
    A('s_and_b32 s9, s7, 15')
    A('s_lshl_b32 s9, s9, 12')
    A('s_add_u32 s20, s20, s9')
    A('s_addc_u32 s21, s21, 0')
    A('s_bitcmp1_b32 s7, 0')
    A('s_cselect_b32 s28, s30, s28')
    A('s_cselect_b32 s29, s31, s29')
    A('s_cmp_ge_u32 s7, 24')
    A(f's_cselect_b32 s{sE}, s28, s20')
    A(f's_cselect_b32 s{sE + 1}, s29, s21')
    A(f's_and_b32 s{sE + 1}, s{sE + 1}, 0xffff')
    A(f's_mov_b32 s{sE + 3}, 0x00020000')
    make_srd(A, sWS, 's32', 's33', WS_SIZE)
    A('s_cmp_ge_u32 s5, 4')
    A('s_cbranch_scc1 K1_loader')
    A('s_cmp_lt_u32 s7, 16')
    A('s_cbranch_scc1 K1_kv')
    A('s_cmp_lt_u32 s7, 24')
    A('s_cbranch_scc1 K1_q')
    A('s_cmp_ge_u32 s5, 2')
    A('s_cbranch_scc1 K1_q')
    A('s_bitcmp1_b32 s7, 0')
    A('s_cbranch_scc1 K1_qv')
    k1_compute(A, 'qk')
    A('K1_qv:')
    k1_compute(A, 'qv')
    A('K1_q:')
    k1_compute(A, 'q')
    A('K1_kv:')
    k1_compute(A, 'kv')
    A('K1_loader:')
    A('s_cmp_ge_u32 s7, 24')
    A('s_cbranch_scc1 K1_loaderB')
    k1_loader(A, False)
    A('K1_loaderB:')
    k1_loader(A, True)
```

```python
import os
import gen_k1
from gen_k1 import (vr, sr, mfma32, mfma16, cvtpk, make_srd, emit_selector, dual_softmax, dpp_max_reduce,
                    stamp, stamp_flush, f32bits, QA, QB, KV, KVP, ZP, KN, VM, WPF, OA, OB, WS_SIZE, LOG2E)

KVF = 131072
ZF = KVF + 4096
K2_LDS = ZF + 128
K2_VGPR = 232
XCH = 0

sWS = 48
sC = 64
sPERM, sFLAG = 66, 67
sDG, sDL, sT, sT2 = 52, 53, 54, 55
vLANE = 2
vL16, vCur, vNext, vT0, vT1 = 3, 4, 5, 6, 7
vQ = 8
vK = 24
vV = 40
vS = 56
vP = 88
vO = 104
vL = 136
vSEL = 144
vPHI = 148
vKVP = 164
vZ = 228
vM = 230
PACK = os.environ.get('PACK', 'perm')


def pack(d, a):
    if PACK == 'perm':
        return f'v_perm_b32 v{d}, v{a + 1}, v{a}, s{sPERM}'
    return cvtpk(d, a)


def softmax_valu(x):
    S = vS + 16 * x; P = vP + 8 * x
    va = []
    for i in range(8):
        va += [f'v_exp_f32 v{S + 2 * i}, v{S + 2 * i}', f'v_exp_f32 v{S + 2 * i + 1}, v{S + 2 * i + 1}']
        if i > 0: va.append(pack(P + i - 1, S + 2 * (i - 1)))
    va.append(pack(P + 7, S + 14))
    return va


def qk(x, kb):
    S = vS + 16 * x
    return [mfma32(S, vK + 8 * kb, vQ + 8 * x, '0'), mfma32(S, vK + 8 * kb + 4, vQ + 8 * x + 4)]


def pv(x, vb):
    O = vO + 16 * x; P = vP + 8 * x; L = vL + 4 * x
    return ([mfma32(O, vV + 8 * vb, P), mfma32(O, vV + 8 * vb + 4, P + 4)],
            [mfma16(L, vSEL, P), mfma16(L, vSEL, P + 4)])


def phase(A, x, kb, vb, extra):
    q = qk(1 - x, kb)
    o, l = pv(1 - x, vb)
    mf = [q[0], o[0], q[1], l[0], o[1], l[1]]
    cnt = [5, 5, 5, 2, 5, 2]
    va = softmax_valu(x)
    k = 0
    extra = list(extra)
    for m, n in zip(mf, cnt):
        A(m)
        for _ in range(n):
            A(va[k]); k += 1
        if extra:
            for e in extra.pop(0): A(e)
    assert k == len(va) and not extra


def rdK(kb, addr, blk, t):
    return f'ds_read_b128 {vr(vK + 8 * kb + 4 * t, 4)}, v{addr} offset:{blk * 2048 + t * 1024}'


def rdV(vb, addr, blk, t):
    return f'ds_read_b128 {vr(vV + 8 * vb + 4 * t, 4)}, v{addr} offset:{16384 + blk * 2048 + t * 1024}'


def dma_chunk(A):
    for i in range(4):
        A(f's_add_u32 m0, s{sDL}, {i * 1024}')
        A(f's_add_u32 s{sT}, s{sDG}, {i * 1024}')
        A(f'buffer_load_dwordx4 v{vL16}, {sr(sWS, 4)}, s{sT} offen lds')
    A(f's_add_u32 s{sDG}, s{sDG}, 32768')
    A(f's_add_u32 s{sDL}, s{sDL}, 32768')
    A(f's_and_b32 s{sDL}, s{sDL}, 0x1ffff')


def k2(A):
    A('k2_kernel:')
    A('s_cmp_ge_u32 s2, 256')
    A('s_cbranch_scc0 K2_go')
    A('s_endpgm')
    A('K2_go:')
    stamp(A, 0)
    A('s_load_dwordx2 s[32:33], s[0:1], 88')
    A('v_lshrrev_b32 v1, 6, v0')
    A(f'v_and_b32 v{vLANE}, 63, v0')
    A('v_readfirstlane_b32 s5, v1')
    A(f'v_lshlrev_b32 v{vL16}, 4, v{vLANE}')
    A(f'v_lshlrev_b32 v{vT0}, 2, v{vLANE}')
    A('s_and_b32 s3, s2, 7')
    A('s_lshl_b32 s7, s3, 2')
    A('s_bfe_u32 s4, s2, 0x20003')
    A('s_add_u32 s7, s7, s4')
    A('s_lshr_b32 s6, s2, 5')
    A('s_lshl_b32 s8, s7, 6')
    A('s_lshl_b32 s9, s6, 3')
    A('s_add_u32 s8, s8, s9')
    A('s_add_u32 s9, s8, s5')
    A('s_lshl_b32 s9, s9, 11')
    A('s_xor_b32 s10, s5, 1')
    A('s_add_u32 s10, s8, s10')
    A('s_lshl_b32 s10, s10, 11')
    A(f's_add_u32 s12, s9, {QB}')
    A(f's_add_u32 s13, s10, {QB}')
    A('s_lshl_b32 s14, s7, 11')
    A(f's_add_u32 s14, s14, {WPF}')
    A(f's_mov_b32 s15, {KN}')
    A(f's_lshl_b32 s{sDL}, s5, 12')
    A(f's_add_u32 s{sDG}, s{sDL}, {KV}')
    A(f's_mov_b32 s{sC}, {LOG2E}')
    A(f's_mov_b32 s{sC + 1}, {LOG2E}')
    A(f's_mov_b32 s{sPERM}, 0x07060302')
    A('s_waitcnt lgkmcnt(0)')
    make_srd(A, sWS, 's32', 's33', WS_SIZE)
    QAF = vKVP
    WF = vKVP + 8
    T = vKVP + 16
    vKN, vVM = vKVP + 24, vKVP + 25
    q2 = vKVP + 26
    for t in range(2):
        A(f'buffer_load_dwordx4 {vr(QAF + 4 * t, 4)}, v{vL16}, {sr(sWS, 4)}, s9 offen offset:{t * 1024}')
        A(f'buffer_load_dwordx4 {vr(WF + 4 * t, 4)}, v{vL16}, {sr(sWS, 4)}, s14 offen offset:{t * 1024}')
    dma_chunk(A)
    for t in range(2):
        A(f'buffer_load_dwordx4 {vr(vQ + 4 * t, 4)}, v{vL16}, {sr(sWS, 4)}, s12 offen offset:{t * 1024}')
        A(f'buffer_load_dwordx4 {vr(vQ + 8 + 4 * t, 4)}, v{vL16}, {sr(sWS, 4)}, s13 offen offset:{t * 1024}')
    A(f'buffer_load_dword v{vKN}, v{vT0}, {sr(sWS, 4)}, s15 offen')
    A(f'buffer_load_dword v{vVM}, v{vT0}, {sr(sWS, 4)}, s15 offen offset:256')
    dma_chunk(A)
    A('s_and_b32 s3, s5, 1')
    A('s_lshl_b32 s3, s3, 13')
    A(f'v_add_u32 v{vCur}, s3, v{vL16}')
    A(f'v_add_u32 v{vNext}, 0x8000, v{vCur}')
    for r in list(range(vO, vO + 32)) + list(range(vL, vL + 8)) + list(range(vP + 8, vP + 16)) + list(range(vV + 8, vV + 16)):
        A(f'v_mov_b32 v{r}, 0')
    emit_selector(A, vSEL, vLANE, vT0, vT1)
    stamp(A, 1)
    A(mfma32(vS, WF, QAF, '0'))
    A(mfma32(vS, WF + 4, QAF + 4))
    dual_softmax(A, vS, vS + 16, vPHI, T, sC)
    A(f'v_mov_b32 v{q2}, 0')
    A(f'v_mov_b32 v{q2 + 1}, 0')
    for r in range(8):
        A(f'v_dot2c_f32_bf16 v{q2}, v{vQ + r}, v{vQ + r}')
        A(f'v_dot2c_f32_bf16 v{q2 + 1}, v{vQ + 8 + r}, v{vQ + 8 + r}')
    dpp_max_reduce(A, vKN)
    dpp_max_reduce(A, vVM)
    A(f'v_mov_b32 v{q2 + 2}, v{q2}')
    A(f'v_mov_b32 v{q2 + 3}, v{q2 + 1}')
    A(f'v_permlane32_swap_b32 v{q2}, v{q2 + 2}')
    A(f'v_permlane32_swap_b32 v{q2 + 1}, v{q2 + 3}')
    A(f'v_add_f32 v{q2}, v{q2}, v{q2 + 2}')
    A(f'v_add_f32 v{q2 + 1}, v{q2 + 1}, v{q2 + 3}')
    A(f'v_readlane_b32 s3, v{vKN}, 63')
    A(f'v_readlane_b32 s4, v{vVM}, 63')
    A(f'v_mul_f32 v{q2}, s3, v{q2}')
    A(f'v_mul_f32 v{q2 + 1}, s3, v{q2 + 1}')
    A(f'v_mov_b32 v{q2 + 2}, s4')
    A(f's_mov_b32 s3, {f32bits(3400.0)}')
    A(f'v_cmp_nge_f32 s[16:17], s3, v{q2}')
    A(f'v_cmp_nge_f32 s[18:19], s3, v{q2 + 1}')
    A(f's_mov_b32 s3, {f32bits(2.0 ** 50)}')
    A(f'v_cmp_nge_f32 s[20:21], s3, v{q2 + 2}')
    A(f's_mov_b32 s3, {f32bits(2.0 ** -30)}')
    A(f'v_cmp_nle_f32 s[22:23], s3, v{q2 + 2}')
    A('s_or_b64 s[16:17], s[16:17], s[18:19]')
    A('s_or_b64 s[20:21], s[20:21], s[22:23]')
    A('s_or_b64 s[16:17], s[16:17], s[20:21]')
    A(f's_or_b32 s{sFLAG}, s16, s17')
    dma_chunk(A)
    stamp(A, 2)
    A('s_waitcnt vmcnt(8)')
    A('s_barrier')
    stamp(A, 3)
    if gen_k1.STAMPS: A('s_waitcnt lgkmcnt(0)')
    A(rdK(0, vCur, 0, 0)); A(rdK(0, vCur, 0, 1))
    A(rdV(0, vCur, 0, 0)); A(rdV(0, vCur, 0, 1))
    A(rdK(1, vCur, 1, 0)); A(rdK(1, vCur, 1, 1))
    for m in qk(0, 0): A(m)
    A('s_mov_b32 s11, 0')
    A('s_nop 10')
    L = A.label('K2L')
    A('.p2align 6')
    A(f'{L}:')
    for j in range(4):
        phase(A, 0, j & 1, (j - 1) & 1, [])
        if j == 2:
            A('s_waitcnt vmcnt(4)')
            A('s_barrier')
            Ln = A.label('K2N'); Lk = A.label('K2K')
            A('s_cmp_lt_u32 s11, 5')
            A(f's_cbranch_scc0 {Lk}')
            dma_chunk(A)
            A(f'{Lk}:')
            A('s_cmp_eq_u32 s11, 5')
            A(f's_cbranch_scc0 {Ln}')
            A('s_lshl_b32 s3, s7, 17')
            A('s_lshl_b32 s4, s5, 10')
            A('s_add_u32 s3, s3, s4')
            A(f's_add_u32 s3, s3, {KVP}')
            for p in range(16):
                A(f'buffer_load_dwordx4 {vr(vKVP + 4 * p, 4)}, v{vL16}, {sr(sWS, 4)}, s3 offen')
                if p < 15: A('s_add_u32 s3, s3, 8192')
            A(f'v_lshrrev_b32 v{vT0}, 2, v{vLANE}')
            A(f'v_lshlrev_b32 v{vT0}, 8, v{vT0}')
            A(f'v_and_b32 v{vT1}, 3, v{vLANE}')
            A(f'v_lshl_add_u32 v{vT0}, v{vT1}, 3, v{vT0}')
            A('s_lshl_b32 s3, s7, 12')
            A('s_lshl_b32 s4, s5, 5')
            A('s_add_u32 s3, s3, s4')
            A(f's_add_u32 s3, s3, {ZP}')
            A(f'buffer_load_dwordx2 {vr(vZ, 2)}, v{vT0}, {sr(sWS, 4)}, s3 offen')
            A(f'{Ln}:')
        va, vblk = (vCur, j + 1) if j + 1 < 4 else (vNext, j + 1 - 4)
        ka, kblk = (vCur, j + 2) if j + 2 < 4 else (vNext, j + 2 - 4)
        ex = [[], [], [rdV((j + 1) & 1, va, vblk, 0)], [rdV((j + 1) & 1, va, vblk, 1)],
              [rdK(j & 1, ka, kblk, 0)], [rdK(j & 1, ka, kblk, 1)]]
        phase(A, 1, (j + 1) & 1, j & 1, ex)
    A(f'v_mov_b32 v{vCur}, v{vNext}')
    A(f'v_add_u32 v{vNext}, 0x8000, v{vNext}')
    A(f'v_and_b32 v{vNext}, 0x1ffff, v{vNext}')
    A('s_add_u32 s11, s11, 1')
    A('s_cmp_lg_u32 s11, 8')
    A(f's_cbranch_scc1 {L}')
    o, l = pv(1, 1)
    for m in (o[0], l[0], o[1], l[1]): A(m)
    stamp(A, 4)
    A(f's_cmp_lg_u32 s{sFLAG}, 0')
    A('s_cbranch_scc1 K2_fallback')
    A('K2_tail:')
    A('s_waitcnt vmcnt(0) lgkmcnt(0)')
    A('s_mul_i32 s3, s5, 4352')
    A(f'v_add_u32 v{vT0}, s3, v{vL16}')
    A('s_xor_b32 s4, s5, 1')
    A('s_mul_i32 s4, s4, 4352')
    A(f'v_add_u32 v{vT1}, s4, v{vL16}')
    n = 16
    while n > 1:
        n //= 2
        for p in range(n):
            for x in (0, 2):
                A(f'v_pk_add_f32 {vr(vKVP + 4 * p + x, 2)}, {vr(vKVP + 4 * p + x, 2)}, {vr(vKVP + 4 * (p + n) + x, 2)}')
    for qd in range(4):
        A(f'ds_write_b128 v{vT0}, {vr(vO + 16 + 4 * qd, 4)} offset:{XCH + qd * 1024}')
    A(f'v_lshlrev_b32 v{vK}, 2, v{vLANE}')
    A(f'v_add_u32 v{vK + 1}, s4, v{vK}')
    A(f'v_add_u32 v{vK}, s3, v{vK}')
    A(f'ds_write_b32 v{vK}, v{vL + 4} offset:{XCH + 4096}')
    A(cvtpk(vKVP + 4, vKVP))
    A(cvtpk(vKVP + 5, vKVP + 2))
    A('s_lshr_b32 s3, s5, 1')
    A('s_lshl_b32 s3, s3, 10')
    A('s_and_b32 s4, s5, 1')
    A('s_lshl_b32 s4, s4, 3')
    A('s_add_u32 s3, s3, s4')
    A(f's_add_u32 s3, s3, {KVF}')
    A(f'v_add_u32 v{vK + 2}, s3, v{vL16}')
    A(f'ds_write_b64 v{vK + 2}, {vr(vKVP + 4, 2)}')
    A(f'v_permlane16_swap_b32 v{vZ}, v{vZ + 1}')
    A(f'v_add_f32 v{vZ}, v{vZ}, v{vZ + 1}')
    A(f'v_add_f32_dpp v{vZ}, v{vZ}, v{vZ} row_shr:4 row_mask:0xf bank_mask:0xf')
    A(f'v_add_f32_dpp v{vZ}, v{vZ}, v{vZ} row_shr:8 row_mask:0xf bank_mask:0xf')
    A(f'v_mov_b32 v{vZ + 1}, v{vZ}')
    A(f'v_permlane32_swap_b32 v{vZ}, v{vZ + 1}')
    A(f'v_add_f32 v{vZ}, v{vZ}, v{vZ + 1}')
    A(cvtpk(vZ, vZ, vZ))
    A('s_lshr_b32 s3, s5, 1')
    A('s_lshl_b32 s3, s3, 5')
    A('s_add_u32 s3, s3, s4')
    A(f's_add_u32 s3, s3, {ZF}')
    A(f'v_and_b32 v{vK + 3}, 2, v{vLANE}')
    A(f'v_lshlrev_b32 v{vK + 3}, 3, v{vK + 3}')
    A(f'v_and_b32 v{vK + 4}, 1, v{vLANE}')
    A(f'v_lshl_add_u32 v{vK + 3}, v{vK + 4}, 2, v{vK + 3}')
    A(f'v_bfe_u32 v{vK + 4}, v{vLANE}, 4, 1')
    A(f'v_lshl_add_u32 v{vK + 3}, v{vK + 4}, 1, v{vK + 3}')
    A(f'v_add_u32 v{vK + 3}, s3, v{vK + 3}')
    A('s_mov_b32 exec_lo, 0xf000f000')
    A('s_mov_b32 exec_hi, 0')
    A(f'ds_write_b16 v{vK + 3}, v{vZ}')
    A('s_mov_b64 exec, -1')
    A(f'v_lshrrev_b32 v{vK + 4}, 5, v{vLANE}')
    A(f'v_lshlrev_b32 v{vK + 4}, 4, v{vK + 4}')
    A(f'v_add_u32 v{vK + 4}, {ZF}, v{vK + 4}')
    A(f'v_add_u32 v{vK + 5}, {KVF}, v{vL16}')
    A(f'v_and_b32 v{vK + 6}, 31, v{vLANE}')
    A(f'v_lshlrev_b32 v{vK + 6}, 11, v{vK + 6}')
    A(f'v_and_b32 v{vK + 7}, 32, v{vLANE}')
    A(f'v_add_u32 v{vK + 6}, v{vK + 6}, v{vK + 7}')
    A('s_lshl_b32 s3, s6, 3')
    A('s_add_u32 s3, s3, s5')
    A('s_lshl_b32 s3, s3, 16')
    A('s_lshl_b32 s4, s7, 6')
    A('s_add_u32 s3, s3, s4')
    A(f's_add_u32 s4, s3, {OA}')
    A(f's_add_u32 s3, s3, {OB}')
    A('s_waitcnt lgkmcnt(0)')
    A('s_barrier')
    KF = vKVP + 8
    ZFr = vKVP + 24
    X = vS
    XL = vV
    NUM = vO + 16
    DEN = vS + 16
    for f in range(4):
        A(f'ds_read_b128 {vr(KF + 4 * f, 4)}, v{vK + 5} offset:{f * 1024}')
        A(f'ds_read_b128 {vr(ZFr + 4 * f, 4)}, v{vK + 4} offset:{f * 32}')
    A(f'ds_read_b32 v{XL}, v{vK + 1} offset:{XCH + 4096}')
    for qd in range(4):
        A(f'ds_read_b128 {vr(X + 4 * qd, 4)}, v{vT1} offset:{XCH + qd * 1024}')
    for f in range(4):
        A(mfma32(DEN, ZFr + 4 * f, vPHI + 4 * f, '0' if f == 0 else None))
        A(mfma32(NUM, KF + 4 * f, vPHI + 4 * f, '0' if f == 0 else None))
    A(f'v_add_f32 v{vL}, v{vL}, v{XL}')
    A(f'v_rcp_f32 v{vL}, v{vL}')
    for r in range(0, 16, 2):
        A(f'v_pk_add_f32 {vr(vO + r, 2)}, {vr(vO + r, 2)}, {vr(X + r, 2)}')
    for r in range(0, 16, 2):
        A(f'v_pk_mul_f32 {vr(vO + r, 2)}, {vr(vO + r, 2)}, {vr(vL, 2)} op_sel_hi:[1,0]')
    for r in range(0, 16, 2):
        A(cvtpk(vP + r // 2, vO + r))
    for x in range(2):
        A(f'buffer_store_dwordx4 {vr(vP + 4 * x, 4)}, v{vK + 6}, {sr(sWS, 4)}, s3 offen offset:{16 * x}')
    A(f'v_add_f32 v{DEN}, {f32bits(1e-6)}, v{DEN}')
    A(f'v_rcp_f32 v{DEN}, v{DEN}')
    for r in range(0, 16, 2):
        A(f'v_pk_mul_f32 {vr(NUM + r, 2)}, {vr(NUM + r, 2)}, {vr(DEN, 2)} op_sel_hi:[1,0]')
    for r in range(0, 16, 2):
        A(cvtpk(vP + 8 + r // 2, NUM + r))
    for x in range(2):
        A(f'buffer_store_dwordx4 {vr(vP + 8 + 4 * x, 4)}, v{vK + 6}, {sr(sWS, 4)}, s4 offen offset:{16 * x}')
    if gen_k1.STAMPS: A('s_waitcnt vmcnt(0)')
    stamp(A, 5)
    stamp_flush(A, 6, 1)
    A('s_endpgm')

    A('K2_fallback:')
    A('s_waitcnt vmcnt(0) lgkmcnt(0)')
    A(f'v_mov_b32 v{vM}, 0xff800000')
    A(f'v_mov_b32 v{vM + 1}, 0xff800000')
    A('s_mov_b32 s11, 0')
    L1 = A.label('K2F')
    A(f'{L1}:')
    A('s_lshr_b32 s3, s11, 3')
    A('s_lshl_b32 s3, s3, 15')
    A('s_and_b32 s4, s11, 7')
    A('s_lshl_b32 s4, s4, 11')
    A('s_add_u32 s3, s3, s4')
    A(f's_add_u32 s3, s3, {KV}')
    for t in range(2):
        A(f'buffer_load_dwordx4 {vr(vK + 4 * t, 4)}, v{vL16}, {sr(sWS, 4)}, s3 offen offset:{t * 1024}')
    for x in range(2):
        for m in qk(x, 0): A(m)
    for x in range(2):
        for r in range(0, 16, 2):
            A(f'v_max3_f32 v{vM + x}, v{vM + x}, v{vS + 16 * x + r}, v{vS + 16 * x + r + 1}')
    A('s_add_u32 s11, s11, 1')
    A('s_cmp_lg_u32 s11, 64')
    A(f's_cbranch_scc1 {L1}')
    for x in range(2):
        A(f'v_mov_b32 v{vT0}, v{vM + x}')
        A(f'v_permlane32_swap_b32 v{vM + x}, v{vT0}')
        A(f'v_max_f32 v{vM + x}, v{vM + x}, v{vT0}')
        A(f'v_add_f32 v{vM + x}, {f32bits(11.0)}, v{vM + x}')
    for r in list(range(vO, vO + 32)) + list(range(vL, vL + 8)):
        A(f'v_mov_b32 v{r}, 0')
    A('s_mov_b32 s11, 0')
    A('s_and_b32 s12, s5, 1')
    A('s_lshl_b32 s12, s12, 13')
    A(f's_add_u32 s12, s12, {KV}')
    L2 = A.label('K2G')
    A(f'{L2}:')
    A('s_lshr_b32 s3, s11, 2')
    A('s_lshl_b32 s3, s3, 15')
    A('s_and_b32 s4, s11, 3')
    A('s_lshl_b32 s4, s4, 11')
    A('s_add_u32 s3, s3, s4')
    A('s_add_u32 s3, s3, s12')
    A('s_add_u32 s4, s3, 16384')
    for t in range(2):
        A(f'buffer_load_dwordx4 {vr(vK + 4 * t, 4)}, v{vL16}, {sr(sWS, 4)}, s3 offen offset:{t * 1024}')
    for t in range(2):
        A(f'buffer_load_dwordx4 {vr(vV + 4 * t, 4)}, v{vL16}, {sr(sWS, 4)}, s4 offen offset:{t * 1024}')
    for x in range(2):
        for m in qk(x, 0): A(m)
    for x in range(2):
        for r in range(16):
            A(f'v_sub_f32 v{vS + 16 * x + r}, v{vS + 16 * x + r}, v{vM + x}')
        for v in softmax_valu(x): A(v)
    for x in range(2):
        o, l = pv(x, 0)
        for m in o + l: A(m)
    A('s_add_u32 s11, s11, 1')
    A('s_cmp_lg_u32 s11, 32')
    A(f's_cbranch_scc1 {L2}')
    A('s_nop 15')
    A('s_branch K2_tail')
```

```python
import os
import gen_k1
from gen_k1 import (vr, sr, mfma16, cvtpk, make_srd, stamp, stamp_flush, OA, OB, WS_SIZE)

NS = 5
STG = 32768
LWO = 16384
K3_LDS = NS * STG
K3_VGPR = 144
BPOS = int(os.environ.get('K3_BPOS', '3'))
ROT = int(os.environ.get('ROT3', os.environ.get('ROT', '0')))

sX, sW, sO, sWS = 36, 40, 44, 48
sL, sGX, sGW, sT, sD, sCnt = 52, 53, 54, 55, 56, 57
sWM, sWN = 12, 13
vLANE = 2
vXA = 4
vWA = 6
XF = 16
WF = 48
ACC = 80


def acc(mb, nb):
    return ACC + (mb * 4 + nb) * 4


def rdX(s, mb):
    return f'ds_read_b128 {vr(XF + 16 * s + 4 * mb, 4)}, v{vXA + s} offset:{mb * 2048}'


def rdW(s, nb, u):
    return f'ds_read_b64_tr_b16 {vr(WF + 16 * s + 4 * nb + 2 * u, 2)}, v{vWA + nb} offset:{s * 8192 + u * 2048}'


def reads(s):
    r = [rdW(s, 0, 0), rdW(s, 0, 1), rdX(s, 0), rdW(s, 1, 0), rdW(s, 1, 1), rdW(s, 2, 0), rdW(s, 2, 1),
         rdW(s, 3, 0), rdW(s, 3, 1), rdX(s, 1), rdX(s, 2), rdX(s, 3)]
    return r


def kstep(A):
    for s in range(2):
        rq = reads(1 - s)
        k = 0
        for mb in range(4):
            for nb in range(4):
                if s == 1 and k == 0:
                    A(f's_add_u32 s{sCnt}, s{sCnt}, 1')
                    A(f's_cmp_eq_u32 s{sCnt}, {NS}')
                    A(f's_cselect_b32 s{sD}, s15, {STG}')
                    A(f's_cselect_b32 s{sCnt}, 0, s{sCnt}')
                if s == 1 and k == BPOS:
                    A('s_waitcnt lgkmcnt(0)')
                    A('s_barrier')
                A(mfma16(acc(mb, nb), WF + 16 * s + 4 * nb, XF + 16 * s + 4 * mb))
                if s == 1 and k < BPOS:
                    for a in range(6):
                        if a * BPOS // 6 == k:
                            A(f'v_add_u32 v{vXA + a}, s{sD}, v{vXA + a}')
                elif rq:
                    A(rq.pop(0))
                k += 1
        for r in rq: A(r)


def k3_loader(A):
    n = 8
    vX0, vX1, vW = 4, 5, 6
    t0, t1, t2 = 10, 11, 12
    A('s_sub_u32 s5, s5, 4')
    A(f'v_lshrrev_b32 v{t0}, 3, v{vLANE}')
    A('s_lshl_b32 s9, s5, 5')
    A(f'v_add_u32 v{t0}, s9, v{t0}')
    A(f'v_lshlrev_b32 v{t0}, 11, v{t0}')
    A(f'v_lshrrev_b32 v{t1}, 4, v{vLANE}')
    A(f'v_and_b32 v{t2}, 7, v{vLANE}')
    A(f'v_xor_b32 v{t2}, v{t2}, v{t1}')
    A(f'v_lshl_add_u32 v{vX0}, v{t2}, 4, v{t0}')
    A(f'v_xor_b32 v{t2}, 4, v{t2}')
    A(f'v_lshl_add_u32 v{vX1}, v{t2}, 4, v{t0}')
    A('s_and_b32 s9, s5, 1')
    A('s_lshl_b32 s9, s9, 2')
    A(f'v_bfe_u32 v{t0}, v{vLANE}, 1, 3')
    A(f'v_xor_b32 v{t0}, v{t0}, v{t1}')
    A(f'v_xor_b32 v{t0}, s9, v{t0}')
    A('s_lshl_b32 s9, s5, 4')
    A(f'v_add_u32 v{t1}, s9, v{t1}')
    A(f'v_lshlrev_b32 v{vW}, 11, v{t1}')
    A(f'v_lshl_add_u32 v{vW}, v{t0}, 5, v{vW}')
    A(f'v_and_b32 v{t2}, 1, v{vLANE}')
    A(f'v_lshl_add_u32 v{vW}, v{t2}, 4, v{vW}')
    A(f's_lshl_b32 s{sL}, s5, 12')
    A(f's_mov_b32 s{sGX}, 0')
    A(f's_lshl_b32 s{sGW}, s7, 8')
    if ROT:
        A('s_and_b32 s3, s2, 7')
        A(f's_mul_i32 s{sCnt}, s3, {ROT}')
        A(f's_and_b32 s{sCnt}, s{sCnt}, 15')
        A(f's_lshl_b32 s{sGX}, s{sCnt}, 7')
        A(f's_lshl_b32 s{sT}, s{sCnt}, 17')
        A(f's_add_u32 s{sGW}, s{sGW}, s{sT}')

    def issue():
        for j in range(4):
            A(f's_add_u32 m0, s{sL}, {LWO + j * 1024}')
            A(f's_add_u32 s{sT}, s{sGW}, {j * 8192}')
            A(f'buffer_load_dwordx4 v{vW}, {sr(sW, 4)}, s{sT} offen lds')
            A(f's_add_u32 m0, s{sL}, {j * 1024}')
            A(f's_add_u32 s{sT}, s{sGX}, {j * 16384}')
            A(f'buffer_load_dwordx4 v{vX0 + (j & 1)}, {sr(sX, 4)}, s{sT} offen lds')
        A(f's_add_u32 s{sGX}, s{sGX}, 128')
        A(f's_add_u32 s{sGW}, s{sGW}, 131072')
        if ROT:
            A(f's_add_u32 s{sCnt}, s{sCnt}, 1')
            A(f's_cmp_eq_u32 s{sCnt}, 16')
            A(f's_cselect_b32 s{sT}, 2048, 0')
            A(f's_cselect_b32 s{sD}, 0x200000, 0')
            A(f's_sub_u32 s{sGX}, s{sGX}, s{sT}')
            A(f's_sub_u32 s{sGW}, s{sGW}, s{sD}')
        A(f's_add_u32 s{sL}, s{sL}, {STG}')
        A(f's_cmp_ge_u32 s{sL}, {NS * STG}')
        A(f's_cselect_b32 s{sT}, {NS * STG}, 0')
        A(f's_sub_u32 s{sL}, s{sL}, s{sT}')

    stamp(A, 1)
    issue(); issue()
    stamp(A, 2)
    A(f's_waitcnt vmcnt({n})')
    stamp(A, 3)
    A('s_barrier')
    issue(); issue()
    A(f's_waitcnt vmcnt({2 * n})')
    A('s_barrier')
    issue(); issue()
    A(f's_mov_b32 s11, {15 - NS}')
    L = A.label('K3LD')
    A(f'{L}:')
    A(f's_waitcnt vmcnt({(NS - 2) * n})')
    A('s_barrier')
    issue()
    A('s_sub_u32 s11, s11, 1')
    A('s_cmp_lg_u32 s11, 0')
    A(f's_cbranch_scc1 {L}')
    for i in range(NS - 2, -1, -1):
        A(f's_waitcnt vmcnt({i * n})')
        A('s_barrier')
    stamp(A, 4)
    A('s_barrier')
    stamp(A, 5)
    stamp_flush(A, 6, 2, waveadd=4)
    A('s_endpgm')


def k3_compute(A):
    t0, t1, t2, t3, r16, g = XF, XF + 1, XF + 2, XF + 3, XF + 4, XF + 5
    A(f'v_and_b32 v{r16}, 15, v{vLANE}')
    A(f'v_lshrrev_b32 v{g}, 4, v{vLANE}')
    A(f's_lshl_b32 s9, s{sWM}, 13')
    A(f'v_lshlrev_b32 v{t0}, 7, v{r16}')
    A(f'v_add_u32 v{t0}, s9, v{t0}')
    A(f'v_lshrrev_b32 v{t1}, 1, v{r16}')
    A(f'v_xor_b32 v{t1}, v{t1}, v{g}')
    A(f'v_lshl_add_u32 v{vXA}, v{t1}, 4, v{t0}')
    A(f'v_xor_b32 v{vXA + 1}, 64, v{vXA}')
    A(f'v_bfe_u32 v{t0}, v{vLANE}, 2, 2')
    A(f'v_and_b32 v{t2}, 1, v{g}')
    A(f'v_lshl_add_u32 v{t1}, v{t2}, 4, v{t0}')
    A(f'v_lshrrev_b32 v{t3}, 1, v{g}')
    A(f'v_lshl_add_u32 v{t1}, v{t3}, 2, v{t1}')
    A(f'v_lshl_add_u32 v{t0}, v{t2}, 2, v{t0}')
    A(f'v_and_b32 v{t3}, 3, v{vLANE}')
    A(f'v_lshlrev_b32 v{t3}, 3, v{t3}')
    A(f'v_lshl_add_u32 v{t1}, v{t1}, 8, v{t3}')
    A(f'v_add_u32 v{t1}, {LWO}, v{t1}')
    A(f's_lshl_b32 s9, s{sWN}, 2')
    A(f'v_xor_b32 v{t0}, s9, v{t0}')
    for nb in range(4):
        A(f'v_xor_b32 v{t2}, {nb}, v{t0}')
        A(f'v_lshl_add_u32 v{vWA + nb}, v{t2}, 5, v{t1}')
    vo = 10
    A(f'v_lshlrev_b32 v{vo}, 12, v{r16}')
    A(f'v_and_b32 v{t2}, 1, v{g}')
    A(f'v_lshl_add_u32 v{vo}, v{t2}, 5, v{vo}')
    A(f'v_lshrrev_b32 v{t2}, 1, v{g}')
    A(f'v_lshl_add_u32 v{vo}, v{t2}, 4, v{vo}')
    A('s_lshl_b32 s14, s6, 19')
    A(f's_lshl_b32 s9, s{sWM}, 18')
    A('s_add_u32 s14, s14, s9')
    A('s_lshl_b32 s9, s8, 11')
    A('s_add_u32 s14, s14, s9')
    A('s_lshl_b32 s9, s7, 8')
    A('s_add_u32 s14, s14, s9')
    A(f's_lshl_b32 s9, s{sWN}, 7')
    A('s_add_u32 s14, s14, s9')
    for r in range(ACC, ACC + 64):
        A(f'v_mov_b32 v{r}, 0')
    A(f's_mov_b32 s{sCnt}, 0')
    A(f's_mov_b32 s15, {(-(NS - 1) * STG) & 0xffffffff}')
    stamp(A, 1)
    A('s_barrier')
    stamp(A, 2)
    if gen_k1.STAMPS: A('s_waitcnt lgkmcnt(0)')
    for r in reads(0): A(r)
    A('s_mov_b32 s11, 16')
    L = A.label('K3C')
    A('.p2align 6')
    A(f'{L}:')
    kstep(A)
    A('s_sub_u32 s11, s11, 1')
    A('s_cmp_lg_u32 s11, 0')
    A(f's_cbranch_scc1 {L}')
    stamp(A, 3)
    A('s_waitcnt lgkmcnt(0)')
    k = 0
    for mb in range(4):
        for pr in range(2):
            tmp = XF + (k % 8) * 4
            k += 1
            for x in range(2):
                A(cvtpk(tmp + x, acc(mb, 2 * pr) + 2 * x))
                A(cvtpk(tmp + 2 + x, acc(mb, 2 * pr + 1) + 2 * x))
            for x in range(2):
                A(f'v_permlane16_swap_b32 v{tmp + x}, v{tmp + 2 + x}')
            A(f'buffer_store_dwordx4 {vr(tmp, 4)}, v{vo}, {sr(sO, 4)}, s14 offen offset:{pr * 64}')
        if mb < 3: A('s_add_u32 s14, s14, 65536')
    stamp(A, 4)
    if gen_k1.STAMPS: A('s_waitcnt vmcnt(0)')
    stamp(A, 5)
    stamp_flush(A, 6, 2)
    A('s_endpgm')


def k3(A):
    A('k3_kernel:')
    A('s_cmp_ge_u32 s2, 256')
    A('s_cbranch_scc0 K3_go')
    A('s_endpgm')
    A('K3_go:')
    stamp(A, 0)
    A('s_load_dwordx2 s[16:17], s[0:1], 24')
    A('s_load_dwordx4 s[20:23], s[0:1], 64')
    A('s_load_dwordx2 s[32:33], s[0:1], 88')
    A('v_lshrrev_b32 v1, 6, v0')
    A(f'v_and_b32 v{vLANE}, 63, v0')
    A('v_readfirstlane_b32 s5, v1')
    A('s_bfe_u32 s8, s2, 0x10002')
    A('s_and_b32 s6, s2, 3')
    A('s_lshl_b32 s6, s6, 2')
    A('s_bfe_u32 s9, s2, 0x20003')
    A('s_add_u32 s6, s6, s9')
    A('s_lshr_b32 s7, s2, 5')
    A(f's_bfe_u32 s{sWM}, s5, 0x10001')
    A(f's_and_b32 s{sWN}, s5, 1')
    A('s_lshl_b32 s9, s6, 18')
    A('s_lshl_b32 s10, s8, 22')
    A('s_add_u32 s9, s9, s10')
    A(f's_add_u32 s9, s9, {OA}')
    A('s_waitcnt lgkmcnt(0)')
    A('s_cmp_eq_u32 s8, 0')
    A('s_cselect_b32 s16, s16, s20')
    A('s_cselect_b32 s17, s17, s21')
    make_srd(A, sW, 's16', 's17', 0x200000)
    make_srd(A, sO, 's22', 's23', 0x800000)
    make_srd(A, sWS, 's32', 's33', WS_SIZE)
    A('s_add_u32 s32, s32, s9')
    A('s_addc_u32 s33, s33, 0')
    make_srd(A, sX, 's32', 's33', 0x40000)
    A('s_cmp_ge_u32 s5, 4')
    A('s_cbranch_scc1 K3_loader')
    k3_compute(A)
    A('K3_loader:')
    k3_loader(A)
```

```python
from asmlib import Asm

MB = 1 << 20
QA = 0
QB = 4 * MB
KV = 8 * MB
KVP = 9 * MB
ZP = 13 * MB
KN = 13 * MB + 256 * 1024
VM = KN + 256
WPF = 13 * MB + 512 * 1024
OA = 16 * MB
OB = 20 * MB
WS_SIZE = 0x10000000
LOG2E = 0x3fb8aa3b
KSCALE = 1.4426950408889634 / (32 ** 0.5)


def f32bits(x):
    import struct
    return struct.unpack('<I', struct.pack('<f', x))[0]


def vr(a, n=1):
    return f'v{a}' if n == 1 else f'v[{a}:{a + n - 1}]'


def sr(a, n=1):
    return f's{a}' if n == 1 else f's[{a}:{a + n - 1}]'


def mfma32(d, a, b, c=None):
    cs = vr(d, 16) if c is None else (c if isinstance(c, str) else vr(c, 16))
    return f'v_mfma_f32_32x32x16_bf16 {vr(d, 16)}, {vr(a, 4)}, {vr(b, 4)}, {cs}'


def mfma16(d, a, b, c=None):
    cs = vr(d, 4) if c is None else (c if isinstance(c, str) else vr(c, 4))
    return f'v_mfma_f32_16x16x32_bf16 {vr(d, 4)}, {vr(a, 4)}, {vr(b, 4)}, {cs}'


def cvtpk(d, a, b=None):
    b = a + 1 if b is None else b
    return f'v_cvt_pk_bf16_f32 v{d}, v{a}, v{b}'


def make_srd(A, s, lo, hi, size):
    A(f's_mov_b32 s{s}, {lo}')
    A(f's_and_b32 s{s + 1}, {hi}, 0xffff')
    A(f's_mov_b32 s{s + 2}, {size}')
    A(f's_mov_b32 s{s + 3}, 0x00020000')


def emit_selector(A, vsel, lane, t0, t1):
    A(f'v_lshrrev_b32 v{t0}, 4, v{lane}')
    A(f'v_lshrrev_b32 v{t1}, 2, v{lane}')
    A(f'v_xor_b32 v{t0}, v{t0}, v{t1}')
    A(f'v_and_b32 v{t0}, 1, v{t0}')
    A(f'v_cmp_eq_u32 vcc, 0, v{t0}')
    A(f'v_mov_b32 v{t1}, 0x3f803f80')
    A(f'v_cndmask_b32 v{vsel}, 0, v{t1}, vcc')
    for k in range(1, 4):
        A(f'v_mov_b32 v{vsel + k}, v{vsel}')


def dual_softmax(A, P, E, OUT, T, sC):
    mx, mn, t0, t1, sp, sn = T, T + 1, T + 2, T + 3, T + 4, T + 6
    A(f'v_max3_f32 v{mx}, v{P}, v{P + 1}, v{P + 2}')
    A(f'v_min3_f32 v{mn}, v{P}, v{P + 1}, v{P + 2}')
    for r in range(3, 15, 2):
        A(f'v_max3_f32 v{mx}, v{mx}, v{P + r}, v{P + r + 1}')
        A(f'v_min3_f32 v{mn}, v{mn}, v{P + r}, v{P + r + 1}')
    A(f'v_max_f32 v{mx}, v{mx}, v{P + 15}')
    A(f'v_min_f32 v{mn}, v{mn}, v{P + 15}')
    A(f'v_mov_b32 v{t0}, v{mx}')
    A(f'v_mov_b32 v{t1}, v{mn}')
    A(f'v_permlane32_swap_b32 v{mx}, v{t0}')
    A(f'v_permlane32_swap_b32 v{mn}, v{t1}')
    A(f'v_max_f32 v{mx}, v{mx}, v{t0}')
    A(f'v_min_f32 v{mn}, v{mn}, v{t1}')
    A(f'v_mul_f32 v{t0}, s{sC}, v{mx}')
    A(f'v_mul_f32 v{mx}, s{sC}, v{mn}')
    for r in range(0, 16, 2):
        A(f'v_pk_fma_f32 {vr(E + r, 2)}, {vr(P + r, 2)}, {sr(sC, 2)}, {vr(t0, 2)} op_sel_hi:[1,0,0] neg_lo:[0,0,1] neg_hi:[0,0,1]')
        A(f'v_pk_fma_f32 {vr(P + r, 2)}, {vr(P + r, 2)}, {sr(sC, 2)}, {vr(mx, 2)} op_sel_hi:[1,0,0] neg_lo:[1,0,0] neg_hi:[1,0,0]')
    for r in range(16):
        A(f'v_exp_f32 v{E + r}, v{E + r}')
        A(f'v_exp_f32 v{P + r}, v{P + r}')
    A(f'v_pk_add_f32 {vr(sp, 2)}, {vr(E, 2)}, {vr(E + 2, 2)}')
    A(f'v_pk_add_f32 {vr(sn, 2)}, {vr(P, 2)}, {vr(P + 2, 2)}')
    for r in range(4, 16, 2):
        A(f'v_pk_add_f32 {vr(sp, 2)}, {vr(sp, 2)}, {vr(E + r, 2)}')
        A(f'v_pk_add_f32 {vr(sn, 2)}, {vr(sn, 2)}, {vr(P + r, 2)}')
    A(f'v_add_f32 v{sp}, v{sp}, v{sp + 1}')
    A(f'v_add_f32 v{sn}, v{sn}, v{sn + 1}')
    A(f'v_mov_b32 v{sp + 1}, v{sp}')
    A(f'v_mov_b32 v{sn + 1}, v{sn}')
    A(f'v_permlane32_swap_b32 v{sp}, v{sp + 1}')
    A(f'v_permlane32_swap_b32 v{sn}, v{sn + 1}')
    A(f'v_add_f32 v{sp}, v{sp}, v{sp + 1}')
    A(f'v_add_f32 v{sn}, v{sn}, v{sn + 1}')
    A(f'v_rcp_f32 v{sp}, v{sp}')
    A(f'v_rcp_f32 v{sn}, v{sn}')
    for r in range(0, 16, 2):
        A(f'v_pk_mul_f32 {vr(E + r, 2)}, {vr(E + r, 2)}, {vr(sp, 2)} op_sel_hi:[1,0]')
        A(f'v_pk_mul_f32 {vr(P + r, 2)}, {vr(P + r, 2)}, {vr(sn, 2)} op_sel_hi:[1,0]')
    for r in range(0, 16, 2):
        A(cvtpk(OUT + r // 2, E + r))
        A(cvtpk(OUT + 8 + r // 2, P + r))


def dpp_max_reduce(A, v):
    for ctl in ('row_shr:1', 'row_shr:2', 'row_shr:4', 'row_shr:8', 'row_bcast:15 row_mask:0xa', 'row_bcast:31 row_mask:0xc'):
        A(f'v_max_f32_dpp v{v}, v{v}, v{v} {ctl}')


STAMPS = False
STAMP_BASE = 24 * MB


def stamp(A, i):
    if STAMPS == 3:
        A(f's_memrealtime s[{70 + 2 * i}:{71 + 2 * i}]')
        A(f's_memtime s[{82 + 2 * i}:{83 + 2 * i}]')
    elif STAMPS:
        A(f's_memrealtime s[{70 + 2 * i}:{71 + 2 * i}]' if STAMPS == 2 else f's_memtime s[{70 + 2 * i}:{71 + 2 * i}]')


def stamp_flush(A, n, kidx, swave='s5', waveadd=0, srd=48):
    if not STAMPS: return
    A('s_waitcnt lgkmcnt(0)')
    A('s_lshl_b32 s68, s2, 3')
    A(f's_add_u32 s68, s68, {swave}')
    A(f's_add_u32 s68, s68, {waveadd}')
    A('s_lshl_b32 s68, s68, 6')
    A(f's_add_u32 s68, s68, {STAMP_BASE + kidx * MB}')
    A('v_mov_b32 v1, 0')
    A('s_mov_b64 exec, 1')
    for i in range(n):
        A(f'v_mov_b32 v3, s{70 + 2 * i}')
        A(f'buffer_store_dword v3, v1, s[{srd}:{srd + 3}], s68 offen offset:{4 * i}')
        if STAMPS == 3:
            A(f'v_mov_b32 v3, s{82 + 2 * i}')
            A(f'buffer_store_dword v3, v1, s[{srd}:{srd + 3}], s68 offen offset:{32 + 4 * i}')
    A('s_mov_b64 exec, -1')


LX = 0
LW = 98304
LE = 147456
K1_LDS = 159744
SCR = 32768

sX, sW, sE, sWS = 36, 40, 44, 48
sLX, sLW, sLE, sGX, sGW, sGE, sT, sLDW4, sLDW64, sT2, sT3, sT4 = 52, 53, 54, 55, 56, 57, 58, 59, 60, 61, 62, 63
sC = 64
sK, sLDWK = 66, 67
import os
ROT = int(os.environ.get('ROT', '6'))
RR = int(os.environ.get('RR', '0'))
RC = int(os.environ.get('RC', '0'))
PF = int(os.environ.get('PF', '0'))
PFN = int(os.environ.get('PFN', '4'))
PFL = int(os.environ.get('PFL', '0'))
PFD = int(os.environ.get('PFD', '6'))
PFB = int(os.environ.get('PFB', '2'))
XP = os.environ.get('XP', '')
sWM, sWN = 12, 13
vLANE = 2
vXA = 4
vEXA = 10
vWA = 16
vEWA = 20
XF = 24
WF = 56
EXF = 88
EWF = 96
EACC = 112
ACC = 128


def acc(mb, nb):
    return ACC + (mb * 4 + nb) * 4


def eacc(mbl, nbl):
    return EACC + (mbl * 2 + nbl) * 4


def k1_loader(A, isB):
    n = 13 if isB else 12
    vX0, vX1, vW0, vW1, vE = 4, 5, 6, 7, 8
    t0, t1, t2, t3 = 10, 11, 12, 13
    A('s_sub_u32 s5, s5, 4')
    A(f'v_lshrrev_b32 v{t0}, 3, v{vLANE}')
    A('s_lshl_b32 s9, s5, 6')
    A(f'v_add_u32 v{t0}, s9, v{t0}')
    A(f'v_lshlrev_b32 v{t0}, 11, v{t0}')
    A(f'v_lshrrev_b32 v{t1}, 4, v{vLANE}')
    A(f'v_and_b32 v{t2}, 7, v{vLANE}')
    A(f'v_xor_b32 v{t2}, v{t2}, v{t1}')
    A(f'v_lshl_add_u32 v{vX0}, v{t2}, 4, v{t0}')
    A(f'v_xor_b32 v{t2}, 4, v{t2}')
    A(f'v_lshl_add_u32 v{vX1}, v{t2}, 4, v{t0}')
    for bit, vW in ((0, vW0), (1, vW1)):
        A(f'v_bfe_u32 v{t0}, v{vLANE}, 1, 3')
        A(f'v_xor_b32 v{t0}, v{t0}, v{t1}')
        if bit: A(f'v_xor_b32 v{t0}, 4, v{t0}')
        A(f'v_mul_lo_u32 v{vW}, v{t1}, s35')
        A(f'v_bfe_u32 v{t2}, v{t0}, 1, 1')
        A(f'v_mul_lo_u32 v{t2}, v{t2}, s15')
        A(f'v_add_u32 v{vW}, v{vW}, v{t2}')
        A(f'v_lshrrev_b32 v{t2}, 2, v{t0}')
        A(f'v_mul_lo_u32 v{t2}, v{t2}, s34')
        A(f'v_add_u32 v{vW}, v{vW}, v{t2}')
        A(f'v_and_b32 v{t2}, 1, v{t0}')
        A(f'v_lshl_add_u32 v{vW}, v{t2}, 5, v{vW}')
        A(f'v_and_b32 v{t2}, 1, v{vLANE}')
        A(f'v_lshl_add_u32 v{vW}, v{t2}, 4, v{vW}')
        A(f'v_add_u32 v{vW}, s14, v{vW}')
    if isB:
        A(f'v_lshlrev_b32 v{vE}, 4, v{vLANE}')
        A(f'v_and_b32 v{t2}, 32, v{vLANE}')
        A(f'v_xor_b32 v{vE}, v{vE}, v{t2}')
    else:
        A(f'v_lshlrev_b32 v{vE}, 4, v{vLANE}')
    A(f's_lshl_b32 s{sLX}, s5, 13')
    A(f's_lshl_b32 s{sLW}, s5, 12')
    A(f's_add_u32 s{sLW}, s{sLW}, {LW}')
    A(f's_lshl_b32 s{sLE}, s5, 10')
    A(f's_mov_b32 s{sGE}, s{sLE}')
    A(f's_add_u32 s{sLE}, s{sLE}, {LE}')
    A(f's_mov_b32 s{sGX}, 0')
    A(f's_lshl_b32 s{sLDW4}, s35, 2')
    A(f's_lshl_b32 s{sLDW64}, s35, 6')
    A(f's_lshl_b32 s{sGW}, s{sLDW4}, 2')
    A(f's_mul_i32 s{sGW}, s{sGW}, s5')
    if ROT:
        A(f's_mul_i32 s{sK}, s3, {ROT}')
        if RR:
            A(f's_and_b32 s{sT}, s6, 3')
            A(f's_mul_i32 s{sT}, s{sT}, {RR}')
            A(f's_add_u32 s{sK}, s{sK}, s{sT}')
        if RC:
            A(f's_and_b32 s{sT}, s7, 7')
            A(f's_mul_i32 s{sT}, s{sT}, {RC}')
            A(f's_add_u32 s{sK}, s{sK}, s{sT}')
        A(f's_and_b32 s{sK}, s{sK}, 15')
        A(f's_lshl_b32 s{sGX}, s{sK}, 7')
        A(f's_mul_i32 s{sT}, s{sK}, s{sLDW64}')
        A(f's_add_u32 s{sGW}, s{sGW}, s{sT}')
        A(f's_lshl_b32 s{sLDWK}, s35, 10')
        if isB:
            A(f's_lshl_b32 s{sT}, s{sK}, 12')
            A(f's_add_u32 s{sGE}, s{sGE}, s{sT}')
    if not isB:
        A(f's_mov_b32 m0, s{sLE}')
        A('s_nop 0')
        A(f'buffer_load_dwordx4 v{vE}, {sr(sE, 4)}, s{sGE} offen lds')

    def issue():
        order = [('x', 0), ('w', 0), ('x', 1), ('x', 2), ('w', 1), ('x', 3), ('x', 4), ('w', 2), ('x', 5), ('x', 6), ('w', 3), ('x', 7)]
        if 'd' in XP: order = []
        first_w = True
        for kind, j in order:
            if kind == 'x':
                A(f's_add_u32 m0, s{sLX}, {j * 1024}')
                A(f's_add_u32 s{sT}, s{sGX}, {j * 16384}')
                A(f'buffer_load_dwordx4 v{vX0 + (j & 1)}, {sr(sX, 4)}, s{sT} offen lds')
            else:
                A(f's_add_u32 m0, s{sLW}, {j * 1024}')
                if first_w:
                    A(f's_mov_b32 s{sT2}, s{sGW}')
                    first_w = False
                else:
                    A(f's_add_u32 s{sT2}, s{sT2}, s{sLDW4}')
                A(f'buffer_load_dwordx4 v{vW0 + (j >> 1)}, {sr(sW, 4)}, s{sT2} offen lds')
        if isB:
            A(f's_mov_b32 m0, s{sLE}')
            A('s_nop 0')
            A(f'buffer_load_dwordx4 v{vE}, {sr(sE, 4)}, s{sGE} offen lds')
            A(f's_add_u32 s{sGE}, s{sGE}, 4096')
        A(f's_add_u32 s{sGX}, s{sGX}, 128')
        A(f's_add_u32 s{sGW}, s{sGW}, s{sLDW64}')
        if ROT:
            A(f's_add_u32 s{sK}, s{sK}, 1')
            A(f's_cmp_eq_u32 s{sK}, 16')
            A(f's_cselect_b32 s{sT}, 2048, 0')
            A(f's_cselect_b32 s{sT2}, s{sLDWK}, 0')
            A(f's_cselect_b32 s{sT3}, 65536, 0')
            A(f's_sub_u32 s{sGX}, s{sGX}, s{sT}')
            A(f's_sub_u32 s{sGW}, s{sGW}, s{sT2}')
            if isB: A(f's_sub_u32 s{sGE}, s{sGE}, s{sT3}')
        A(f's_add_u32 s{sLX}, s{sLX}, 32768')
        A(f's_add_u32 s{sLW}, s{sLW}, 16384')
        A(f's_add_u32 s{sLE}, s{sLE}, 4096')
        A(f's_cmp_ge_u32 s{sLX}, {LW}')
        A(f's_cselect_b32 s{sT}, 98304, 0')
        A(f's_cselect_b32 s{sT2}, 49152, 0')
        A(f's_cselect_b32 s{sT3}, 12288, 0')
        A(f's_sub_u32 s{sLX}, s{sLX}, s{sT}')
        A(f's_sub_u32 s{sLW}, s{sLW}, s{sT2}')
        A(f's_sub_u32 s{sLE}, s{sLE}, s{sT3}')

    stamp(A, 1)
    for i_ in range(2):
        issue()
        if PF and i_ + 1 == PFB: A('s_barrier')
    stamp(A, 2)
    A(f's_waitcnt vmcnt({n})')
    stamp(A, 3)
    A('s_barrier')
    issue()
    A('s_mov_b32 s11, 13')
    L = A.label('K1LD')
    A(f'{L}:')
    A(f's_waitcnt vmcnt({n})')
    A('s_barrier')
    issue()
    A('s_sub_u32 s11, s11, 1')
    A('s_cmp_lg_u32 s11, 0')
    A(f's_cbranch_scc1 {L}')
    A(f's_waitcnt vmcnt({n})')
    A('s_barrier')
    A('s_waitcnt vmcnt(0)')
    stamp(A, 4)
    A('s_barrier')
    A('s_barrier')
    stamp(A, 5)
    stamp_flush(A, 6, 0, waveadd=4)
    A('s_endpgm')


def rdX(stage, s, mb):
    return f'ds_read_b128 {vr(XF + 4 * mb, 4)}, v{vXA + stage * 2 + s} offset:{mb * 2048}'


def rdW(stage, s, nb, u):
    return f'ds_read_b64_tr_b16 {vr(WF + s * 16 + 4 * nb + 2 * u, 2)}, v{vWA + nb} offset:{stage * 16384 + s * 8192 + u * 1024}'


def rdEX(stage, s, mbl):
    return f'ds_read_b128 {vr(EXF + 4 * mbl, 4)}, v{vEXA + stage * 2 + s} offset:{mbl * 2048}'


def rdEW(stage, s, nbl, u):
    return f'ds_read_b64_tr_b16 {vr(EWF + s * 8 + 4 * nbl + 2 * u, 2)}, v{vEWA + nbl} offset:{stage * 4096 + s * 2048 + u * 256}'


BPOS = 6


def all_reads(stage, s, extra):
    r = [rdX(stage, s, 0)]
    for nb in range(4):
        r += [rdW(stage, s, nb, 0), rdW(stage, s, nb, 1)]
    r += [rdX(stage, s, mb) for mb in range(1, 8)]
    if extra:
        for nbl in range(2):
            r += [rdEW(stage, s, nbl, 0), rdEW(stage, s, nbl, 1)]
        r += [rdEX(stage, s, 0), rdEX(stage, s, 1)]
    return r


def kstep(A, stage, ver, last):
    extra = ver in ('qk', 'qv')
    for s in range(2):
        mf = []
        for mb in range(8):
            for nb in range(4):
                x = XF + 4 * mb; w = WF + s * 16 + 4 * nb
                normal = (ver == 'kv' and nb >= 2)
                m = mfma16(acc(mb, nb), x, w) if normal else mfma16(acc(mb, nb), w, x)
                mf.append((m, ('x', mb) if nb == 3 else None))
        if extra:
            for mbl in range(2):
                for nbl in range(2):
                    x = EXF + 4 * mbl; w = EWF + s * 8 + 4 * nbl
                    m = mfma16(eacc(mbl, nbl), x, w) if ver == 'qv' else mfma16(eacc(mbl, nbl), w, x)
                    mf.append((m, ('e', mbl) if nbl == 1 else None))
        if s == 0:
            nst, ns = stage, 1
        else:
            nst, ns = (stage + 1) % 3, 0
        none = (s == 1 and last)
        wq = []
        if not none and 'r' not in XP and 'w' not in XP:
            for nb in range(4):
                wq += [rdW(nst, ns, nb, 0), rdW(nst, ns, nb, 1)]
            if extra:
                for nbl in range(2):
                    wq += [rdEW(nst, ns, nbl, 0), rdEW(nst, ns, nbl, 1)]
        xq = []
        for k, (m, fr) in enumerate(mf):
            if s == 1 and k == BPOS:
                A('s_waitcnt lgkmcnt(0)')
                A('s_barrier')
            if 'm' not in XP: A(m)
            if fr and not none and 'r' not in XP and 'x' not in XP:
                xq.append(rdX(nst, ns, fr[1]) if fr[0] == 'x' else rdEX(nst, ns, fr[1]))
            if s == 1 and k < BPOS: continue
            if xq:
                A(xq.pop(0))
            elif wq:
                A(wq.pop(0))
        for r in xq + wq: A(r)


def k1_compute(A, ver):
    extra = ver in ('qk', 'qv')
    t0, t1, t2, t3 = XF, XF + 1, XF + 2, XF + 3
    r16, g = XF + 4, XF + 5
    A(f'v_and_b32 v{r16}, 15, v{vLANE}')
    A(f'v_lshrrev_b32 v{g}, 4, v{vLANE}')
    A(f's_lshl_b32 s9, s{sWM}, 14')
    A(f'v_lshlrev_b32 v{t0}, 7, v{r16}')
    A(f'v_add_u32 v{t0}, s9, v{t0}')
    A(f'v_lshrrev_b32 v{t1}, 1, v{r16}')
    A(f'v_xor_b32 v{t1}, v{t1}, v{g}')
    for s in range(2):
        A(f'v_xor_b32 v{t2}, {4 * s}, v{t1}')
        A(f'v_lshl_add_u32 v{vXA + s}, v{t2}, 4, v{t0}')
        A(f'v_add_u32 v{vXA + 2 + s}, 0x8000, v{vXA + s}')
        A(f'v_add_u32 v{vXA + 4 + s}, 0x10000, v{vXA + s}')
    if extra:
        A('s_and_b32 s9, s7, 7')
        A('s_lshr_b32 s9, s9, 1')
        A('s_lshl_b32 s9, s9, 1')
        A('s_add_u32 s9, s9, s5')
        A(f's_mov_b32 s{sT4}, s9')
        A('s_lshl_b32 s9, s9, 12')
        for k in range(6):
            A(f'v_add_u32 v{vEXA + k}, s9, v{vXA + k}')
    A(f'v_bfe_u32 v{t0}, v{vLANE}, 2, 2')
    A(f'v_lshl_add_u32 v{t1}, v{g}, 3, v{t0}')
    A(f'v_and_b32 v{t2}, 1, v{g}')
    A(f'v_lshl_add_u32 v{t0}, v{t2}, 2, v{t0}')
    A(f'v_and_b32 v{t3}, 3, v{vLANE}')
    A(f'v_lshlrev_b32 v{t3}, 3, v{t3}')
    if extra:
        A(f'v_lshl_add_u32 v{vEWA}, v{t1}, 6, v{t3}')
        A(f'v_add_u32 v{vEWA}, {LE}, v{vEWA}')
        A(f'v_lshl_add_u32 v{vEWA}, v{t2}, 5, v{vEWA}')
        A(f'v_xor_b32 v{vEWA + 1}, 32, v{vEWA}')
    A(f'v_lshl_add_u32 v{t1}, v{t1}, 8, v{t3}')
    A(f'v_add_u32 v{t1}, {LW}, v{t1}')
    A(f's_lshl_b32 s9, s{sWN}, 2')
    A(f'v_xor_b32 v{t0}, s9, v{t0}')
    for nb in range(4):
        A(f'v_xor_b32 v{t2}, {nb}, v{t0}')
        A(f'v_lshl_add_u32 v{vWA + nb}, v{t2}, 5, v{t1}')
    for r in range(EACC if extra else ACC, 256):
        A(f'v_mov_b32 v{r}, 0')
    stamp(A, 1)
    if PF: k1_prefetch_issue(A)
    A('s_barrier')
    stamp(A, 2)
    cap = []
    kstep(cap.append, 2, ver, False)
    cap = cap[cap.index('s_barrier'):]
    for r in cap:
        if r.startswith('ds_read'): A(r)
    A('s_mov_b32 s11, 5')
    L = A.label('K1C')
    A('.p2align 6')
    A(f'{L}:')
    for st in range(3):
        if PF and PFL and st == PFL - 1:
            A('s_add_u32 s21, s21, 3')
            A(f's_add_u32 s22, s21, {PFD - 3}')
            A('s_and_b32 s22, s22, 15')
            A('s_mul_i32 s22, s22, s20')
            A(f'buffer_load_dword v3, v1, s[16:19], s22 offen')
        kstep(A, st, ver, False)
    A('s_sub_u32 s11, s11, 1')
    A('s_cmp_lg_u32 s11, 0')
    A(f's_cbranch_scc1 {L}')
    kstep(A, 0, ver, True)
    stamp(A, 3)
    if ver == 'kv':
        k1_epi_kv(A)
    else:
        k1_epi_q(A, ver)
    stamp(A, 4)
    if STAMPS: A('s_waitcnt vmcnt(0)')
    stamp(A, 5)
    stamp_flush(A, 6, 0)
    A('s_endpgm')


def k1_epi_q(A, ver):
    vo, t0, t1 = 4, 5, 6
    A(f'v_and_b32 v{t0}, 15, v{vLANE}')
    A(f'v_lshrrev_b32 v{t1}, 5, v{vLANE}')
    A(f'v_lshl_add_u32 v{t0}, v{t1}, 5, v{t0}')
    A(f'v_lshlrev_b32 v{vo}, 4, v{t0}')
    A(f'v_bfe_u32 v{t1}, v{vLANE}, 4, 1')
    A(f'v_lshl_add_u32 v{vo}, v{t1}, 10, v{vo}')
    A('s_and_b32 s9, s7, 7')
    A('s_lshl_b32 s9, s9, 2')
    A(f's_lshl_b32 s10, s{sWN}, 1')
    A('s_add_u32 s9, s9, s10')
    A('s_lshl_b32 s9, s9, 6')
    A('s_lshl_b32 s10, s6, 3')
    A('s_add_u32 s9, s9, s10')
    A(f's_lshl_b32 s10, s{sWM}, 2')
    A('s_add_u32 s9, s9, s10')
    A('s_lshl_b32 s9, s9, 11')
    A('s_add_u32 s9, s9, s8')
    k = 0
    for jn in range(2):
        for mb in range(8):
            tmp = XF + (k % 8) * 4
            k += 1
            for nbl in range(2):
                for x in range(2):
                    A(cvtpk(tmp + 2 * nbl + x, acc(mb, 2 * jn + nbl) + 2 * x))
            if mb % 4 == 0:
                A(f's_add_u32 s10, s9, {jn * 131072 + (mb >> 2) * 4096}')
            A(f'buffer_store_dwordx4 {vr(tmp, 4)}, v{vo}, {sr(sWS, 4)}, s10 offen offset:{((mb >> 1) & 1) * 2048 + (mb & 1) * 256}')
    if ver in ('qk', 'qv'):
        tmp = WF
        nr = 8
        A(f's_lshl_b32 s9, s6, 15')
        A(f's_lshl_b32 s10, s{sT4}, 11')
        A('s_add_u32 s9, s9, s10')
        A(f's_add_u32 s9, s9, {KV + (16384 if ver == "qv" else 0)}')
        if ver == 'qk':
            vk = 7
            A(f'v_and_b32 v{t0}, 4, v{vLANE}')
            A(f'v_lshlrev_b32 v{t0}, 2, v{t0}')
            A(f'v_and_b32 v{t1}, 8, v{vLANE}')
            A(f'v_lshrrev_b32 v{t1}, 1, v{t1}')
            A(f'v_or_b32 v{t0}, v{t0}, v{t1}')
            A(f'v_and_b32 v{t1}, 3, v{vLANE}')
            A(f'v_or_b32 v{t0}, v{t0}, v{t1}')
            A(f'v_and_b32 v{t1}, 32, v{vLANE}')
            A(f'v_or_b32 v{t0}, v{t0}, v{t1}')
            A(f'v_lshlrev_b32 v{vk}, 4, v{t0}')
            A(f'v_bfe_u32 v{t1}, v{vLANE}, 4, 1')
            A(f'v_lshl_add_u32 v{vk}, v{t1}, 10, v{vk}')
            A(f's_mov_b32 s10, {f32bits(KSCALE)}')
            for r in range(16):
                A(f'v_mul_f32 v{EACC + r}, s10, v{EACC + r}')
            for mbl in range(2):
                A(f'v_mul_f32 v{nr + mbl}, v{eacc(mbl, 0)}, v{eacc(mbl, 0)}')
                for r in range(1, 8):
                    A(f'v_fmac_f32 v{nr + mbl}, v{eacc(mbl, 0) + r}, v{eacc(mbl, 0) + r}')
            A(f'v_permlane16_swap_b32 v{nr}, v{nr + 1}')
            A(f'v_add_f32 v{nr}, v{nr}, v{nr + 1}')
            A(f'v_mov_b32 v{nr + 1}, v{nr}')
            A(f'v_permlane32_swap_b32 v{nr}, v{nr + 1}')
            A(f'v_add_f32 v{nr}, v{nr}, v{nr + 1}')
            for mbl in range(2):
                for nbl in range(2):
                    for x in range(2):
                        A(cvtpk(tmp + 4 * mbl + 2 * nbl + x, eacc(mbl, nbl) + 2 * x))
                A(f'buffer_store_dwordx4 {vr(tmp + 4 * mbl, 4)}, v{vk}, {sr(sWS, 4)}, s9 offen offset:{mbl * 128}')
        else:
            A(f'v_max3_f32 v{nr}, |v{EACC}|, |v{EACC + 1}|, |v{EACC + 2}|')
            for r in range(3, 15, 2):
                A(f'v_max3_f32 v{nr}, v{nr}, |v{EACC + r}|, |v{EACC + r + 1}|')
            A(f'v_max_f32 v{nr}, v{nr}, |v{EACC + 15}|')
            for nbl in range(2):
                for mbl in range(2):
                    for x in range(2):
                        A(cvtpk(tmp + 4 * nbl + 2 * mbl + x, eacc(mbl, nbl) + 2 * x))
                A(f'buffer_store_dwordx4 {vr(tmp + 4 * nbl, 4)}, v{vo}, {sr(sWS, 4)}, s9 offen offset:{nbl * 256}')
        dpp_max_reduce(A, nr)
        A('s_lshl_b32 s9, s6, 3')
        A(f's_add_u32 s9, s9, s{sT4}')
        A('s_lshl_b32 s9, s9, 2')
        A(f's_add_u32 s9, s9, {KN if ver == "qk" else VM}')
        A(f'v_mov_b32 v{nr + 1}, 0')
        A('s_mov_b32 exec_lo, 0')
        A('s_mov_b32 exec_hi, 0x80000000')
        A(f'buffer_store_dword v{nr}, v{nr + 1}, {sr(sWS, 4)}, s9 offen')
        A('s_mov_b64 exec, -1')


def k1_epi_kv(A):
    KF = 48
    VF = 80
    PHI = 48
    PHT = 64
    WPH = 112
    PK = lambda i: ACC + 32 * i
    ET = ACC + 16
    KV0 = ACC + 48
    KV1 = ACC + 80
    Z = 16
    SEL = 24
    T = 28
    aW = 36
    aR = 40
    aP = 42
    vo = 43
    t0, t1, t2, t3 = 44, 45, 46, 47
    l31, hh = 4, 5
    A(f's_mov_b32 s{sC}, {LOG2E}')
    A(f's_mov_b32 s{sC + 1}, {LOG2E}')
    A(f'v_and_b32 v{l31}, 31, v{vLANE}')
    A(f'v_lshrrev_b32 v{hh}, 5, v{vLANE}')
    A(f'v_bfe_u32 v{t0}, v{vLANE}, 2, 2')
    A(f'v_lshl_add_u32 v{t1}, v{hh}, 3, v{t0}')
    A(f'v_bfe_u32 v{t2}, v{vLANE}, 4, 1')
    A(f'v_and_b32 v{t3}, 3, v{vLANE}')
    A(f'v_lshl_add_u32 v{t3}, v{t2}, 2, v{t3}')
    A(f'v_lshlrev_b32 v{aP}, 3, v{t3}')
    A(f'v_lshl_add_u32 v{aP}, v{t1}, 6, v{aP}')
    A(f's_lshl_b32 s9, s{sWN}, 11')
    A(f's_add_u32 s9, s9, {LE}')
    A(f'v_add_u32 v{aP}, s9, v{aP}')
    for t in range(2):
        for u in range(2):
            A(f'ds_read_b64_tr_b16 {vr(WPH + 4 * t + 2 * u, 2)}, v{aP} offset:{t * 256 + u * 1024}')
    A('s_lshl_b32 s9, s5, 14')
    A(f's_add_u32 s9, s9, {SCR}')
    A(f'v_lshrrev_b32 v{t2}, 1, v{t1}')
    A(f'v_xor_b32 v{t2}, v{t2}, v{t3}')
    A(f'v_lshlrev_b32 v{t1}, 6, v{t1}')
    A(f'v_add_u32 v{t1}, s9, v{t1}')
    A(f'v_lshl_add_u32 v{aR}, v{t2}, 3, v{t1}')
    A(f'v_xor_b32 v{t2}, 2, v{t2}')
    A(f'v_lshl_add_u32 v{aR + 1}, v{t2}, 3, v{t1}')
    A(f'v_add_u32 v{aR + 1}, 256, v{aR + 1}')
    A(f'v_bfe_u32 v{t0}, v{l31}, 1, 3')
    A(f'v_xor_b32 v{t0}, v{t0}, v{hh}')
    A(f'v_lshlrev_b32 v{t1}, 6, v{l31}')
    A(f'v_add_u32 v{t1}, s9, v{t1}')
    for a in range(4):
        A(f'v_xor_b32 v{t2}, {2 * a}, v{t0}')
        A(f'v_lshl_add_u32 v{aW + a}, v{t2}, 3, v{t1}')
    emit_selector(A, SEL, vLANE, t0, t1)
    A(f'v_lshlrev_b32 v{vo}, 4, v{vLANE}')
    for i in range(4):
        for mbl in range(2):
            for nbl in range(2):
                for x in range(2):
                    A(cvtpk(KF + i * 8 + 4 * mbl + 2 * nbl + x, acc(2 * i + mbl, nbl) + 2 * x))
        for mbl in range(2):
            for nbl in range(2):
                for x in range(2):
                    A(cvtpk(VF + i * 8 + 4 * nbl + 2 * mbl + x, acc(2 * i + mbl, 2 + nbl) + 2 * x))
        for x in range(4):
            A(f'v_permlane16_swap_b32 v{KF + i * 8 + x}, v{KF + i * 8 + 4 + x}')
        for x in range(4):
            A(f'v_permlane16_swap_b32 v{VF + i * 8 + x}, v{VF + i * 8 + 4 + x}')
        A(mfma32(PK(i), WPH, KF + i * 8, '0'))
        A(mfma32(PK(i), WPH + 4, KF + i * 8 + 4))
    Lsk = A.label('K1WP')
    A(f's_or_b32 s9, s6, s{sWM}')
    A('s_cmp_lg_u32 s9, 0')
    A(f's_cbranch_scc1 {Lsk}')
    A('s_lshl_b32 s9, s7, 1')
    A(f's_add_u32 s9, s9, s{sWN}')
    A('s_lshl_b32 s9, s9, 11')
    A(f's_add_u32 s9, s9, {WPF}')
    for t in range(2):
        A(f'buffer_store_dwordx4 {vr(WPH + 4 * t, 4)}, v{vo}, {sr(sWS, 4)}, s9 offen offset:{t * 1024}')
    A(f'{Lsk}:')
    for i in range(4):
        dual_softmax(A, PK(i), ET, PHI, T, sC)
        for fb in range(2):
            for a in range(4):
                A(f'ds_write_b64 v{aW + a}, {vr(PHI + fb * 8 + 2 * a, 2)} offset:{i * 4096 + fb * 2048}')
        for fb in range(2):
            for t in range(2):
                for u in range(2):
                    A(f'ds_read_b64_tr_b16 {vr(PHT + (fb * 2 + t) * 4 + 2 * u, 2)}, v{aR + t} offset:{i * 4096 + fb * 2048 + u * 1024}')
        for fb in range(2):
            kv = KV0 if fb == 0 else KV1
            for t in range(2):
                first = (i == 0 and t == 0)
                A(mfma32(kv, PHT + (fb * 2 + t) * 4, VF + i * 8 + 4 * t, '0' if first else None))
                A(mfma16(Z + 4 * fb, SEL, PHT + (fb * 2 + t) * 4, '0' if first else None))
    A('s_lshl_b32 s9, s7, 1')
    A(f's_add_u32 s9, s9, s{sWN}')
    A('s_lshl_b32 s9, s9, 4')
    A('s_lshl_b32 s10, s6, 1')
    A('s_add_u32 s9, s9, s10')
    A(f's_add_u32 s9, s9, s{sWM}')
    A('s_lshl_b32 s10, s9, 13')
    A(f's_add_u32 s10, s10, {KVP}')
    for fb in range(2):
        kv = KV0 if fb == 0 else KV1
        for q in range(4):
            A(f'buffer_store_dwordx4 {vr(kv + 4 * q, 4)}, v{vo}, {sr(sWS, 4)}, s10 offen offset:{q * 1024}')
        if fb == 0:
            A('s_add_u32 s10, s10, 4096')
    A('s_lshl_b32 s10, s9, 8')
    A(f's_add_u32 s10, s10, {ZP}')
    A(f'v_lshlrev_b32 v{t0}, 2, v{vLANE}')
    A('s_mov_b32 exec_hi, 0')
    for fb in range(2):
        A(f'buffer_store_dword v{Z + 4 * fb}, v{t0}, {sr(sWS, 4)}, s10 offen offset:{fb * 128}')
    A('s_mov_b64 exec, -1')


def k1_prefetch(A):
    va, t0, t1 = 4, 5, 6
    Lw = A.label('K1PW'); Lg = A.label('K1PG')
    A('s_cmp_ge_u32 s4, 16')
    A(f's_cbranch_scc1 {Lw}')
    A('s_and_b32 s9, s6, 3')
    A('s_lshl_b32 s9, s9, 19')
    A(f's_sub_u32 s16, s{sX}, s9')
    A(f's_subb_u32 s17, s{sX + 1}, 0')
    A('s_and_b32 s17, s17, 0xffff')
    A('s_mov_b32 s18, 0x200000')
    A('s_mov_b32 s19, 0x00020000')
    A('s_lshl_b32 s9, s4, 6')
    A(f'v_add_u32 v{va}, s9, v{vLANE}')
    A(f'v_lshlrev_b32 v{va}, 11, v{va}')
    A('s_movk_i32 s20, 128')
    A(f's_branch {Lg}')
    A(f'{Lw}:')
    A(f's_mov_b32 s16, s{sW}')
    A(f's_mov_b32 s17, s{sW + 1}')
    A(f's_mov_b32 s18, s{sW + 2}')
    A('s_mov_b32 s19, 0x00020000')
    A('s_sub_u32 s9, s4, 16')
    A('s_lshl_b32 s9, s9, 2')
    A(f'v_lshrrev_b32 v{t0}, 4, v{vLANE}')
    A(f'v_add_u32 v{t0}, s9, v{t0}')
    A(f'v_mul_lo_u32 v{va}, v{t0}, s35')
    A('s_lshr_b32 s9, s7, 3')
    A('s_lshl_b32 s9, s9, 10')
    A('s_add_u32 s9, s9, 2048')
    A('s_cmp_lt_u32 s7, 16')
    A('s_cselect_b32 s9, s9, 0')
    A('s_cselect_b32 s10, 11, 10')
    A(f'v_and_b32 v{t0}, 7, v{vLANE}')
    A(f'v_lshl_add_u32 v{va}, v{t0}, 7, v{va}')
    A(f'v_bfe_u32 v{t0}, v{vLANE}, 3, 1')
    A(f'v_lshlrev_b32 v{t0}, s10, v{t0}')
    A(f'v_add3_u32 v{va}, v{va}, v{t0}, s9')
    A('s_lshl_b32 s20, s35, 6')
    A(f'{Lg}:')
    A(f's_mul_i32 s21, s3, {ROT}')
    A('s_add_u32 s21, s21, s5')
    A(f'v_mov_b32 v1, v{va}')


def k1_prefetch_issue(A):
    A('s_barrier')
    for j in range(PFN):
        A(f's_add_u32 s22, s21, {4 * j + PF - 1}')
        A('s_and_b32 s22, s22, 15')
        A('s_mul_i32 s22, s22, s20')
        A(f'buffer_load_dword v3, v1, s[16:19], s22 offen')


def k1(A):
    A('k1_kernel:')
    A('s_cmp_ge_u32 s2, 256')
    A('s_cbranch_scc0 K1_go')
    A('s_endpgm')
    A('K1_go:')
    stamp(A, 0)
    A('s_load_dwordx16 s[16:31], s[0:1], 0')
    A('s_load_dwordx2 s[32:33], s[0:1], 88')
    A('v_lshrrev_b32 v1, 6, v0')
    A(f'v_and_b32 v{vLANE}, 63, v0')
    A('v_readfirstlane_b32 s5, v1')
    A('s_and_b32 s3, s2, 7')
    A('s_lshr_b32 s4, s2, 3')
    A('s_and_b32 s9, s4, 3')
    A('s_lshr_b32 s10, s4, 2')
    A('s_and_b32 s6, s3, 1')
    A('s_lshl_b32 s6, s6, 2')
    A('s_add_u32 s6, s6, s9')
    A('s_lshr_b32 s7, s3, 1')
    A('s_lshl_b32 s7, s7, 3')
    A('s_add_u32 s7, s7, s10')
    A(f's_bfe_u32 s{sWM}, s5, 0x10001')
    A(f's_and_b32 s{sWN}, s5, 1')
    A('s_lshl_b32 s9, s7, 7')
    A('s_add_u32 s9, s9, 2048')
    A('s_and_b32 s10, s7, 7')
    A('s_lshl_b32 s10, s10, 8')
    A('s_cmp_lt_u32 s7, 16')
    A('s_cselect_b32 s14, s9, s10')
    A('s_cselect_b32 s15, 2048, 64')
    A('s_cselect_b32 s34, 64, 128')
    A('s_movk_i32 s35, 6144')
    A(f's_mov_b32 s{sW + 2}, 0x600000')
    A(f's_movk_i32 s{sE + 2}, 4096')
    A('s_waitcnt lgkmcnt(0)')
    A('s_cmp_ge_u32 s7, 24')
    A('s_cselect_b32 s35, 2048, s35')
    A(f's_cselect_b32 s8, {QB}, {QA}')
    A(f's_cselect_b32 s{sX}, s24, s16')
    A(f's_cselect_b32 s{sX + 1}, s25, s17')
    A(f's_cselect_b32 s{sW}, s26, s18')
    A(f's_cselect_b32 s{sW + 1}, s27, s19')
    A(f's_cselect_b32 s{sW + 2}, 0x200000, s{sW + 2}')
    A(f's_cselect_b32 s{sE + 2}, 65536, s{sE + 2}')
    A('s_lshl_b32 s9, s6, 19')
    A(f's_add_u32 s{sX}, s{sX}, s9')
    A(f's_addc_u32 s{sX + 1}, s{sX + 1}, 0')
    A(f's_and_b32 s{sX + 1}, s{sX + 1}, 0xffff')
    A(f's_mov_b32 s{sX + 2}, 0x80000')
    A(f's_mov_b32 s{sX + 3}, 0x00020000')
    A(f's_and_b32 s{sW + 1}, s{sW + 1}, 0xffff')
    A(f's_mov_b32 s{sW + 3}, 0x00020000')
    A('s_and_b32 s9, s7, 15')
    A('s_lshl_b32 s9, s9, 12')
    A('s_add_u32 s20, s20, s9')
    A('s_addc_u32 s21, s21, 0')
    A('s_bitcmp1_b32 s7, 0')
    A('s_cselect_b32 s28, s30, s28')
    A('s_cselect_b32 s29, s31, s29')
    A('s_cmp_ge_u32 s7, 24')
    A(f's_cselect_b32 s{sE}, s28, s20')
    A(f's_cselect_b32 s{sE + 1}, s29, s21')
    A(f's_and_b32 s{sE + 1}, s{sE + 1}, 0xffff')
    A(f's_mov_b32 s{sE + 3}, 0x00020000')
    make_srd(A, sWS, 's32', 's33', WS_SIZE)
    A('s_cmp_ge_u32 s5, 4')
    A('s_cbranch_scc1 K1_loader')
    if PF: k1_prefetch(A)
    A('s_cmp_lt_u32 s7, 16')
    A('s_cbranch_scc1 K1_kv')
    A('s_cmp_lt_u32 s7, 24')
    A('s_cbranch_scc1 K1_q')
    A('s_cmp_ge_u32 s5, 2')
    A('s_cbranch_scc1 K1_q')
    A('s_bitcmp1_b32 s7, 0')
    A('s_cbranch_scc1 K1_qv')
    k1_compute(A, 'qk')
    A('K1_qv:')
    k1_compute(A, 'qv')
    A('K1_q:')
    k1_compute(A, 'q')
    A('K1_kv:')
    k1_compute(A, 'kv')
    A('K1_loader:')
    A('s_cmp_ge_u32 s7, 24')
    A('s_cbranch_scc1 K1_loaderB')
    k1_loader(A, False)
    A('K1_loaderB:')
    k1_loader(A, True)
```

```python
import os
import gen_k1
from gen_k1 import (vr, sr, mfma16, cvtpk, make_srd, stamp, stamp_flush, OA, OB, WS_SIZE)

NS = 5
STG = 32768
LWO = 16384
K3_LDS = NS * STG
K3_VGPR = 144
BPOS = int(os.environ.get('K3_BPOS', '3'))
ROT = int(os.environ.get('ROT3', os.environ.get('ROT', '6')))
RR = int(os.environ.get('RR3', '8'))
RC = int(os.environ.get('RC3', '2'))
NL = int(os.environ.get('NL3', '4'))
K3_THREADS = 256 + 64 * NL
XP = os.environ.get('XP3', '')

sX, sW, sO, sWS = 36, 40, 44, 48
sL, sGX, sGW, sT, sD, sCnt = 52, 53, 54, 55, 56, 57
sWM, sWN = 12, 13
vLANE = 2
vXA = 4
vWA = 6
XF = 16
WF = 48
ACC = 80


def acc(mb, nb):
    return ACC + (mb * 4 + nb) * 4


def rdX(s, mb):
    return f'ds_read_b128 {vr(XF + 16 * s + 4 * mb, 4)}, v{vXA + s} offset:{mb * 2048}'


def rdW(s, nb, u):
    return f'ds_read_b64_tr_b16 {vr(WF + 16 * s + 4 * nb + 2 * u, 2)}, v{vWA + nb} offset:{s * 8192 + u * 2048}'


def reads(s):
    r = [rdW(s, 0, 0), rdW(s, 0, 1), rdX(s, 0), rdW(s, 1, 0), rdW(s, 1, 1), rdW(s, 2, 0), rdW(s, 2, 1),
         rdW(s, 3, 0), rdW(s, 3, 1), rdX(s, 1), rdX(s, 2), rdX(s, 3)]
    if 'x' in XP or 'r' in XP: r = [i for i in r if 'b128' not in i]
    if 'w' in XP or 'r' in XP: r = [i for i in r if 'tr_b16' not in i]
    if 'b' in XP:
        r = [i.replace('ds_read_b64_tr_b16', 'ds_read_b128').replace(f':{int(i.split(":")[1].split("]")[0])}]', f':{int(i.split(":")[1].split("]")[0]) + 2}]') if 'tr_b16' in i else i for i in r if not ('tr_b16' in i and int(i.split('offset:')[1]) % 4096)]
    return r


def kstep(A):
    for s in range(2):
        rq = reads(1 - s)
        k = 0
        for mb in range(4):
            for nb in range(4):
                if s == 1 and k == 0:
                    A(f's_add_u32 s{sCnt}, s{sCnt}, 1')
                    A(f's_cmp_eq_u32 s{sCnt}, {NS}')
                    A(f's_cselect_b32 s{sD}, s15, {STG}')
                    A(f's_cselect_b32 s{sCnt}, 0, s{sCnt}')
                if s == 1 and k == BPOS:
                    A('s_waitcnt lgkmcnt(0)')
                    A('s_barrier')
                if 'm' not in XP: A(mfma16(acc(mb, nb), WF + 16 * s + 4 * nb, XF + 16 * s + 4 * mb))
                if s == 1 and k < BPOS:
                    for a in range(6):
                        if a * BPOS // 6 == k:
                            A(f'v_add_u32 v{vXA + a}, s{sD}, v{vXA + a}')
                elif rq:
                    A(rq.pop(0))
                k += 1
        for r in rq: A(r)


def k3_loader(A):
    nj = 16 // NL
    n = 2 * nj
    vX0, vX1, vW = 4, 5, 6
    t0, t1, t2 = 10, 11, 12
    lg = {4: 0, 8: 1}[NL]
    A('s_sub_u32 s5, s5, 4')
    A(f'v_lshrrev_b32 v{t0}, 3, v{vLANE}')
    A(f's_lshl_b32 s9, s5, {5 - lg}')
    A(f'v_add_u32 v{t0}, s9, v{t0}')
    A(f'v_lshlrev_b32 v{t0}, 11, v{t0}')
    A(f'v_lshrrev_b32 v{t1}, 4, v{vLANE}')
    A(f'v_and_b32 v{t2}, 7, v{vLANE}')
    A(f'v_xor_b32 v{t2}, v{t2}, v{t1}')
    A(f'v_lshl_add_u32 v{vX0}, v{t2}, 4, v{t0}')
    A(f'v_xor_b32 v{t2}, 4, v{t2}')
    A(f'v_lshl_add_u32 v{vX1}, v{t2}, 4, v{t0}')
    A(f's_bfe_u32 s9, s5, {0x10000 + lg}')
    A('s_lshl_b32 s9, s9, 2')
    A(f'v_bfe_u32 v{t0}, v{vLANE}, 1, 3')
    A(f'v_xor_b32 v{t0}, v{t0}, v{t1}')
    A(f'v_xor_b32 v{t0}, s9, v{t0}')
    A(f's_lshl_b32 s9, s5, {4 - lg}')
    A(f'v_add_u32 v{t1}, s9, v{t1}')
    A(f'v_lshlrev_b32 v{vW}, 11, v{t1}')
    A(f'v_lshl_add_u32 v{vW}, v{t0}, 5, v{vW}')
    A(f'v_and_b32 v{t2}, 1, v{vLANE}')
    A(f'v_lshl_add_u32 v{vW}, v{t2}, 4, v{vW}')
    A(f's_lshl_b32 s{sL}, s5, {12 - lg}')
    A(f's_mov_b32 s{sGX}, 0')
    A(f's_lshl_b32 s{sGW}, s7, 8')
    if ROT:
        A('s_and_b32 s3, s2, 7')
        A(f's_mul_i32 s{sCnt}, s3, {ROT}')
        if RR:
            A(f's_and_b32 s{sT}, s6, 3')
            A(f's_mul_i32 s{sT}, s{sT}, {RR}')
            A(f's_add_u32 s{sCnt}, s{sCnt}, s{sT}')
        if RC:
            A(f's_mul_i32 s{sT}, s7, {RC}')
            A(f's_add_u32 s{sCnt}, s{sCnt}, s{sT}')
        A(f's_and_b32 s{sCnt}, s{sCnt}, 15')
        A(f's_lshl_b32 s{sGX}, s{sCnt}, 7')
        A(f's_lshl_b32 s{sT}, s{sCnt}, 17')
        A(f's_add_u32 s{sGW}, s{sGW}, s{sT}')

    def issue():
        for j in range(0 if 'd' in XP else nj):
            A(f's_add_u32 m0, s{sL}, {LWO + j * 1024}')
            A(f's_add_u32 s{sT}, s{sGW}, {j * 8192}')
            A(f'buffer_load_dwordx4 v{vW}, {sr(sW, 4)}, s{sT} offen lds')
            A(f's_add_u32 m0, s{sL}, {j * 1024}')
            A(f's_add_u32 s{sT}, s{sGX}, {j * 16384}')
            A(f'buffer_load_dwordx4 v{vX0 + (j & 1)}, {sr(sX, 4)}, s{sT} offen lds')
        A(f's_add_u32 s{sGX}, s{sGX}, 128')
        A(f's_add_u32 s{sGW}, s{sGW}, 131072')
        if ROT:
            A(f's_add_u32 s{sCnt}, s{sCnt}, 1')
            A(f's_cmp_eq_u32 s{sCnt}, 16')
            A(f's_cselect_b32 s{sT}, 2048, 0')
            A(f's_cselect_b32 s{sD}, 0x200000, 0')
            A(f's_sub_u32 s{sGX}, s{sGX}, s{sT}')
            A(f's_sub_u32 s{sGW}, s{sGW}, s{sD}')
        A(f's_add_u32 s{sL}, s{sL}, {STG}')
        A(f's_cmp_ge_u32 s{sL}, {NS * STG}')
        A(f's_cselect_b32 s{sT}, {NS * STG}, 0')
        A(f's_sub_u32 s{sL}, s{sL}, s{sT}')

    stamp(A, 1)
    issue(); issue()
    stamp(A, 2)
    A(f's_waitcnt vmcnt({n})')
    stamp(A, 3)
    A('s_barrier')
    issue(); issue()
    A(f's_waitcnt vmcnt({2 * n})')
    A('s_barrier')
    issue(); issue()
    A(f's_mov_b32 s11, {15 - NS}')
    L = A.label('K3LD')
    A(f'{L}:')
    A(f's_waitcnt vmcnt({(NS - 2) * n})')
    A('s_barrier')
    issue()
    A('s_sub_u32 s11, s11, 1')
    A('s_cmp_lg_u32 s11, 0')
    A(f's_cbranch_scc1 {L}')
    for i in range(NS - 2, -1, -1):
        A(f's_waitcnt vmcnt({i * n})')
        A('s_barrier')
    stamp(A, 4)
    A('s_barrier')
    stamp(A, 5)
    if NL > 4 and gen_k1.STAMPS:
        A('s_cmp_ge_u32 s5, 4')
        A('s_cbranch_scc1 K3_lend')
    stamp_flush(A, 6, 2, waveadd=4)
    A('K3_lend:')
    A('s_endpgm')


def k3_compute(A):
    t0, t1, t2, t3, r16, g = XF, XF + 1, XF + 2, XF + 3, XF + 4, XF + 5
    A(f'v_and_b32 v{r16}, 15, v{vLANE}')
    A(f'v_lshrrev_b32 v{g}, 4, v{vLANE}')
    A(f's_lshl_b32 s9, s{sWM}, 13')
    A(f'v_lshlrev_b32 v{t0}, 7, v{r16}')
    A(f'v_add_u32 v{t0}, s9, v{t0}')
    A(f'v_lshrrev_b32 v{t1}, 1, v{r16}')
    A(f'v_xor_b32 v{t1}, v{t1}, v{g}')
    A(f'v_lshl_add_u32 v{vXA}, v{t1}, 4, v{t0}')
    A(f'v_xor_b32 v{vXA + 1}, 64, v{vXA}')
    A(f'v_bfe_u32 v{t0}, v{vLANE}, 2, 2')
    A(f'v_and_b32 v{t2}, 1, v{g}')
    A(f'v_lshl_add_u32 v{t1}, v{t2}, 4, v{t0}')
    A(f'v_lshrrev_b32 v{t3}, 1, v{g}')
    A(f'v_lshl_add_u32 v{t1}, v{t3}, 2, v{t1}')
    A(f'v_lshl_add_u32 v{t0}, v{t2}, 2, v{t0}')
    A(f'v_and_b32 v{t3}, 3, v{vLANE}')
    A(f'v_lshlrev_b32 v{t3}, 3, v{t3}')
    A(f'v_lshl_add_u32 v{t1}, v{t1}, 8, v{t3}')
    A(f'v_add_u32 v{t1}, {LWO}, v{t1}')
    A(f's_lshl_b32 s9, s{sWN}, 2')
    A(f'v_xor_b32 v{t0}, s9, v{t0}')
    for nb in range(4):
        A(f'v_xor_b32 v{t2}, {nb}, v{t0}')
        A(f'v_lshl_add_u32 v{vWA + nb}, v{t2}, 5, v{t1}')
    vo = 10
    A(f'v_lshlrev_b32 v{vo}, 12, v{r16}')
    A(f'v_and_b32 v{t2}, 1, v{g}')
    A(f'v_lshl_add_u32 v{vo}, v{t2}, 5, v{vo}')
    A(f'v_lshrrev_b32 v{t2}, 1, v{g}')
    A(f'v_lshl_add_u32 v{vo}, v{t2}, 4, v{vo}')
    A('s_lshl_b32 s14, s6, 19')
    A(f's_lshl_b32 s9, s{sWM}, 18')
    A('s_add_u32 s14, s14, s9')
    A('s_lshl_b32 s9, s8, 11')
    A('s_add_u32 s14, s14, s9')
    A('s_lshl_b32 s9, s7, 8')
    A('s_add_u32 s14, s14, s9')
    A(f's_lshl_b32 s9, s{sWN}, 7')
    A('s_add_u32 s14, s14, s9')
    for r in range(ACC, ACC + 64):
        A(f'v_mov_b32 v{r}, 0')
    A(f's_mov_b32 s{sCnt}, 0')
    A(f's_mov_b32 s15, {(-(NS - 1) * STG) & 0xffffffff}')
    stamp(A, 1)
    A('s_barrier')
    stamp(A, 2)
    if gen_k1.STAMPS: A('s_waitcnt lgkmcnt(0)')
    for r in reads(0): A(r)
    A('s_mov_b32 s11, 16')
    L = A.label('K3C')
    A('.p2align 6')
    A(f'{L}:')
    kstep(A)
    A('s_sub_u32 s11, s11, 1')
    A('s_cmp_lg_u32 s11, 0')
    A(f's_cbranch_scc1 {L}')
    stamp(A, 3)
    A('s_waitcnt lgkmcnt(0)')
    k = 0
    for mb in range(4):
        for pr in range(2):
            tmp = XF + (k % 8) * 4
            k += 1
            for x in range(2):
                A(cvtpk(tmp + x, acc(mb, 2 * pr) + 2 * x))
                A(cvtpk(tmp + 2 + x, acc(mb, 2 * pr + 1) + 2 * x))
            for x in range(2):
                A(f'v_permlane16_swap_b32 v{tmp + x}, v{tmp + 2 + x}')
            A(f'buffer_store_dwordx4 {vr(tmp, 4)}, v{vo}, {sr(sO, 4)}, s14 offen offset:{pr * 64}')
        if mb < 3: A('s_add_u32 s14, s14, 65536')
    stamp(A, 4)
    if gen_k1.STAMPS: A('s_waitcnt vmcnt(0)')
    stamp(A, 5)
    stamp_flush(A, 6, 2)
    A('s_endpgm')


def k3(A):
    A('k3_kernel:')
    A('s_cmp_ge_u32 s2, 256')
    A('s_cbranch_scc0 K3_go')
    A('s_endpgm')
    A('K3_go:')
    stamp(A, 0)
    A('s_load_dwordx2 s[16:17], s[0:1], 24')
    A('s_load_dwordx4 s[20:23], s[0:1], 64')
    A('s_load_dwordx2 s[32:33], s[0:1], 88')
    A('v_lshrrev_b32 v1, 6, v0')
    A(f'v_and_b32 v{vLANE}, 63, v0')
    A('v_readfirstlane_b32 s5, v1')
    A('s_bfe_u32 s8, s2, 0x10002')
    A('s_and_b32 s6, s2, 3')
    A('s_lshl_b32 s6, s6, 2')
    A('s_bfe_u32 s9, s2, 0x20003')
    A('s_add_u32 s6, s6, s9')
    A('s_lshr_b32 s7, s2, 5')
    A(f's_bfe_u32 s{sWM}, s5, 0x10001')
    A(f's_and_b32 s{sWN}, s5, 1')
    A('s_lshl_b32 s9, s6, 18')
    A('s_lshl_b32 s10, s8, 22')
    A('s_add_u32 s9, s9, s10')
    A(f's_add_u32 s9, s9, {OA}')
    A('s_waitcnt lgkmcnt(0)')
    A('s_cmp_eq_u32 s8, 0')
    A('s_cselect_b32 s16, s16, s20')
    A('s_cselect_b32 s17, s17, s21')
    make_srd(A, sW, 's16', 's17', 0x200000)
    make_srd(A, sO, 's22', 's23', 0x800000)
    make_srd(A, sWS, 's32', 's33', WS_SIZE)
    A('s_add_u32 s32, s32, s9')
    A('s_addc_u32 s33, s33, 0')
    make_srd(A, sX, 's32', 's33', 0x40000)
    A('s_cmp_ge_u32 s5, 4')
    A('s_cbranch_scc1 K3_loader')
    k3_compute(A)
    A('K3_loader:')
    k3_loader(A)
```

```python
from asmlib import Asm

MB = 1 << 20
QA = 0
QB = 4 * MB
KV = 8 * MB
KVP = 9 * MB
ZP = 13 * MB
KN = 13 * MB + 256 * 1024
VM = KN + 256
WPF = 13 * MB + 512 * 1024
OA = 16 * MB
OB = 20 * MB
PHQ = 32 * MB
WS_SIZE = 0x10000000
LOG2E = 0x3fb8aa3b
KSCALE = 1.4426950408889634 / (32 ** 0.5)


def f32bits(x):
    import struct
    return struct.unpack('<I', struct.pack('<f', x))[0]


def vr(a, n=1):
    return f'v{a}' if n == 1 else f'v[{a}:{a + n - 1}]'


def sr(a, n=1):
    return f's{a}' if n == 1 else f's[{a}:{a + n - 1}]'


def mfma32(d, a, b, c=None):
    cs = vr(d, 16) if c is None else (c if isinstance(c, str) else vr(c, 16))
    return f'v_mfma_f32_32x32x16_bf16 {vr(d, 16)}, {vr(a, 4)}, {vr(b, 4)}, {cs}'


def mfma16(d, a, b, c=None):
    cs = vr(d, 4) if c is None else (c if isinstance(c, str) else vr(c, 4))
    return f'v_mfma_f32_16x16x32_bf16 {vr(d, 4)}, {vr(a, 4)}, {vr(b, 4)}, {cs}'


def cvtpk(d, a, b=None):
    b = a + 1 if b is None else b
    return f'v_cvt_pk_bf16_f32 v{d}, v{a}, v{b}'


def make_srd(A, s, lo, hi, size):
    A(f's_mov_b32 s{s}, {lo}')
    A(f's_and_b32 s{s + 1}, {hi}, 0xffff')
    A(f's_mov_b32 s{s + 2}, {size}')
    A(f's_mov_b32 s{s + 3}, 0x00020000')


def emit_selector(A, vsel, lane, t0, t1):
    A(f'v_lshrrev_b32 v{t0}, 4, v{lane}')
    A(f'v_lshrrev_b32 v{t1}, 2, v{lane}')
    A(f'v_xor_b32 v{t0}, v{t0}, v{t1}')
    A(f'v_and_b32 v{t0}, 1, v{t0}')
    A(f'v_cmp_eq_u32 vcc, 0, v{t0}')
    A(f'v_mov_b32 v{t1}, 0x3f803f80')
    A(f'v_cndmask_b32 v{vsel}, 0, v{t1}, vcc')
    for k in range(1, 4):
        A(f'v_mov_b32 v{vsel + k}, v{vsel}')


def dual_softmax(A, P, E, OUT, T, sC):
    mx, mn, t0, t1, sp, sn = T, T + 1, T + 2, T + 3, T + 4, T + 6
    A(f'v_max3_f32 v{mx}, v{P}, v{P + 1}, v{P + 2}')
    A(f'v_min3_f32 v{mn}, v{P}, v{P + 1}, v{P + 2}')
    for r in range(3, 15, 2):
        A(f'v_max3_f32 v{mx}, v{mx}, v{P + r}, v{P + r + 1}')
        A(f'v_min3_f32 v{mn}, v{mn}, v{P + r}, v{P + r + 1}')
    A(f'v_max_f32 v{mx}, v{mx}, v{P + 15}')
    A(f'v_min_f32 v{mn}, v{mn}, v{P + 15}')
    A(f'v_mov_b32 v{t0}, v{mx}')
    A(f'v_mov_b32 v{t1}, v{mn}')
    A(f'v_permlane32_swap_b32 v{mx}, v{t0}')
    A(f'v_permlane32_swap_b32 v{mn}, v{t1}')
    A(f'v_max_f32 v{mx}, v{mx}, v{t0}')
    A(f'v_min_f32 v{mn}, v{mn}, v{t1}')
    A(f'v_mul_f32 v{t0}, s{sC}, v{mx}')
    A(f'v_mul_f32 v{mx}, s{sC}, v{mn}')
    for r in range(0, 16, 2):
        A(f'v_pk_fma_f32 {vr(E + r, 2)}, {vr(P + r, 2)}, {sr(sC, 2)}, {vr(t0, 2)} op_sel_hi:[1,0,0] neg_lo:[0,0,1] neg_hi:[0,0,1]')
        A(f'v_pk_fma_f32 {vr(P + r, 2)}, {vr(P + r, 2)}, {sr(sC, 2)}, {vr(mx, 2)} op_sel_hi:[1,0,0] neg_lo:[1,0,0] neg_hi:[1,0,0]')
    for r in range(16):
        A(f'v_exp_f32 v{E + r}, v{E + r}')
        A(f'v_exp_f32 v{P + r}, v{P + r}')
    A(f'v_pk_add_f32 {vr(sp, 2)}, {vr(E, 2)}, {vr(E + 2, 2)}')
    A(f'v_pk_add_f32 {vr(sn, 2)}, {vr(P, 2)}, {vr(P + 2, 2)}')
    for r in range(4, 16, 2):
        A(f'v_pk_add_f32 {vr(sp, 2)}, {vr(sp, 2)}, {vr(E + r, 2)}')
        A(f'v_pk_add_f32 {vr(sn, 2)}, {vr(sn, 2)}, {vr(P + r, 2)}')
    A(f'v_add_f32 v{sp}, v{sp}, v{sp + 1}')
    A(f'v_add_f32 v{sn}, v{sn}, v{sn + 1}')
    A(f'v_mov_b32 v{sp + 1}, v{sp}')
    A(f'v_mov_b32 v{sn + 1}, v{sn}')
    A(f'v_permlane32_swap_b32 v{sp}, v{sp + 1}')
    A(f'v_permlane32_swap_b32 v{sn}, v{sn + 1}')
    A(f'v_add_f32 v{sp}, v{sp}, v{sp + 1}')
    A(f'v_add_f32 v{sn}, v{sn}, v{sn + 1}')
    A(f'v_rcp_f32 v{sp}, v{sp}')
    A(f'v_rcp_f32 v{sn}, v{sn}')
    for r in range(0, 16, 2):
        A(f'v_pk_mul_f32 {vr(E + r, 2)}, {vr(E + r, 2)}, {vr(sp, 2)} op_sel_hi:[1,0]')
        A(f'v_pk_mul_f32 {vr(P + r, 2)}, {vr(P + r, 2)}, {vr(sn, 2)} op_sel_hi:[1,0]')
    for r in range(0, 16, 2):
        A(cvtpk((E if OUT is None else OUT) + r // 2, E + r))
        A(cvtpk((P if OUT is None else OUT + 8) + r // 2, P + r))


def dpp_max_reduce(A, v):
    for ctl in ('row_shr:1', 'row_shr:2', 'row_shr:4', 'row_shr:8', 'row_bcast:15 row_mask:0xa', 'row_bcast:31 row_mask:0xc'):
        A(f'v_max_f32_dpp v{v}, v{v}, v{v} {ctl}')


STAMPS = False
STAMP_BASE = 24 * MB


def stamp(A, i):
    if STAMPS == 3:
        A(f's_memrealtime s[{70 + 2 * i}:{71 + 2 * i}]')
        A(f's_memtime s[{82 + 2 * i}:{83 + 2 * i}]')
    elif STAMPS:
        A(f's_memrealtime s[{70 + 2 * i}:{71 + 2 * i}]' if STAMPS == 2 else f's_memtime s[{70 + 2 * i}:{71 + 2 * i}]')


def stamp_flush(A, n, kidx, swave='s5', waveadd=0, srd=48):
    if not STAMPS: return
    A('s_waitcnt lgkmcnt(0)')
    A('s_lshl_b32 s68, s2, 3')
    A(f's_add_u32 s68, s68, {swave}')
    A(f's_add_u32 s68, s68, {waveadd}')
    A('s_lshl_b32 s68, s68, 6')
    A(f's_add_u32 s68, s68, {STAMP_BASE + kidx * MB}')
    A('v_mov_b32 v1, 0')
    A('s_mov_b64 exec, 1')
    for i in range(n):
        A(f'v_mov_b32 v3, s{70 + 2 * i}')
        A(f'buffer_store_dword v3, v1, s[{srd}:{srd + 3}], s68 offen offset:{4 * i}')
        if STAMPS == 3:
            A(f'v_mov_b32 v3, s{82 + 2 * i}')
            A(f'buffer_store_dword v3, v1, s[{srd}:{srd + 3}], s68 offen offset:{32 + 4 * i}')
    A('s_mov_b64 exec, -1')


LX = 0
LW = 98304
LE = 147456
K1_LDS = 159744
SCR = 32768

sX, sW, sE, sWS = 36, 40, 44, 48
sLX, sLW, sLE, sGX, sGW, sGE, sT, sLDW4, sLDW64, sT2, sT3, sT4 = 52, 53, 54, 55, 56, 57, 58, 59, 60, 61, 62, 63
sC = 64
sK, sLDWK = 66, 67
import os
ROT = int(os.environ.get('ROT', '6'))
RR = int(os.environ.get('RR', '0'))
RC = int(os.environ.get('RC', '0'))
PF = int(os.environ.get('PF', '0'))
PFN = int(os.environ.get('PFN', '4'))
PFL = int(os.environ.get('PFL', '0'))
PFD = int(os.environ.get('PFD', '6'))
PFB = int(os.environ.get('PFB', '2'))
XP = os.environ.get('XP', '')
sWM, sWN = 12, 13
vLANE = 2
vXA = 4
vEXA = 10
vWA = 16
vEWA = 20
XF = 24
WF = 56
EXF = 88
EWF = 96
EACC = 112
ACC = 128


def acc(mb, nb):
    return ACC + (mb * 4 + nb) * 4


def eacc(mbl, nbl):
    return EACC + (mbl * 2 + nbl) * 4


def k1_loader(A, isB):
    n = 13 if isB else 12
    vX0, vX1, vW0, vW1, vE = 4, 5, 6, 7, 8
    t0, t1, t2, t3 = 10, 11, 12, 13
    A('s_sub_u32 s5, s5, 4')
    A(f'v_lshrrev_b32 v{t0}, 3, v{vLANE}')
    A('s_lshl_b32 s9, s5, 6')
    A(f'v_add_u32 v{t0}, s9, v{t0}')
    A(f'v_lshlrev_b32 v{t0}, 11, v{t0}')
    A(f'v_lshrrev_b32 v{t1}, 4, v{vLANE}')
    A(f'v_and_b32 v{t2}, 7, v{vLANE}')
    A(f'v_xor_b32 v{t2}, v{t2}, v{t1}')
    A(f'v_lshl_add_u32 v{vX0}, v{t2}, 4, v{t0}')
    A(f'v_xor_b32 v{t2}, 4, v{t2}')
    A(f'v_lshl_add_u32 v{vX1}, v{t2}, 4, v{t0}')
    for bit, vW in ((0, vW0), (1, vW1)):
        A(f'v_bfe_u32 v{t0}, v{vLANE}, 1, 3')
        A(f'v_xor_b32 v{t0}, v{t0}, v{t1}')
        if bit: A(f'v_xor_b32 v{t0}, 4, v{t0}')
        A(f'v_mul_lo_u32 v{vW}, v{t1}, s35')
        A(f'v_bfe_u32 v{t2}, v{t0}, 1, 1')
        A(f'v_mul_lo_u32 v{t2}, v{t2}, s15')
        A(f'v_add_u32 v{vW}, v{vW}, v{t2}')
        A(f'v_lshrrev_b32 v{t2}, 2, v{t0}')
        A(f'v_mul_lo_u32 v{t2}, v{t2}, s34')
        A(f'v_add_u32 v{vW}, v{vW}, v{t2}')
        A(f'v_and_b32 v{t2}, 1, v{t0}')
        A(f'v_lshl_add_u32 v{vW}, v{t2}, 5, v{vW}')
        A(f'v_and_b32 v{t2}, 1, v{vLANE}')
        A(f'v_lshl_add_u32 v{vW}, v{t2}, 4, v{vW}')
        A(f'v_add_u32 v{vW}, s14, v{vW}')
    if isB:
        A(f'v_lshlrev_b32 v{vE}, 4, v{vLANE}')
        A(f'v_and_b32 v{t2}, 32, v{vLANE}')
        A(f'v_xor_b32 v{vE}, v{vE}, v{t2}')
    else:
        A(f'v_lshlrev_b32 v{vE}, 4, v{vLANE}')
    A(f's_lshl_b32 s{sLX}, s5, 13')
    A(f's_lshl_b32 s{sLW}, s5, 12')
    A(f's_add_u32 s{sLW}, s{sLW}, {LW}')
    A(f's_lshl_b32 s{sLE}, s5, 10')
    A(f's_mov_b32 s{sGE}, s{sLE}')
    A(f's_add_u32 s{sLE}, s{sLE}, {LE}')
    A(f's_mov_b32 s{sGX}, 0')
    A(f's_lshl_b32 s{sLDW4}, s35, 2')
    A(f's_lshl_b32 s{sLDW64}, s35, 6')
    A(f's_lshl_b32 s{sGW}, s{sLDW4}, 2')
    A(f's_mul_i32 s{sGW}, s{sGW}, s5')
    if ROT:
        A(f's_mul_i32 s{sK}, s3, {ROT}')
        if RR:
            A(f's_and_b32 s{sT}, s6, 3')
            A(f's_mul_i32 s{sT}, s{sT}, {RR}')
            A(f's_add_u32 s{sK}, s{sK}, s{sT}')
        if RC:
            A(f's_and_b32 s{sT}, s7, 7')
            A(f's_mul_i32 s{sT}, s{sT}, {RC}')
            A(f's_add_u32 s{sK}, s{sK}, s{sT}')
        A(f's_and_b32 s{sK}, s{sK}, 15')
        A(f's_lshl_b32 s{sGX}, s{sK}, 7')
        A(f's_mul_i32 s{sT}, s{sK}, s{sLDW64}')
        A(f's_add_u32 s{sGW}, s{sGW}, s{sT}')
        A(f's_lshl_b32 s{sLDWK}, s35, 10')
        if isB:
            A(f's_lshl_b32 s{sT}, s{sK}, 12')
            A(f's_add_u32 s{sGE}, s{sGE}, s{sT}')
    if not isB:
        A(f's_mov_b32 m0, s{sLE}')
        A('s_nop 0')
        A(f'buffer_load_dwordx4 v{vE}, {sr(sE, 4)}, s{sGE} offen lds')
        A(f's_add_u32 m0, s{sLE}, 4096')
        A(f's_add_u32 s{sGE}, s{sGE}, 4096')
        A(f'buffer_load_dwordx4 v{vE}, {sr(sE, 4)}, s{sGE} offen lds')

    def issue():
        order = [('x', 0), ('w', 0), ('x', 1), ('x', 2), ('w', 1), ('x', 3), ('x', 4), ('w', 2), ('x', 5), ('x', 6), ('w', 3), ('x', 7)]
        if 'd' in XP: order = []
        first_w = True
        for kind, j in order:
            if kind == 'x':
                A(f's_add_u32 m0, s{sLX}, {j * 1024}')
                A(f's_add_u32 s{sT}, s{sGX}, {j * 16384}')
                A(f'buffer_load_dwordx4 v{vX0 + (j & 1)}, {sr(sX, 4)}, s{sT} offen lds')
            else:
                A(f's_add_u32 m0, s{sLW}, {j * 1024}')
                if first_w:
                    A(f's_mov_b32 s{sT2}, s{sGW}')
                    first_w = False
                else:
                    A(f's_add_u32 s{sT2}, s{sT2}, s{sLDW4}')
                A(f'buffer_load_dwordx4 v{vW0 + (j >> 1)}, {sr(sW, 4)}, s{sT2} offen lds')
        if isB:
            A(f's_mov_b32 m0, s{sLE}')
            A('s_nop 0')
            A(f'buffer_load_dwordx4 v{vE}, {sr(sE, 4)}, s{sGE} offen lds')
            A(f's_add_u32 s{sGE}, s{sGE}, 4096')
        A(f's_add_u32 s{sGX}, s{sGX}, 128')
        A(f's_add_u32 s{sGW}, s{sGW}, s{sLDW64}')
        if ROT:
            A(f's_add_u32 s{sK}, s{sK}, 1')
            A(f's_cmp_eq_u32 s{sK}, 16')
            A(f's_cselect_b32 s{sT}, 2048, 0')
            A(f's_cselect_b32 s{sT2}, s{sLDWK}, 0')
            A(f's_cselect_b32 s{sT3}, 65536, 0')
            A(f's_sub_u32 s{sGX}, s{sGX}, s{sT}')
            A(f's_sub_u32 s{sGW}, s{sGW}, s{sT2}')
            if isB: A(f's_sub_u32 s{sGE}, s{sGE}, s{sT3}')
        A(f's_add_u32 s{sLX}, s{sLX}, 32768')
        A(f's_add_u32 s{sLW}, s{sLW}, 16384')
        A(f's_add_u32 s{sLE}, s{sLE}, 4096')
        A(f's_cmp_ge_u32 s{sLX}, {LW}')
        A(f's_cselect_b32 s{sT}, 98304, 0')
        A(f's_cselect_b32 s{sT2}, 49152, 0')
        A(f's_cselect_b32 s{sT3}, 12288, 0')
        A(f's_sub_u32 s{sLX}, s{sLX}, s{sT}')
        A(f's_sub_u32 s{sLW}, s{sLW}, s{sT2}')
        A(f's_sub_u32 s{sLE}, s{sLE}, s{sT3}')

    stamp(A, 1)
    for i_ in range(2):
        issue()
        if PF and i_ + 1 == PFB: A('s_barrier')
    stamp(A, 2)
    A(f's_waitcnt vmcnt({n})')
    stamp(A, 3)
    A('s_barrier')
    issue()
    A('s_mov_b32 s11, 13')
    L = A.label('K1LD')
    A(f'{L}:')
    A(f's_waitcnt vmcnt({n})')
    A('s_barrier')
    issue()
    A('s_sub_u32 s11, s11, 1')
    A('s_cmp_lg_u32 s11, 0')
    A(f's_cbranch_scc1 {L}')
    A(f's_waitcnt vmcnt({n})')
    A('s_barrier')
    A('s_waitcnt vmcnt(0)')
    stamp(A, 4)
    A('s_barrier')
    A('s_barrier')
    stamp(A, 5)
    stamp_flush(A, 6, 0, waveadd=4)
    A('s_endpgm')


def rdX(stage, s, mb):
    return f'ds_read_b128 {vr(XF + 4 * mb, 4)}, v{vXA + stage * 2 + s} offset:{mb * 2048}'


def rdW(stage, s, nb, u):
    return f'ds_read_b64_tr_b16 {vr(WF + s * 16 + 4 * nb + 2 * u, 2)}, v{vWA + nb} offset:{stage * 16384 + s * 8192 + u * 1024}'


def rdEX(stage, s, mbl):
    return f'ds_read_b128 {vr(EXF + 4 * mbl, 4)}, v{vEXA + stage * 2 + s} offset:{mbl * 2048}'


def rdEW(stage, s, nbl, u):
    return f'ds_read_b64_tr_b16 {vr(EWF + s * 8 + 4 * nbl + 2 * u, 2)}, v{vEWA + nbl} offset:{stage * 4096 + s * 2048 + u * 256}'


BPOS = 6


def all_reads(stage, s, extra):
    r = [rdX(stage, s, 0)]
    for nb in range(4):
        r += [rdW(stage, s, nb, 0), rdW(stage, s, nb, 1)]
    r += [rdX(stage, s, mb) for mb in range(1, 8)]
    if extra:
        for nbl in range(2):
            r += [rdEW(stage, s, nbl, 0), rdEW(stage, s, nbl, 1)]
        r += [rdEX(stage, s, 0), rdEX(stage, s, 1)]
    return r


def kstep(A, stage, ver, last):
    extra = ver in ('qk', 'qv')
    for s in range(2):
        mf = []
        for mb in range(8):
            for nb in range(4):
                x = XF + 4 * mb; w = WF + s * 16 + 4 * nb
                normal = (ver == 'kv' and nb >= 2)
                m = mfma16(acc(mb, nb), x, w) if normal else mfma16(acc(mb, nb), w, x)
                mf.append((m, ('x', mb) if nb == 3 else None))
        if extra:
            for mbl in range(2):
                for nbl in range(2):
                    x = EXF + 4 * mbl; w = EWF + s * 8 + 4 * nbl
                    m = mfma16(eacc(mbl, nbl), x, w) if ver == 'qv' else mfma16(eacc(mbl, nbl), w, x)
                    mf.append((m, ('e', mbl) if nbl == 1 else None))
        if s == 0:
            nst, ns = stage, 1
        else:
            nst, ns = (stage + 1) % 3, 0
        none = (s == 1 and last)
        wq = []
        if not none and 'r' not in XP and 'w' not in XP:
            for nb in range(4):
                wq += [rdW(nst, ns, nb, 0), rdW(nst, ns, nb, 1)]
            if extra:
                for nbl in range(2):
                    wq += [rdEW(nst, ns, nbl, 0), rdEW(nst, ns, nbl, 1)]
        xq = []
        for k, (m, fr) in enumerate(mf):
            if s == 1 and k == BPOS:
                A('s_waitcnt lgkmcnt(0)')
                A('s_barrier')
            if 'm' not in XP: A(m)
            if fr and not none and 'r' not in XP and 'x' not in XP:
                xq.append(rdX(nst, ns, fr[1]) if fr[0] == 'x' else rdEX(nst, ns, fr[1]))
            if s == 1 and k < BPOS: continue
            if xq:
                A(xq.pop(0))
            elif wq:
                A(wq.pop(0))
        for r in xq + wq: A(r)


def k1_compute(A, ver):
    extra = ver in ('qk', 'qv')
    t0, t1, t2, t3 = XF, XF + 1, XF + 2, XF + 3
    r16, g = XF + 4, XF + 5
    A(f'v_and_b32 v{r16}, 15, v{vLANE}')
    A(f'v_lshrrev_b32 v{g}, 4, v{vLANE}')
    A(f's_lshl_b32 s9, s{sWM}, 14')
    A(f'v_lshlrev_b32 v{t0}, 7, v{r16}')
    A(f'v_add_u32 v{t0}, s9, v{t0}')
    A(f'v_lshrrev_b32 v{t1}, 1, v{r16}')
    A(f'v_xor_b32 v{t1}, v{t1}, v{g}')
    for s in range(2):
        A(f'v_xor_b32 v{t2}, {4 * s}, v{t1}')
        A(f'v_lshl_add_u32 v{vXA + s}, v{t2}, 4, v{t0}')
        A(f'v_add_u32 v{vXA + 2 + s}, 0x8000, v{vXA + s}')
        A(f'v_add_u32 v{vXA + 4 + s}, 0x10000, v{vXA + s}')
    if extra:
        A('s_and_b32 s9, s7, 7')
        A('s_lshr_b32 s9, s9, 1')
        A('s_lshl_b32 s9, s9, 1')
        A('s_add_u32 s9, s9, s5')
        A(f's_mov_b32 s{sT4}, s9')
        A('s_lshl_b32 s9, s9, 12')
        for k in range(6):
            A(f'v_add_u32 v{vEXA + k}, s9, v{vXA + k}')
    A(f'v_bfe_u32 v{t0}, v{vLANE}, 2, 2')
    A(f'v_lshl_add_u32 v{t1}, v{g}, 3, v{t0}')
    A(f'v_and_b32 v{t2}, 1, v{g}')
    A(f'v_lshl_add_u32 v{t0}, v{t2}, 2, v{t0}')
    A(f'v_and_b32 v{t3}, 3, v{vLANE}')
    A(f'v_lshlrev_b32 v{t3}, 3, v{t3}')
    if extra:
        A(f'v_lshl_add_u32 v{vEWA}, v{t1}, 6, v{t3}')
        A(f'v_add_u32 v{vEWA}, {LE}, v{vEWA}')
        A(f'v_lshl_add_u32 v{vEWA}, v{t2}, 5, v{vEWA}')
        A(f'v_xor_b32 v{vEWA + 1}, 32, v{vEWA}')
    A(f'v_lshl_add_u32 v{t1}, v{t1}, 8, v{t3}')
    A(f'v_add_u32 v{t1}, {LW}, v{t1}')
    A(f's_lshl_b32 s9, s{sWN}, 2')
    A(f'v_xor_b32 v{t0}, s9, v{t0}')
    for nb in range(4):
        A(f'v_xor_b32 v{t2}, {nb}, v{t0}')
        A(f'v_lshl_add_u32 v{vWA + nb}, v{t2}, 5, v{t1}')
    for r in range(EACC if extra else ACC, 256):
        A(f'v_mov_b32 v{r}, 0')
    stamp(A, 1)
    if PF: k1_prefetch_issue(A)
    A('s_barrier')
    stamp(A, 2)
    cap = []
    kstep(cap.append, 2, ver, False)
    cap = cap[cap.index('s_barrier'):]
    for r in cap:
        if r.startswith('ds_read'): A(r)
    A('s_mov_b32 s11, 5')
    L = A.label('K1C')
    A('.p2align 6')
    A(f'{L}:')
    for st in range(3):
        if PF and PFL and st == PFL - 1:
            A('s_add_u32 s21, s21, 3')
            A(f's_add_u32 s22, s21, {PFD - 3}')
            A('s_and_b32 s22, s22, 15')
            A('s_mul_i32 s22, s22, s20')
            A(f'buffer_load_dword v3, v1, s[16:19], s22 offen')
        kstep(A, st, ver, False)
    A('s_sub_u32 s11, s11, 1')
    A('s_cmp_lg_u32 s11, 0')
    A(f's_cbranch_scc1 {L}')
    kstep(A, 0, ver, True)
    stamp(A, 3)
    def fin():
        stamp(A, 4)
        if STAMPS: A('s_waitcnt vmcnt(0)')
        stamp(A, 5)
        stamp_flush(A, 6, 0)
        A('s_endpgm')
    if ver == 'kv':
        k1_epi_kv(A)
    else:
        if ver == 'q':
            A('s_cmp_lt_u32 s7, 24')
            A('s_cbranch_scc1 K1_phi')
        k1_epi_q(A, ver)
    fin()
    if ver == 'q':
        A('K1_phi:')
        A('s_nop 15')
        if STAMPS: A('s_waitcnt lgkmcnt(0)')
        k1_epi_phi(A)
        fin()


def wph_addr(A, aP, hh, t0, t1, t2, t3, sh):
    A(f'v_bfe_u32 v{t0}, v{vLANE}, 2, 2')
    A(f'v_lshl_add_u32 v{t1}, v{hh}, 3, v{t0}')
    A(f'v_bfe_u32 v{t2}, v{vLANE}, 4, 1')
    A(f'v_and_b32 v{t3}, 3, v{vLANE}')
    A(f'v_lshl_add_u32 v{t3}, v{t2}, 2, v{t3}')
    A(f'v_lshlrev_b32 v{aP}, 3, v{t3}')
    A(f'v_lshl_add_u32 v{aP}, v{t1}, 6, v{aP}')
    A(f's_lshl_b32 s9, s{sWN}, {sh}')
    A(f's_add_u32 s9, s9, {LE}')
    A(f'v_add_u32 v{aP}, s9, v{aP}')


def k1_epi_phi(A):
    vo = 3
    T = (4, 12); KF = (52, 68); E = (20, 36, 52, 68); WPH = 100
    aP, hh, t0, t1, t2, t3 = 116, 117, 118, 119, 120, 121
    PK = lambda i, jn: ACC + 32 * i + 16 * jn
    A(f's_mov_b32 s{sC}, {LOG2E}')
    A(f's_mov_b32 s{sC + 1}, {LOG2E}')
    A(f'v_lshrrev_b32 v{hh}, 5, v{vLANE}')
    wph_addr(A, aP, hh, t0, t1, t2, t3, 12)
    for jn in range(2):
        for t in range(2):
            for u in range(2):
                A(f'ds_read_b64_tr_b16 {vr(WPH + 8 * jn + 4 * t + 2 * u, 2)}, v{aP} offset:{jn * 2048 + t * 256 + u * 1024}')
    A(f'v_lshlrev_b32 v{vo}, 4, v{vLANE}')
    A('s_and_b32 s9, s7, 7')
    A('s_lshl_b32 s9, s9, 2')
    A(f's_lshl_b32 s10, s{sWN}, 1')
    A('s_add_u32 s9, s9, s10')
    A('s_lshl_b32 s9, s9, 6')
    A('s_lshl_b32 s10, s6, 3')
    A('s_add_u32 s9, s9, s10')
    A(f's_lshl_b32 s10, s{sWM}, 2')
    A('s_add_u32 s9, s9, s10')
    A('s_lshl_b32 s9, s9, 12')
    A(f's_add_u32 s9, s9, {PHQ}')
    A('s_add_u32 s10, s9, 0x40000')
    for i in range(4):
        kf = KF[i & 1]
        for jn in range(2):
            for mbl in range(2):
                for nbl in range(2):
                    for x in range(2):
                        A(cvtpk(kf + 8 * jn + 4 * mbl + 2 * nbl + x, acc(2 * i + mbl, 2 * jn + nbl) + 2 * x))
        for jn in range(2):
            for x in range(4):
                A(f'v_permlane16_swap_b32 v{kf + 8 * jn + x}, v{kf + 8 * jn + 4 + x}')
        for t in range(2):
            for jn in range(2):
                A(mfma32(PK(i, jn), WPH + 8 * jn + 4 * t, kf + 8 * jn + 4 * t, '0' if t == 0 else None))
    pend = []
    for i in range(4):
        l = [[], []]
        for jn in range(2):
            e = E[2 * (i & 1) + jn]
            dual_softmax(l[jn].append, PK(i, jn), e, None, T[jn], sC)
        k = 0
        for a, b in zip(*l):
            A(a); A(b)
            k += 1
            if pend and k % 14 == 6: A(pend.pop(0))
        assert not pend
        for f in range(4):
            for jn in range(2):
                e = E[2 * (i & 1) + jn]
                src = (e if f < 2 else PK(i, jn)) + 4 * (f & 1)
                pend.append(f'buffer_store_dwordx4 {vr(src, 4)}, v{vo}, {sr(sWS, 4)}, s{9 + jn} offen offset:{f * 1024}')
        if i < 3:
            pend += ['s_add_u32 s9, s9, 4096', 's_add_u32 s10, s10, 4096']
            pend = pend[:7] + ['\n'.join(pend[7:])]
    for p in pend: A(p)


def k1_epi_q(A, ver):
    vo, t0, t1 = 4, 5, 6
    A(f'v_and_b32 v{t0}, 15, v{vLANE}')
    A(f'v_lshrrev_b32 v{t1}, 5, v{vLANE}')
    A(f'v_lshl_add_u32 v{t0}, v{t1}, 5, v{t0}')
    A(f'v_lshlrev_b32 v{vo}, 4, v{t0}')
    A(f'v_bfe_u32 v{t1}, v{vLANE}, 4, 1')
    A(f'v_lshl_add_u32 v{vo}, v{t1}, 10, v{vo}')
    A('s_and_b32 s9, s7, 7')
    A('s_lshl_b32 s9, s9, 2')
    A(f's_lshl_b32 s10, s{sWN}, 1')
    A('s_add_u32 s9, s9, s10')
    A('s_lshl_b32 s9, s9, 6')
    A('s_lshl_b32 s10, s6, 3')
    A('s_add_u32 s9, s9, s10')
    A(f's_lshl_b32 s10, s{sWM}, 2')
    A('s_add_u32 s9, s9, s10')
    A('s_lshl_b32 s9, s9, 11')
    A('s_add_u32 s9, s9, s8')
    k = 0
    for jn in range(2):
        for mb in range(8):
            tmp = XF + (k % 8) * 4
            k += 1
            for nbl in range(2):
                for x in range(2):
                    A(cvtpk(tmp + 2 * nbl + x, acc(mb, 2 * jn + nbl) + 2 * x))
            if mb % 4 == 0:
                A(f's_add_u32 s10, s9, {jn * 131072 + (mb >> 2) * 4096}')
            A(f'buffer_store_dwordx4 {vr(tmp, 4)}, v{vo}, {sr(sWS, 4)}, s10 offen offset:{((mb >> 1) & 1) * 2048 + (mb & 1) * 256}')
    if ver in ('qk', 'qv'):
        tmp = WF
        nr = 8
        A(f's_lshl_b32 s9, s6, 15')
        A(f's_lshl_b32 s10, s{sT4}, 11')
        A('s_add_u32 s9, s9, s10')
        A(f's_add_u32 s9, s9, {KV + (16384 if ver == "qv" else 0)}')
        if ver == 'qk':
            vk = 7
            A(f'v_and_b32 v{t0}, 4, v{vLANE}')
            A(f'v_lshlrev_b32 v{t0}, 2, v{t0}')
            A(f'v_and_b32 v{t1}, 8, v{vLANE}')
            A(f'v_lshrrev_b32 v{t1}, 1, v{t1}')
            A(f'v_or_b32 v{t0}, v{t0}, v{t1}')
            A(f'v_and_b32 v{t1}, 3, v{vLANE}')
            A(f'v_or_b32 v{t0}, v{t0}, v{t1}')
            A(f'v_and_b32 v{t1}, 32, v{vLANE}')
            A(f'v_or_b32 v{t0}, v{t0}, v{t1}')
            A(f'v_lshlrev_b32 v{vk}, 4, v{t0}')
            A(f'v_bfe_u32 v{t1}, v{vLANE}, 4, 1')
            A(f'v_lshl_add_u32 v{vk}, v{t1}, 10, v{vk}')
            A(f's_mov_b32 s10, {f32bits(KSCALE)}')
            for r in range(16):
                A(f'v_mul_f32 v{EACC + r}, s10, v{EACC + r}')
            for mbl in range(2):
                A(f'v_mul_f32 v{nr + mbl}, v{eacc(mbl, 0)}, v{eacc(mbl, 0)}')
                for r in range(1, 8):
                    A(f'v_fmac_f32 v{nr + mbl}, v{eacc(mbl, 0) + r}, v{eacc(mbl, 0) + r}')
            A(f'v_permlane16_swap_b32 v{nr}, v{nr + 1}')
            A(f'v_add_f32 v{nr}, v{nr}, v{nr + 1}')
            A(f'v_mov_b32 v{nr + 1}, v{nr}')
            A(f'v_permlane32_swap_b32 v{nr}, v{nr + 1}')
            A(f'v_add_f32 v{nr}, v{nr}, v{nr + 1}')
            for mbl in range(2):
                for nbl in range(2):
                    for x in range(2):
                        A(cvtpk(tmp + 4 * mbl + 2 * nbl + x, eacc(mbl, nbl) + 2 * x))
                A(f'buffer_store_dwordx4 {vr(tmp + 4 * mbl, 4)}, v{vk}, {sr(sWS, 4)}, s9 offen offset:{mbl * 128}')
        else:
            A(f'v_max3_f32 v{nr}, |v{EACC}|, |v{EACC + 1}|, |v{EACC + 2}|')
            for r in range(3, 15, 2):
                A(f'v_max3_f32 v{nr}, v{nr}, |v{EACC + r}|, |v{EACC + r + 1}|')
            A(f'v_max_f32 v{nr}, v{nr}, |v{EACC + 15}|')
            for nbl in range(2):
                for mbl in range(2):
                    for x in range(2):
                        A(cvtpk(tmp + 4 * nbl + 2 * mbl + x, eacc(mbl, nbl) + 2 * x))
                A(f'buffer_store_dwordx4 {vr(tmp + 4 * nbl, 4)}, v{vo}, {sr(sWS, 4)}, s9 offen offset:{nbl * 256}')
        dpp_max_reduce(A, nr)
        A('s_lshl_b32 s9, s6, 3')
        A(f's_add_u32 s9, s9, s{sT4}')
        A('s_lshl_b32 s9, s9, 2')
        A(f's_add_u32 s9, s9, {KN if ver == "qk" else VM}')
        A(f'v_mov_b32 v{nr + 1}, 0')
        A('s_mov_b32 exec_lo, 0')
        A('s_mov_b32 exec_hi, 0x80000000')
        A(f'buffer_store_dword v{nr}, v{nr + 1}, {sr(sWS, 4)}, s9 offen')
        A('s_mov_b64 exec, -1')


def k1_epi_kv(A):
    KF = 48
    VF = 80
    PHI = 48
    PHT = 64
    WPH = 112
    PK = lambda i: ACC + 32 * i
    ET = ACC + 16
    KV0 = ACC + 48
    KV1 = ACC + 80
    Z = 16
    SEL = 24
    T = 28
    aW = 36
    aR = 40
    aP = 42
    vo = 43
    t0, t1, t2, t3 = 44, 45, 46, 47
    l31, hh = 4, 5
    A(f's_mov_b32 s{sC}, {LOG2E}')
    A(f's_mov_b32 s{sC + 1}, {LOG2E}')
    A(f'v_and_b32 v{l31}, 31, v{vLANE}')
    A(f'v_lshrrev_b32 v{hh}, 5, v{vLANE}')
    wph_addr(A, aP, hh, t0, t1, t2, t3, 11)
    for t in range(2):
        for u in range(2):
            A(f'ds_read_b64_tr_b16 {vr(WPH + 4 * t + 2 * u, 2)}, v{aP} offset:{t * 256 + u * 1024}')
    A('s_lshl_b32 s9, s5, 14')
    A(f's_add_u32 s9, s9, {SCR}')
    A(f'v_lshrrev_b32 v{t2}, 1, v{t1}')
    A(f'v_xor_b32 v{t2}, v{t2}, v{t3}')
    A(f'v_lshlrev_b32 v{t1}, 6, v{t1}')
    A(f'v_add_u32 v{t1}, s9, v{t1}')
    A(f'v_lshl_add_u32 v{aR}, v{t2}, 3, v{t1}')
    A(f'v_xor_b32 v{t2}, 2, v{t2}')
    A(f'v_lshl_add_u32 v{aR + 1}, v{t2}, 3, v{t1}')
    A(f'v_add_u32 v{aR + 1}, 256, v{aR + 1}')
    A(f'v_bfe_u32 v{t0}, v{l31}, 1, 3')
    A(f'v_xor_b32 v{t0}, v{t0}, v{hh}')
    A(f'v_lshlrev_b32 v{t1}, 6, v{l31}')
    A(f'v_add_u32 v{t1}, s9, v{t1}')
    for a in range(4):
        A(f'v_xor_b32 v{t2}, {2 * a}, v{t0}')
        A(f'v_lshl_add_u32 v{aW + a}, v{t2}, 3, v{t1}')
    emit_selector(A, SEL, vLANE, t0, t1)
    A(f'v_lshlrev_b32 v{vo}, 4, v{vLANE}')
    for i in range(4):
        for mbl in range(2):
            for nbl in range(2):
                for x in range(2):
                    A(cvtpk(KF + i * 8 + 4 * mbl + 2 * nbl + x, acc(2 * i + mbl, nbl) + 2 * x))
        for mbl in range(2):
            for nbl in range(2):
                for x in range(2):
                    A(cvtpk(VF + i * 8 + 4 * nbl + 2 * mbl + x, acc(2 * i + mbl, 2 + nbl) + 2 * x))
        for x in range(4):
            A(f'v_permlane16_swap_b32 v{KF + i * 8 + x}, v{KF + i * 8 + 4 + x}')
        for x in range(4):
            A(f'v_permlane16_swap_b32 v{VF + i * 8 + x}, v{VF + i * 8 + 4 + x}')
        A(mfma32(PK(i), WPH, KF + i * 8, '0'))
        A(mfma32(PK(i), WPH + 4, KF + i * 8 + 4))
    for i in range(4):
        dual_softmax(A, PK(i), ET, PHI, T, sC)
        for fb in range(2):
            for a in range(4):
                A(f'ds_write_b64 v{aW + a}, {vr(PHI + fb * 8 + 2 * a, 2)} offset:{i * 4096 + fb * 2048}')
        for fb in range(2):
            for t in range(2):
                for u in range(2):
                    A(f'ds_read_b64_tr_b16 {vr(PHT + (fb * 2 + t) * 4 + 2 * u, 2)}, v{aR + t} offset:{i * 4096 + fb * 2048 + u * 1024}')
        for fb in range(2):
            kv = KV0 if fb == 0 else KV1
            for t in range(2):
                first = (i == 0 and t == 0)
                A(mfma32(kv, PHT + (fb * 2 + t) * 4, VF + i * 8 + 4 * t, '0' if first else None))
                A(mfma16(Z + 4 * fb, SEL, PHT + (fb * 2 + t) * 4, '0' if first else None))
    A('s_lshl_b32 s9, s7, 1')
    A(f's_add_u32 s9, s9, s{sWN}')
    A('s_lshl_b32 s9, s9, 4')
    A('s_lshl_b32 s10, s6, 1')
    A('s_add_u32 s9, s9, s10')
    A(f's_add_u32 s9, s9, s{sWM}')
    A('s_lshl_b32 s10, s9, 13')
    A(f's_add_u32 s10, s10, {KVP}')
    for fb in range(2):
        kv = KV0 if fb == 0 else KV1
        for q in range(4):
            A(f'buffer_store_dwordx4 {vr(kv + 4 * q, 4)}, v{vo}, {sr(sWS, 4)}, s10 offen offset:{q * 1024}')
        if fb == 0:
            A('s_add_u32 s10, s10, 4096')
    A('s_lshl_b32 s10, s9, 8')
    A(f's_add_u32 s10, s10, {ZP}')
    A(f'v_lshlrev_b32 v{t0}, 2, v{vLANE}')
    A('s_mov_b32 exec_hi, 0')
    for fb in range(2):
        A(f'buffer_store_dword v{Z + 4 * fb}, v{t0}, {sr(sWS, 4)}, s10 offen offset:{fb * 128}')
    A('s_mov_b64 exec, -1')


def k1_prefetch(A):
    va, t0, t1 = 4, 5, 6
    Lw = A.label('K1PW'); Lg = A.label('K1PG')
    A('s_cmp_ge_u32 s4, 16')
    A(f's_cbranch_scc1 {Lw}')
    A('s_and_b32 s9, s6, 3')
    A('s_lshl_b32 s9, s9, 19')
    A(f's_sub_u32 s16, s{sX}, s9')
    A(f's_subb_u32 s17, s{sX + 1}, 0')
    A('s_and_b32 s17, s17, 0xffff')
    A('s_mov_b32 s18, 0x200000')
    A('s_mov_b32 s19, 0x00020000')
    A('s_lshl_b32 s9, s4, 6')
    A(f'v_add_u32 v{va}, s9, v{vLANE}')
    A(f'v_lshlrev_b32 v{va}, 11, v{va}')
    A('s_movk_i32 s20, 128')
    A(f's_branch {Lg}')
    A(f'{Lw}:')
    A(f's_mov_b32 s16, s{sW}')
    A(f's_mov_b32 s17, s{sW + 1}')
    A(f's_mov_b32 s18, s{sW + 2}')
    A('s_mov_b32 s19, 0x00020000')
    A('s_sub_u32 s9, s4, 16')
    A('s_lshl_b32 s9, s9, 2')
    A(f'v_lshrrev_b32 v{t0}, 4, v{vLANE}')
    A(f'v_add_u32 v{t0}, s9, v{t0}')
    A(f'v_mul_lo_u32 v{va}, v{t0}, s35')
    A('s_lshr_b32 s9, s7, 3')
    A('s_lshl_b32 s9, s9, 10')
    A('s_add_u32 s9, s9, 2048')
    A('s_cmp_lt_u32 s7, 16')
    A('s_cselect_b32 s9, s9, 0')
    A('s_cselect_b32 s10, 11, 10')
    A(f'v_and_b32 v{t0}, 7, v{vLANE}')
    A(f'v_lshl_add_u32 v{va}, v{t0}, 7, v{va}')
    A(f'v_bfe_u32 v{t0}, v{vLANE}, 3, 1')
    A(f'v_lshlrev_b32 v{t0}, s10, v{t0}')
    A(f'v_add3_u32 v{va}, v{va}, v{t0}, s9')
    A('s_lshl_b32 s20, s35, 6')
    A(f'{Lg}:')
    A(f's_mul_i32 s21, s3, {ROT}')
    A('s_add_u32 s21, s21, s5')
    A(f'v_mov_b32 v1, v{va}')


def k1_prefetch_issue(A):
    A('s_barrier')
    for j in range(PFN):
        A(f's_add_u32 s22, s21, {4 * j + PF - 1}')
        A('s_and_b32 s22, s22, 15')
        A('s_mul_i32 s22, s22, s20')
        A(f'buffer_load_dword v3, v1, s[16:19], s22 offen')


def k1(A):
    A('k1_kernel:')
    A('s_cmp_ge_u32 s2, 256')
    A('s_cbranch_scc0 K1_go')
    A('s_endpgm')
    A('K1_go:')
    stamp(A, 0)
    A('s_load_dwordx16 s[16:31], s[0:1], 0')
    A('s_load_dwordx2 s[32:33], s[0:1], 88')
    A('v_lshrrev_b32 v1, 6, v0')
    A(f'v_and_b32 v{vLANE}, 63, v0')
    A('v_readfirstlane_b32 s5, v1')
    A('s_and_b32 s3, s2, 7')
    A('s_lshr_b32 s4, s2, 3')
    A('s_and_b32 s9, s4, 3')
    A('s_lshr_b32 s10, s4, 2')
    A('s_and_b32 s6, s3, 1')
    A('s_lshl_b32 s6, s6, 2')
    A('s_add_u32 s6, s6, s9')
    A('s_lshr_b32 s7, s3, 1')
    A('s_lshl_b32 s7, s7, 3')
    A('s_add_u32 s7, s7, s10')
    A(f's_bfe_u32 s{sWM}, s5, 0x10001')
    A(f's_and_b32 s{sWN}, s5, 1')
    A('s_lshl_b32 s9, s7, 7')
    A('s_add_u32 s9, s9, 2048')
    A('s_and_b32 s10, s7, 7')
    A('s_lshl_b32 s10, s10, 8')
    A('s_cmp_lt_u32 s7, 16')
    A('s_cselect_b32 s14, s9, s10')
    A('s_cselect_b32 s15, 2048, 64')
    A('s_cselect_b32 s34, 64, 128')
    A('s_cselect_b32 s11, 12, 13')
    A(f's_lshl_b32 s{sE + 2}, 1, s11')
    A('s_movk_i32 s35, 6144')
    A(f's_mov_b32 s{sW + 2}, 0x600000')
    A('s_waitcnt lgkmcnt(0)')
    A('s_cmp_ge_u32 s7, 24')
    A('s_cselect_b32 s35, 2048, s35')
    A(f's_cselect_b32 s8, {QB}, {QA}')
    A(f's_cselect_b32 s{sX}, s24, s16')
    A(f's_cselect_b32 s{sX + 1}, s25, s17')
    A(f's_cselect_b32 s{sW}, s26, s18')
    A(f's_cselect_b32 s{sW + 1}, s27, s19')
    A(f's_cselect_b32 s{sW + 2}, 0x200000, s{sW + 2}')
    A(f's_cselect_b32 s{sE + 2}, 65536, s{sE + 2}')
    A('s_lshl_b32 s9, s6, 19')
    A(f's_add_u32 s{sX}, s{sX}, s9')
    A(f's_addc_u32 s{sX + 1}, s{sX + 1}, 0')
    A(f's_and_b32 s{sX + 1}, s{sX + 1}, 0xffff')
    A(f's_mov_b32 s{sX + 2}, 0x80000')
    A(f's_mov_b32 s{sX + 3}, 0x00020000')
    A(f's_and_b32 s{sW + 1}, s{sW + 1}, 0xffff')
    A(f's_mov_b32 s{sW + 3}, 0x00020000')
    A('s_and_b32 s9, s7, 15')
    A('s_lshl_b32 s9, s9, s11')
    A('s_add_u32 s20, s20, s9')
    A('s_addc_u32 s21, s21, 0')
    A('s_bitcmp1_b32 s7, 0')
    A('s_cselect_b32 s28, s30, s28')
    A('s_cselect_b32 s29, s31, s29')
    A('s_cmp_ge_u32 s7, 24')
    A(f's_cselect_b32 s{sE}, s28, s20')
    A(f's_cselect_b32 s{sE + 1}, s29, s21')
    A(f's_and_b32 s{sE + 1}, s{sE + 1}, 0xffff')
    A(f's_mov_b32 s{sE + 3}, 0x00020000')
    make_srd(A, sWS, 's32', 's33', WS_SIZE)
    A('s_cmp_ge_u32 s5, 4')
    A('s_cbranch_scc1 K1_loader')
    if PF: k1_prefetch(A)
    A('s_cmp_lt_u32 s7, 16')
    A('s_cbranch_scc1 K1_kv')
    A('s_cmp_lt_u32 s7, 24')
    A('s_cbranch_scc1 K1_q')
    A('s_cmp_ge_u32 s5, 2')
    A('s_cbranch_scc1 K1_q')
    A('s_bitcmp1_b32 s7, 0')
    A('s_cbranch_scc1 K1_qv')
    k1_compute(A, 'qk')
    A('K1_qv:')
    k1_compute(A, 'qv')
    A('K1_q:')
    k1_compute(A, 'q')
    A('K1_kv:')
    k1_compute(A, 'kv')
    A('K1_loader:')
    A('s_cmp_ge_u32 s7, 24')
    A('s_cbranch_scc1 K1_loaderB')
    k1_loader(A, False)
    A('K1_loaderB:')
    k1_loader(A, True)
```

```python
import os
import gen_k1
from gen_k1 import (vr, sr, mfma32, mfma16, cvtpk, make_srd, emit_selector, dpp_max_reduce,
                    stamp, stamp_flush, f32bits, QB, KV, KVP, ZP, KN, VM, PHQ, OA, OB, WS_SIZE)

KVF = 131072
ZF = KVF + 4096
K2_LDS = ZF + 128
K2_VGPR = 256
XCH = 0
QL = 3 * 32768

sWS = 48
sPERM, sFLAG = 66, 67
sDG, sDL, sT, sT2 = 52, 53, 54, 55
sKVP, sZP, sPH, sOA, sOB = 56, 57, 58, 59, 60
vLANE = 2
vL16, vLo, vHi, vT0, vT1 = 3, 4, 5, 6, 7
vQ = 8
vK = 24
vV = 40
vS = 56
vP = 88
vO = 104
vL = 136
vSEL = 144
vPHI = 148
vKVP = 164
vZ = 228
vM = 230
vDEN = 232
vXW, vXR, vLW, vLR, vKFW, vZW, vZR, vOUT = 248, 249, 250, 251, 252, 253, 254, 255
PRIO = int(os.environ.get('PRIO', '1'))
XP2 = os.environ.get('XP2', '')


def pack(d, a):
    return f'v_perm_b32 v{d}, v{a + 1}, v{a}, s{sPERM}'


def softmax_valu(x):
    S = vS + 16 * x; P = vP + 8 * x
    va = []
    for i in range(8):
        va += [f'v_exp_f32 v{S + 2 * i}, v{S + 2 * i}', f'v_exp_f32 v{S + 2 * i + 1}, v{S + 2 * i + 1}']
        if i > 0: va.append(pack(P + i - 1, S + 2 * (i - 1)))
    va.append(pack(P + 7, S + 14))
    return va


def qk(x, kb):
    S = vS + 16 * x
    return [mfma32(S, vK + 8 * kb, vQ + 8 * x, '0'), mfma32(S, vK + 8 * kb + 4, vQ + 8 * x + 4)]


def pv(x, vb):
    O = vO + 16 * x; P = vP + 8 * x; L = vL + 4 * x
    return ([mfma32(O, vV + 8 * vb, P), mfma32(O, vV + 8 * vb + 4, P + 4)],
            [mfma16(L, vSEL, P), mfma16(L, vSEL, P + 4)])


def phase(A, x, kb, vb, extra, noqk=False):
    q = qk(1 - x, kb)
    o, l = pv(1 - x, vb)
    mf = [q[0], o[0], q[1], l[0], o[1], l[1]]
    cnt = [5, 5, 5, 2, 5, 2]
    va = softmax_valu(x)
    k = 0
    for i, (m, n) in enumerate(zip(mf, cnt)):
        if not (noqk and i in (0, 2)): A(m)
        for _ in range(n):
            A(va[k]); k += 1
        for e in extra[i]: A(e)
    assert k == len(va)


def kv_addr(step):
    c, j = step >> 2, step & 3
    buf = c & 3
    return (vLo if buf < 2 else vHi), (buf & 1) * 32768 + j * 2048


def rdK(kb, step, t):
    a, off = kv_addr(step)
    return f'ds_read_b128 {vr(vK + 8 * kb + 4 * t, 4)}, v{a} offset:{off + t * 1024}'


def rdV(vb, step, t):
    a, off = kv_addr(step)
    return f'ds_read_b128 {vr(vV + 8 * vb + 4 * t, 4)}, v{a} offset:{16384 + off + t * 1024}'


def dma(c, i):
    return [f's_add_u32 m0, s{sDL}, {(c & 3) * 32768 + i * 1024}',
            f's_add_u32 s{sT}, s{sDG}, {c * 32768 + i * 1024}',
            f'buffer_load_dwordx4 v{vL16}, {sr(sWS, 4)}, s{sT} offen lds ; dma{c}']


def wait_dma(A, c):
    idx = [k for k, (rv, t) in enumerate(A.h.vm) if t.endswith(f'dma{c}')]
    if idx:
        A(f's_waitcnt vmcnt({min(63, len(A.h.vm) - 1 - idx[-1])})')


def k2(A):
    A('k2_kernel:')
    A('s_cmp_ge_u32 s2, 256')
    A('s_cbranch_scc0 K2_go')
    A('s_endpgm')
    A('K2_go:')
    stamp(A, 0)
    A('s_load_dwordx2 s[32:33], s[0:1], 88')
    A('v_lshrrev_b32 v1, 6, v0')
    A(f'v_and_b32 v{vLANE}, 63, v0')
    A('v_readfirstlane_b32 s5, v1')
    A(f'v_lshlrev_b32 v{vL16}, 4, v{vLANE}')
    A(f'v_lshlrev_b32 v{vT0}, 2, v{vLANE}')
    A('s_and_b32 s3, s2, 7')
    A('s_lshl_b32 s7, s3, 2')
    A('s_bfe_u32 s4, s2, 0x20003')
    A('s_add_u32 s7, s7, s4')
    A('s_lshr_b32 s6, s2, 5')
    A('s_lshl_b32 s8, s7, 6')
    A('s_lshl_b32 s9, s6, 3')
    A('s_add_u32 s8, s8, s9')
    A('s_add_u32 s9, s8, s5')
    A('s_lshl_b32 s12, s9, 11')
    A(f's_add_u32 s12, s12, {QB}')
    A('s_add_u32 s13, s12, 1024')
    A(f's_lshl_b32 s{sPH}, s9, 12')
    A(f's_add_u32 s{sPH}, s{sPH}, {PHQ}')
    A('s_lshl_b32 s14, s5, 11')
    A(f's_add_u32 s14, s14, {QL}')
    A(f's_mov_b32 s15, {KN}')
    A(f's_lshl_b32 s{sDL}, s5, 12')
    A(f's_add_u32 s{sDG}, s{sDL}, {KV}')
    A(f's_mov_b32 s{sPERM}, 0x07060302')
    A('s_mov_b32 m0, s14')
    A('s_waitcnt lgkmcnt(0)')
    make_srd(A, sWS, 's32', 's33', WS_SIZE)
    vKN, vVM = vDEN, vDEN + 1
    q2 = vDEN + 2
    A(f'buffer_load_dwordx4 v{vL16}, {sr(sWS, 4)}, s12 offen lds ; dma0')
    A('s_add_u32 m0, s14, 1024')
    A(f'buffer_load_dwordx4 v{vL16}, {sr(sWS, 4)}, s13 offen lds ; dma0')
    for i in range(4):
        for e in dma(0, i): A(e)
    A(f'buffer_load_dword v{vKN}, v{vT0}, {sr(sWS, 4)}, s15 offen')
    A(f'buffer_load_dword v{vVM}, v{vT0}, {sr(sWS, 4)}, s15 offen offset:256')
    for i in range(4):
        for e in dma(1, i): A(e)
    stamp(A, 1)
    A('s_and_b32 s3, s5, 1')
    A('s_lshl_b32 s3, s3, 13')
    A(f'v_add_u32 v{vLo}, s3, v{vL16}')
    A(f'v_add_u32 v{vHi}, 0x10000, v{vLo}')
    for r in list(range(vO, vO + 32)) + list(range(vL, vL + 8)) + list(range(vP + 8, vP + 16)) + list(range(vV + 8, vV + 16)):
        A(f'v_mov_b32 v{r}, 0')
    t0, t1 = vS, vS + 1
    emit_selector(A, vSEL, vLANE, t0, t1)
    A('s_mul_i32 s3, s5, 4352')
    A(f'v_add_u32 v{vXW}, s3, v{vL16}')
    A(f'v_add_u32 v{vLW}, s3, v{vT0}')
    A('s_xor_b32 s10, s5, 1')
    A('s_mul_i32 s4, s10, 4352')
    A(f'v_add_u32 v{vXR}, s4, v{vL16}')
    A(f'v_add_u32 v{vLR}, s4, v{vT0}')
    A('s_lshr_b32 s3, s5, 1')
    A('s_lshl_b32 s3, s3, 10')
    A('s_and_b32 s4, s5, 1')
    A('s_lshl_b32 s4, s4, 3')
    A('s_add_u32 s3, s3, s4')
    A(f's_add_u32 s3, s3, {KVF}')
    A(f'v_add_u32 v{vKFW}, s3, v{vL16}')
    A('s_lshr_b32 s3, s5, 1')
    A('s_lshl_b32 s3, s3, 5')
    A('s_add_u32 s3, s3, s4')
    A(f's_add_u32 s3, s3, {ZF}')
    A(f'v_and_b32 v{t0}, 2, v{vLANE}')
    A(f'v_lshlrev_b32 v{t0}, 3, v{t0}')
    A(f'v_and_b32 v{t1}, 1, v{vLANE}')
    A(f'v_lshl_add_u32 v{t0}, v{t1}, 2, v{t0}')
    A(f'v_bfe_u32 v{t1}, v{vLANE}, 4, 1')
    A(f'v_lshl_add_u32 v{t0}, v{t1}, 1, v{t0}')
    A(f'v_add_u32 v{vZW}, s3, v{t0}')
    A(f'v_lshrrev_b32 v{t0}, 5, v{vLANE}')
    A(f'v_lshlrev_b32 v{t0}, 4, v{t0}')
    A(f'v_add_u32 v{vZR}, {ZF}, v{t0}')
    A('s_lshl_b32 s3, s6, 3')
    A('s_add_u32 s3, s3, s5')
    A('s_lshl_b32 s3, s3, 16')
    A('s_lshl_b32 s4, s7, 11')
    A('s_add_u32 s3, s3, s4')
    A(f's_add_u32 s{sOA}, s3, {OA}')
    A(f's_add_u32 s{sOB}, s3, {OB}')
    A('s_lshl_b32 s3, s7, 17')
    A('s_lshl_b32 s4, s5, 10')
    A('s_add_u32 s3, s3, s4')
    A(f's_add_u32 s{sKVP}, s3, {KVP}')
    A(f'v_lshrrev_b32 v{t0}, 2, v{vLANE}')
    A(f'v_lshlrev_b32 v{t0}, 8, v{t0}')
    A(f'v_and_b32 v{t1}, 3, v{vLANE}')
    A(f'v_lshl_add_u32 v{vT1}, v{t1}, 3, v{t0}')
    A('s_lshl_b32 s3, s7, 12')
    A('s_lshl_b32 s4, s5, 5')
    A('s_add_u32 s3, s3, s4')
    A(f's_add_u32 s{sZP}, s3, {ZP}')
    qo, qp = vS + 16, vS + 17
    A(f'v_add_u32 v{qo}, s14, v{vL16}')
    A('s_lshl_b32 s10, s10, 11')
    A(f's_add_u32 s10, s10, {QL}')
    A(f'v_add_u32 v{qp}, s10, v{vL16}')
    stamp(A, 2)
    wait_dma(A, 0)
    A('s_barrier')
    stamp(A, 3)
    if gen_k1.STAMPS: A('s_waitcnt lgkmcnt(0)')
    for t in range(2):
        A(f'ds_read_b128 {vr(vQ + 4 * t, 4)}, v{qp} offset:{t * 1024}')
        A(rdK(0, 0, t))
    for t in range(2):
        A(f'ds_read_b128 {vr(vQ + 8 + 4 * t, 4)}, v{qo} offset:{t * 1024}')
    A(rdV(0, 0, 0)); A(rdV(0, 0, 1))
    A(rdK(1, 1, 0)); A(rdK(1, 1, 1))
    A(f'v_mov_b32 v{q2}, 0')
    A(f'v_mov_b32 v{q2 + 1}, 0')
    dl = [[], []]
    dpp_max_reduce(dl[0].append, vKN)
    dpp_max_reduce(dl[1].append, vVM)
    for a, b in zip(*dl):
        A(a); A(b)
    for m in qk(0, 0): A(m)
    for r in range(8):
        A(f'v_dot2c_f32_bf16 v{q2}, v{vQ + r}, v{vQ + r}')
        A(f'v_dot2c_f32_bf16 v{q2 + 1}, v{vQ + 8 + r}, v{vQ + 8 + r}')
    A(f'v_readlane_b32 s3, v{vKN}, 63')
    A(f'v_readlane_b32 s4, v{vVM}, 63')
    A(f'v_mov_b32 v{q2 + 2}, v{q2}')
    A(f'v_mov_b32 v{q2 + 3}, v{q2 + 1}')
    A(f's_mov_b32 s8, {f32bits(3400.0)}')
    A(f's_mov_b32 s9, {f32bits(2.0 ** 50)}')
    A(f'v_permlane32_swap_b32 v{q2}, v{q2 + 2}')
    A(f'v_permlane32_swap_b32 v{q2 + 1}, v{q2 + 3}')
    A(f'v_add_f32 v{q2}, v{q2}, v{q2 + 2}')
    A(f'v_add_f32 v{q2 + 1}, v{q2 + 1}, v{q2 + 3}')
    A(f'v_mov_b32 v{q2 + 2}, s4')
    A(f'v_mul_f32 v{q2}, s3, v{q2}')
    A(f'v_mul_f32 v{q2 + 1}, s3, v{q2 + 1}')
    A(f's_mov_b32 s10, {f32bits(2.0 ** -30)}')
    A(f'v_cmp_nge_f32 s[20:21], s9, v{q2 + 2}')
    A(f'v_cmp_nle_f32 s[22:23], s10, v{q2 + 2}')
    A(f'v_cmp_nge_f32 s[16:17], s8, v{q2}')
    A(f'v_cmp_nge_f32 s[18:19], s8, v{q2 + 1}')
    A('s_or_b64 s[20:21], s[20:21], s[22:23]')
    A('s_or_b64 s[16:17], s[16:17], s[18:19]')
    A('s_or_b64 s[16:17], s[16:17], s[20:21]')
    A(f's_or_b32 s{sFLAG}, s16, s17')

    X = [[[] for _ in range(6)] for _ in range(64)]
    for st in range(32):
        ph = 2 * st + 1
        if st + 1 < 32:
            X[ph][2].append(rdV((st + 1) & 1, st + 1, 0)); X[ph][3].append(rdV((st + 1) & 1, st + 1, 1))
        if st + 2 < 32:
            X[ph][4].append(rdK(st & 1, st + 2, 0)); X[ph][5].append(rdK(st & 1, st + 2, 1))
    if 'd' not in XP2:
        for i, ph in enumerate((0, 1, 2, 3)):
            X[ph][1] += dma(2, i)
        for c in range(5):
            for i, d in enumerate((5, 6, 8, 10)):
                X[8 * c + d][1] += dma(c + 3, i)
    lds_ = []
    for f in range(4):
        lds_.append([f'buffer_load_dwordx4 {vr(vPHI + 4 * f, 4)}, v{vL16}, {sr(sWS, 4)}, s{sPH} offen offset:{f * 1024}'])
    for p in range(16):
        lds_.append([f'buffer_load_dwordx4 {vr(vKVP + 4 * p, 4)}, v{vL16}, {sr(sWS, 4)}, s{sKVP} offen'] +
                    ([f's_add_u32 s{sKVP}, s{sKVP}, 8192'] if p < 15 else []))
    lds_.append([f'buffer_load_dwordx2 {vr(vZ, 2)}, v{vT1}, {sr(sWS, 4)}, s{sZP} offen'])
    ph = 4
    for g in lds_[4:] + lds_[:4]:
        X[ph][4 if ph % 2 == 0 else 0] += g
        ph += 1
    sums = []
    n = 16
    while n > 1:
        n //= 2
        for p in range(n):
            for x in (0, 2):
                sums.append(f'v_pk_add_f32 {vr(vKVP + 4 * p + x, 2)}, {vr(vKVP + 4 * p + x, 2)}, {vr(vKVP + 4 * (p + n) + x, 2)}')
    zred = [[f'v_permlane16_swap_b32 v{vZ}, v{vZ + 1}'],
            [f'v_add_f32 v{vZ}, v{vZ}, v{vZ + 1}'],
            [f'v_add_f32_dpp v{vZ}, v{vZ}, v{vZ} row_shr:4 row_mask:0xf bank_mask:0xf'],
            [f'v_add_f32_dpp v{vZ}, v{vZ}, v{vZ} row_shr:8 row_mask:0xf bank_mask:0xf'],
            [f'v_mov_b32 v{vZ + 1}, v{vZ}'],
            [f'v_permlane32_swap_b32 v{vZ}, v{vZ + 1}'],
            [f'v_add_f32 v{vZ}, v{vZ}, v{vZ + 1}'],
            [cvtpk(vZ, vZ, vZ)],
            ['s_mov_b32 exec_lo, 0xf000f000', 's_mov_b32 exec_hi, 0', f'ds_write_b16 v{vZW}, v{vZ}', 's_mov_b64 exec, -1']]
    k = 0
    for ph in range(30, 36):
        for sl in range(5):
            X[ph][sl].append(sums[k]); k += 1
    assert k == 30
    X[36][0] += [cvtpk(vKVP + 4, vKVP), cvtpk(vKVP + 5, vKVP + 2)]
    X[36][2] += [f'ds_write_b64 v{vKFW}, {vr(vKVP + 4, 2)}']
    for k, g in enumerate(zred):
        X[36 + k // 3][1 + 2 * (k % 3)] += g
    KF = vKVP + 8
    ZFr = vKVP + 24
    NUM = vKVP + 40
    PA = vKVP + 56
    X[44][5].append(f'v_add_u32 v{vT0}, {KVF}, v{vL16}')
    for f in range(4):
        X[45 + (f >> 1)][f & 1].append(f'ds_read_b128 {vr(KF + 4 * f, 4)}, v{vT0} offset:{f * 1024}')
        X[46][2 + f].append(f'ds_read_b128 {vr(ZFr + 4 * f, 4)}, v{vZR} offset:{f * 32}')
    for f in range(4):
        X[47 + 2 * f][3].append(mfma32(NUM, KF + 4 * f, vPHI + 4 * f, '0' if f == 0 else None))
        X[48 + 2 * f][3].append(mfma32(vDEN, ZFr + 4 * f, vPHI + 4 * f, '0' if f == 0 else None))
    X[56][0].append(f'v_add_f32 v{vDEN}, {f32bits(1e-6)}, v{vDEN}')
    X[56][1].append(f'v_rcp_f32 v{vDEN}, v{vDEN}')
    for k, r in enumerate(range(0, 16, 2)):
        X[56 + k // 4][2 + k % 4].append(f'v_pk_mul_f32 {vr(NUM + r, 2)}, {vr(NUM + r, 2)}, {vr(vDEN, 2)} op_sel_hi:[1,0]')
        X[58 + k // 4][k % 4].append(cvtpk(PA + r // 2, NUM + r))
    for x in range(2):
        X[58 + x][5].append(f'buffer_store_dwordx4 {vr(PA + 4 * x, 4)}, v{vL16}, {sr(sWS, 4)}, s{sOA} offen offset:{1024 * x}')

    prio = {}
    for c in range(7):
        for d, p in ((5, 3), (7, 2), (9, 1), (11, 0)):
            prio[8 * c + d] = p
    for ph, p in ((53, 3), (56, 2), (59, 1), (62, 0)): prio[ph] = p
    for ph in (55, 57): prio.pop(ph, None)
    prio[0] = 2; prio[1] = 1; prio[3] = 0
    for st in range(32):
        c, j = st >> 2, st & 3
        for p in range(2):
            ph = 2 * st + p
            if p == 1 and j == 2 and c < 7:
                wait_dma(A, c + 1)
                if 'b' not in XP2: A('s_barrier')
            if PRIO and ph in prio: A(f's_setprio {prio[ph]}')
            if p == 0:
                phase(A, 0, st & 1, (st - 1) & 1, X[ph])
            else:
                phase(A, 1, (st + 1) & 1, st & 1, X[ph], noqk=(st == 31))
    o, l = pv(1, 1)
    for m in (o[0], l[0], o[1], l[1]): A(m)
    stamp(A, 4)
    A(f's_cmp_lg_u32 s{sFLAG}, 0')
    A('s_cbranch_scc1 K2_fallback')
    A('K2_tail:')
    for qd in range(4):
        A(f'ds_write_b128 v{vXW}, {vr(vO + 4 * qd, 4)} offset:{XCH + qd * 1024}')
    A(f'ds_write_b32 v{vLW}, v{vL} offset:{XCH + 4096}')
    A('s_waitcnt lgkmcnt(0)')
    A('s_barrier')
    Xr = vS
    XL = vV
    OBr = vO + 16
    LB = vL + 4
    A(f'ds_read_b32 v{XL}, v{vLR} offset:{XCH + 4096}')
    for qd in range(4):
        A(f'ds_read_b128 {vr(Xr + 4 * qd, 4)}, v{vXR} offset:{XCH + qd * 1024}')
    A(f'v_add_f32 v{LB}, v{LB}, v{XL}')
    A(f'v_rcp_f32 v{LB}, v{LB}')
    for x in range(2):
        for r in range(8 * x, 8 * x + 8, 2):
            A(f'v_pk_add_f32 {vr(OBr + r, 2)}, {vr(OBr + r, 2)}, {vr(Xr + r, 2)}')
        for r in range(8 * x, 8 * x + 8, 2):
            A(f'v_pk_mul_f32 {vr(OBr + r, 2)}, {vr(OBr + r, 2)}, {vr(LB, 2)} op_sel_hi:[1,0]')
        for r in range(8 * x, 8 * x + 8, 2):
            A(cvtpk(vP + r // 2, OBr + r))
        A(f'buffer_store_dwordx4 {vr(vP + 4 * x, 4)}, v{vL16}, {sr(sWS, 4)}, s{sOB} offen offset:{1024 * x}')
    if gen_k1.STAMPS: A('s_waitcnt vmcnt(0)')
    stamp(A, 5)
    stamp_flush(A, 6, 1)
    A('s_endpgm')

    A('K2_fallback:')
    A('s_waitcnt vmcnt(0) lgkmcnt(0)')
    A('s_nop 15')
    A(f'v_mov_b32 v{vM}, 0xff800000')
    A(f'v_mov_b32 v{vM + 1}, 0xff800000')
    A('s_mov_b32 s11, 0')
    L1 = A.label('K2F')
    A(f'{L1}:')
    A('s_lshr_b32 s3, s11, 3')
    A('s_lshl_b32 s3, s3, 15')
    A('s_and_b32 s4, s11, 7')
    A('s_lshl_b32 s4, s4, 11')
    A('s_add_u32 s3, s3, s4')
    A(f's_add_u32 s3, s3, {KV}')
    for t in range(2):
        A(f'buffer_load_dwordx4 {vr(vK + 4 * t, 4)}, v{vL16}, {sr(sWS, 4)}, s3 offen offset:{t * 1024}')
    for x in range(2):
        for m in qk(x, 0): A(m)
    for x in range(2):
        for r in range(0, 16, 2):
            A(f'v_max3_f32 v{vM + x}, v{vM + x}, v{vS + 16 * x + r}, v{vS + 16 * x + r + 1}')
    A('s_add_u32 s11, s11, 1')
    A('s_cmp_lg_u32 s11, 64')
    A(f's_cbranch_scc1 {L1}')
    for x in range(2):
        A(f'v_mov_b32 v{vT0}, v{vM + x}')
        A(f'v_permlane32_swap_b32 v{vM + x}, v{vT0}')
        A(f'v_max_f32 v{vM + x}, v{vM + x}, v{vT0}')
        A(f'v_add_f32 v{vM + x}, {f32bits(11.0)}, v{vM + x}')
    for r in list(range(vO, vO + 32)) + list(range(vL, vL + 8)):
        A(f'v_mov_b32 v{r}, 0')
    A('s_mov_b32 s11, 0')
    A('s_and_b32 s12, s5, 1')
    A('s_lshl_b32 s12, s12, 13')
    A(f's_add_u32 s12, s12, {KV}')
    L2 = A.label('K2G')
    A(f'{L2}:')
    A('s_lshr_b32 s3, s11, 2')
    A('s_lshl_b32 s3, s3, 15')
    A('s_and_b32 s4, s11, 3')
    A('s_lshl_b32 s4, s4, 11')
    A('s_add_u32 s3, s3, s4')
    A('s_add_u32 s3, s3, s12')
    A('s_add_u32 s4, s3, 16384')
    for t in range(2):
        A(f'buffer_load_dwordx4 {vr(vK + 4 * t, 4)}, v{vL16}, {sr(sWS, 4)}, s3 offen offset:{t * 1024}')
    for t in range(2):
        A(f'buffer_load_dwordx4 {vr(vV + 4 * t, 4)}, v{vL16}, {sr(sWS, 4)}, s4 offen offset:{t * 1024}')
    for x in range(2):
        for m in qk(x, 0): A(m)
    for x in range(2):
        for r in range(16):
            A(f'v_sub_f32 v{vS + 16 * x + r}, v{vS + 16 * x + r}, v{vM + x}')
        for v in softmax_valu(x): A(v)
    for x in range(2):
        o, l = pv(x, 0)
        for m in o + l: A(m)
    A('s_add_u32 s11, s11, 1')
    A('s_cmp_lg_u32 s11, 32')
    A(f's_cbranch_scc1 {L2}')
    A('s_nop 15')
    A('s_branch K2_tail')
```

```python
import os
import gen_k1
from gen_k1 import (vr, sr, mfma16, cvtpk, make_srd, stamp, stamp_flush, OA, OB, WS_SIZE)

NS = 5
STG = 32768
LWO = 16384
K3_LDS = NS * STG
K3_VGPR = 144
BPOS = int(os.environ.get('K3_BPOS', '3'))
ROT = int(os.environ.get('ROT3', '6'))
RR = int(os.environ.get('RR3', '8'))
RC = int(os.environ.get('RC3', '2'))
NL = int(os.environ.get('NL3', '4'))
K3_THREADS = 256 + 64 * NL
XP = os.environ.get('XP3', '')

sX, sW, sO, sWS = 36, 40, 44, 48
sL, sGX, sGW, sT, sD, sCnt = 52, 53, 54, 55, 56, 57
sWM, sWN = 12, 13
vLANE = 2
vXA = 4
vWA = 6
XF = 16
WF = 48
ACC = 80


def acc(mb, nb):
    return ACC + (mb * 4 + nb) * 4


def rdX(s, mb):
    return f'ds_read_b128 {vr(XF + 16 * s + 4 * mb, 4)}, v{vXA + s} offset:{(mb >> 1) * 4096 + (mb & 1) * 256}'


def rdW(s, nb, u):
    return f'ds_read_b64_tr_b16 {vr(WF + 16 * s + 4 * nb + 2 * u, 2)}, v{vWA + nb} offset:{s * 8192 + u * 2048}'


def reads(s):
    r = [rdW(s, 0, 0), rdW(s, 0, 1), rdX(s, 0), rdW(s, 1, 0), rdW(s, 1, 1), rdW(s, 2, 0), rdW(s, 2, 1),
         rdW(s, 3, 0), rdW(s, 3, 1), rdX(s, 1), rdX(s, 2), rdX(s, 3)]
    if 'x' in XP or 'r' in XP: r = [i for i in r if 'b128' not in i]
    if 'w' in XP or 'r' in XP: r = [i for i in r if 'tr_b16' not in i]
    if 'b' in XP:
        r = [i.replace('ds_read_b64_tr_b16', 'ds_read_b128').replace(f':{int(i.split(":")[1].split("]")[0])}]', f':{int(i.split(":")[1].split("]")[0]) + 2}]') if 'tr_b16' in i else i for i in r if not ('tr_b16' in i and int(i.split('offset:')[1]) % 4096)]
    return r


def kstep(A):
    for s in range(2):
        rq = reads(1 - s)
        k = 0
        for mb in range(4):
            for nb in range(4):
                if s == 1 and k == 0:
                    A(f's_add_u32 s{sCnt}, s{sCnt}, 1')
                    A(f's_cmp_eq_u32 s{sCnt}, {NS}')
                    A(f's_cselect_b32 s{sD}, s15, {STG}')
                    A(f's_cselect_b32 s{sCnt}, 0, s{sCnt}')
                if s == 1 and k == BPOS:
                    A('s_waitcnt lgkmcnt(0)')
                    A('s_barrier')
                if 'm' not in XP: A(mfma16(acc(mb, nb), WF + 16 * s + 4 * nb, XF + 16 * s + 4 * mb))
                if s == 1 and k < BPOS:
                    for a in range(6):
                        if a * BPOS // 6 == k:
                            A(f'v_add_u32 v{vXA + a}, s{sD}, v{vXA + a}')
                elif rq:
                    A(rq.pop(0))
                k += 1
        for r in rq: A(r)


def k3_loader(A):
    nj = 16 // NL
    n = 2 * nj
    vX0, vX1, vW = 4, 5, 6
    t0, t1, t2 = 10, 11, 12
    lg = {4: 0, 8: 1}[NL]
    A('s_sub_u32 s5, s5, 4')
    assert NL == 4
    A(f's_lshl_b32 s9, s5, 16')
    A(f'v_lshlrev_b32 v{vX0}, 4, v{vLANE}')
    A(f'v_add_u32 v{vX0}, s9, v{vX0}')
    A(f'v_lshrrev_b32 v{t1}, 4, v{vLANE}')
    A(f's_bfe_u32 s9, s5, {0x10000 + lg}')
    A('s_lshl_b32 s9, s9, 2')
    A(f'v_bfe_u32 v{t0}, v{vLANE}, 1, 3')
    A(f'v_xor_b32 v{t0}, v{t0}, v{t1}')
    A(f'v_xor_b32 v{t0}, s9, v{t0}')
    A(f's_lshl_b32 s9, s5, {4 - lg}')
    A(f'v_add_u32 v{t1}, s9, v{t1}')
    A(f'v_lshlrev_b32 v{vW}, 11, v{t1}')
    A(f'v_lshl_add_u32 v{vW}, v{t0}, 5, v{vW}')
    A(f'v_and_b32 v{t2}, 1, v{vLANE}')
    A(f'v_lshl_add_u32 v{vW}, v{t2}, 4, v{vW}')
    A(f's_lshl_b32 s{sL}, s5, {12 - lg}')
    A(f's_mov_b32 s{sGX}, 0')
    A(f's_lshl_b32 s{sGW}, s7, 8')
    if ROT:
        A('s_and_b32 s3, s2, 7')
        A(f's_mul_i32 s{sCnt}, s3, {ROT}')
        if RR:
            A(f's_and_b32 s{sT}, s6, 3')
            A(f's_mul_i32 s{sT}, s{sT}, {RR}')
            A(f's_add_u32 s{sCnt}, s{sCnt}, s{sT}')
        if RC:
            A(f's_mul_i32 s{sT}, s7, {RC}')
            A(f's_add_u32 s{sCnt}, s{sCnt}, s{sT}')
        A(f's_and_b32 s{sCnt}, s{sCnt}, 15')
        A(f's_lshl_b32 s{sGX}, s{sCnt}, 12')
        A(f's_lshl_b32 s{sT}, s{sCnt}, 17')
        A(f's_add_u32 s{sGW}, s{sGW}, s{sT}')

    def issue():
        for j in range(0 if 'd' in XP else nj):
            A(f's_add_u32 m0, s{sL}, {LWO + j * 1024}')
            A(f's_add_u32 s{sT}, s{sGW}, {j * 8192}')
            A(f'buffer_load_dwordx4 v{vW}, {sr(sW, 4)}, s{sT} offen lds')
            A(f's_add_u32 m0, s{sL}, {j * 1024}')
            A(f's_add_u32 s{sT}, s{sGX}, {j * 1024}')
            A(f'buffer_load_dwordx4 v{vX0}, {sr(sX, 4)}, s{sT} offen lds')
        A(f's_add_u32 s{sGX}, s{sGX}, 4096')
        A(f's_add_u32 s{sGW}, s{sGW}, 131072')
        if ROT:
            A(f's_add_u32 s{sCnt}, s{sCnt}, 1')
            A(f's_cmp_eq_u32 s{sCnt}, 16')
            A(f's_cselect_b32 s{sT}, 65536, 0')
            A(f's_cselect_b32 s{sD}, 0x200000, 0')
            A(f's_sub_u32 s{sGX}, s{sGX}, s{sT}')
            A(f's_sub_u32 s{sGW}, s{sGW}, s{sD}')
        A(f's_add_u32 s{sL}, s{sL}, {STG}')
        A(f's_cmp_ge_u32 s{sL}, {NS * STG}')
        A(f's_cselect_b32 s{sT}, {NS * STG}, 0')
        A(f's_sub_u32 s{sL}, s{sL}, s{sT}')

    stamp(A, 1)
    issue(); issue()
    stamp(A, 2)
    A(f's_waitcnt vmcnt({n})')
    stamp(A, 3)
    A('s_barrier')
    issue(); issue()
    A(f's_waitcnt vmcnt({2 * n})')
    A('s_barrier')
    issue(); issue()
    A(f's_mov_b32 s11, {15 - NS}')
    L = A.label('K3LD')
    A(f'{L}:')
    A(f's_waitcnt vmcnt({(NS - 2) * n})')
    A('s_barrier')
    issue()
    A('s_sub_u32 s11, s11, 1')
    A('s_cmp_lg_u32 s11, 0')
    A(f's_cbranch_scc1 {L}')
    for i in range(NS - 2, -1, -1):
        A(f's_waitcnt vmcnt({i * n})')
        A('s_barrier')
    stamp(A, 4)
    A('s_barrier')
    stamp(A, 5)
    if NL > 4 and gen_k1.STAMPS:
        A('s_cmp_ge_u32 s5, 4')
        A('s_cbranch_scc1 K3_lend')
    stamp_flush(A, 6, 2, waveadd=4)
    A('K3_lend:')
    A('s_endpgm')


def k3_compute(A):
    t0, t1, t2, t3, r16, g = XF, XF + 1, XF + 2, XF + 3, XF + 4, XF + 5
    A(f'v_and_b32 v{r16}, 15, v{vLANE}')
    A(f'v_lshrrev_b32 v{g}, 4, v{vLANE}')
    A(f's_lshl_b32 s9, s{sWM}, 13')
    A(f'v_lshlrev_b32 v{t0}, 4, v{r16}')
    A(f'v_add_u32 v{t0}, s9, v{t0}')
    A(f'v_and_b32 v{t1}, 1, v{g}')
    A(f'v_lshl_add_u32 v{t0}, v{t1}, 10, v{t0}')
    A(f'v_lshrrev_b32 v{t1}, 1, v{g}')
    A(f'v_lshl_add_u32 v{vXA}, v{t1}, 9, v{t0}')
    A(f'v_add_u32 v{vXA + 1}, 2048, v{vXA}')
    A(f'v_bfe_u32 v{t0}, v{vLANE}, 2, 2')
    A(f'v_and_b32 v{t2}, 1, v{g}')
    A(f'v_lshl_add_u32 v{t1}, v{t2}, 4, v{t0}')
    A(f'v_lshrrev_b32 v{t3}, 1, v{g}')
    A(f'v_lshl_add_u32 v{t1}, v{t3}, 2, v{t1}')
    A(f'v_lshl_add_u32 v{t0}, v{t2}, 2, v{t0}')
    A(f'v_and_b32 v{t3}, 3, v{vLANE}')
    A(f'v_lshlrev_b32 v{t3}, 3, v{t3}')
    A(f'v_lshl_add_u32 v{t1}, v{t1}, 8, v{t3}')
    A(f'v_add_u32 v{t1}, {LWO}, v{t1}')
    A(f's_lshl_b32 s9, s{sWN}, 2')
    A(f'v_xor_b32 v{t0}, s9, v{t0}')
    for nb in range(4):
        A(f'v_xor_b32 v{t2}, {nb}, v{t0}')
        A(f'v_lshl_add_u32 v{vWA + nb}, v{t2}, 5, v{t1}')
    vo = 10
    A(f'v_lshlrev_b32 v{vo}, 12, v{r16}')
    A(f'v_and_b32 v{t2}, 1, v{g}')
    A(f'v_lshl_add_u32 v{vo}, v{t2}, 5, v{vo}')
    A(f'v_lshrrev_b32 v{t2}, 1, v{g}')
    A(f'v_lshl_add_u32 v{vo}, v{t2}, 4, v{vo}')
    A('s_lshl_b32 s14, s6, 19')
    A(f's_lshl_b32 s9, s{sWM}, 18')
    A('s_add_u32 s14, s14, s9')
    A('s_lshl_b32 s9, s8, 11')
    A('s_add_u32 s14, s14, s9')
    A('s_lshl_b32 s9, s7, 8')
    A('s_add_u32 s14, s14, s9')
    A(f's_lshl_b32 s9, s{sWN}, 7')
    A('s_add_u32 s14, s14, s9')
    for r in range(ACC, ACC + 64):
        A(f'v_mov_b32 v{r}, 0')
    A(f's_mov_b32 s{sCnt}, 0')
    A(f's_mov_b32 s15, {(-(NS - 1) * STG) & 0xffffffff}')
    stamp(A, 1)
    A('s_barrier')
    stamp(A, 2)
    if gen_k1.STAMPS: A('s_waitcnt lgkmcnt(0)')
    for r in reads(0): A(r)
    A('s_mov_b32 s11, 16')
    L = A.label('K3C')
    A('.p2align 6')
    A(f'{L}:')
    kstep(A)
    A('s_sub_u32 s11, s11, 1')
    A('s_cmp_lg_u32 s11, 0')
    A(f's_cbranch_scc1 {L}')
    stamp(A, 3)
    A('s_waitcnt lgkmcnt(0)')
    k = 0
    for mb in range(4):
        for pr in range(2):
            tmp = XF + (k % 8) * 4
            k += 1
            for x in range(2):
                A(cvtpk(tmp + x, acc(mb, 2 * pr) + 2 * x))
                A(cvtpk(tmp + 2 + x, acc(mb, 2 * pr + 1) + 2 * x))
            for x in range(2):
                A(f'v_permlane16_swap_b32 v{tmp + x}, v{tmp + 2 + x}')
            A(f'buffer_store_dwordx4 {vr(tmp, 4)}, v{vo}, {sr(sO, 4)}, s14 offen offset:{pr * 64}')
        if mb < 3: A('s_add_u32 s14, s14, 65536')
    stamp(A, 4)
    if gen_k1.STAMPS: A('s_waitcnt vmcnt(0)')
    stamp(A, 5)
    stamp_flush(A, 6, 2)
    A('s_endpgm')


def k3(A):
    A('k3_kernel:')
    A('s_cmp_ge_u32 s2, 256')
    A('s_cbranch_scc0 K3_go')
    A('s_endpgm')
    A('K3_go:')
    stamp(A, 0)
    A('s_load_dwordx2 s[16:17], s[0:1], 24')
    A('s_load_dwordx4 s[20:23], s[0:1], 64')
    A('s_load_dwordx2 s[32:33], s[0:1], 88')
    A('v_lshrrev_b32 v1, 6, v0')
    A(f'v_and_b32 v{vLANE}, 63, v0')
    A('v_readfirstlane_b32 s5, v1')
    A('s_bfe_u32 s8, s2, 0x10002')
    A('s_and_b32 s6, s2, 3')
    A('s_lshl_b32 s6, s6, 2')
    A('s_bfe_u32 s9, s2, 0x20003')
    A('s_add_u32 s6, s6, s9')
    A('s_lshr_b32 s7, s2, 5')
    A(f's_bfe_u32 s{sWM}, s5, 0x10001')
    A(f's_and_b32 s{sWN}, s5, 1')
    A('s_lshl_b32 s9, s6, 18')
    A('s_lshl_b32 s10, s8, 22')
    A('s_add_u32 s9, s9, s10')
    A(f's_add_u32 s9, s9, {OA}')
    A('s_waitcnt lgkmcnt(0)')
    A('s_cmp_eq_u32 s8, 0')
    A('s_cselect_b32 s16, s16, s20')
    A('s_cselect_b32 s17, s17, s21')
    make_srd(A, sW, 's16', 's17', 0x200000)
    make_srd(A, sO, 's22', 's23', 0x800000)
    make_srd(A, sWS, 's32', 's33', WS_SIZE)
    A('s_add_u32 s32, s32, s9')
    A('s_addc_u32 s33, s33, 0')
    make_srd(A, sX, 's32', 's33', 0x40000)
    A('s_cmp_ge_u32 s5, 4')
    A('s_cbranch_scc1 K3_loader')
    k3_compute(A)
    A('K3_loader:')
    k3_loader(A)
```

```python
import sys, os, re
STDEF={'1':'sc0 sc1','2':'sc0 sc1','3':''}
from asmlib import Asm
import gen_k1
NAME='concat_heads__linear_kernel_hedgehog__grouped_kv_mqa__prompt'
REF=open(f'cdna_kernels/{NAME}.s.ref').read().split('\n')
def desc(name, vgpr, sgpr=96):
    acc=(vgpr+3)//4*4
    return f""".section .rodata,"a"
.p2align 6
.amdhsa_kernel {name}
  .amdhsa_next_free_vgpr {vgpr}
  .amdhsa_next_free_sgpr {sgpr}
  .amdhsa_accum_offset {acc}
  .amdhsa_group_segment_fixed_size 0
  .amdhsa_kernarg_size 96
  .amdhsa_user_sgpr_count 2
  .amdhsa_user_sgpr_kernarg_segment_ptr 1
  .amdhsa_system_sgpr_workgroup_id_x 1
.end_amdhsa_kernel
"""
def build(stages, out):
    ks=[]
    if 1 in stages: ks.append(('k1_kernel', gen_k1.k1, 256, 512, gen_k1.K1_LDS, 256))
    if 2 in stages:
        import gen_k2
        ks.append(('k2_kernel', gen_k2.k2, 256, 512, gen_k2.K2_LDS, gen_k2.K2_VGPR))
    if 3 in stages:
        import gen_k3
        ks.append(('k3_kernel', gen_k3.k3, 256, gen_k3.K3_THREADS, gen_k3.K3_LDS, gen_k3.K3_VGPR))
    head=[l for l in REF if l.startswith(';') and '@launch' not in l and not l.startswith('; Override') and not l.startswith('; grid=')]
    head=head[:13]
    txt='\n'.join(head)+'\n'
    for n,f,g,b,l,v in ks:
        txt+=f'; @launch kernel={n} grid=({g},1,1) block=({b},1,1) lds={l}\n'
    txt+='.amdgcn_target "amdgcn-amd-amdhsa--gfx950"\n'
    nprob=0
    for n,f,g,b,l,v in ks:
        A=Asm()
        f(A)
        nprob+=len(A.verify())
        body=A.text()
        mod=os.environ.get('ST'+n[1], STDEF[n[1]])
        if mod: body=re.sub(r'(?m)^(  buffer_store_dwordx4 [^;\n]*?)\s*$', lambda m: m.group(1)+' '+mod, body)
        txt+=f'.text\n.globl {n}\n.p2align 8\n.type {n},@function\n'+body
        txt+=desc(n,v)
    open(out,'w').write(txt)
    return nprob
if __name__=='__main__':
    import os
    gen_k1.STAMPS=int(os.environ.get('STAMPS','0'))
    st=[int(c) for c in (sys.argv[1] if len(sys.argv)>1 else '123')]
    out=sys.argv[2] if len(sys.argv)>2 else f'cdna_kernels/{NAME}.s'
    sys.exit(1 if build(st,out) else 0)
```

```python
import os
from gen_k1 import make_srd, WS_SIZE, MB
FLG = 14 * MB
K0W = int(os.environ.get('K0W', '0'))

def k0(A):
    A('k0_kernel:')
    A('s_cmp_ge_u32 s2, 256')
    A('s_cbranch_scc0 K0_go')
    A('s_endpgm')
    A('K0_go:')
    A('s_load_dwordx16 s[16:31], s[0:1], 0')
    A('s_load_dwordx8 s[32:39], s[0:1], 64')
    A('v_lshlrev_b32 v1, 2, v0')
    A('v_mov_b32 v2, 0')
    A('s_lshl_b32 s3, s2, 8')
    A(f's_add_u32 s3, s3, {FLG}')
    A('s_waitcnt lgkmcnt(0)')
    make_srd(A, 40, 's38', 's39', WS_SIZE)
    A('buffer_store_dword v2, v1, s[40:43], s3 offen')
    if K0W:
        A('v_lshlrev_b32 v3, 20, v0')
        A('s_lshl_b32 s4, s2, 8')
        sizes = [4, 6, 0, 2, 4, 2, 0, 0, 2, 8]
        k = 0
        for i, sz in enumerate(sizes):
            if not sz: continue
            make_srd(A, 44 + 4 * (k & 3), f's{16 + 2 * i}', f's{17 + 2 * i}', sz * MB)
            A(f'buffer_load_dword v{4 + k}, v3, s[{44 + 4 * (k & 3)}:{47 + 4 * (k & 3)}], s4 offen')
            k += 1
        make_srd(A, 44, 's38', 's39', 40 * MB)
        A(f'buffer_load_dword v{4 + k}, v3, s[44:47], s4 offen')
        A('s_waitcnt vmcnt(0)')
    A('s_endpgm')
```

```python
from asmlib import Asm

MB = 1 << 20
QA = 0
QB = 4 * MB
KV = 8 * MB
KVP = 9 * MB
ZP = 13 * MB
KN = 13 * MB + 256 * 1024
VM = KN + 256
WPF = 13 * MB + 512 * 1024
OA = 16 * MB
OB = 20 * MB
PHQ = 32 * MB
WS_SIZE = 0x10000000
LOG2E = 0x3fb8aa3b
KSCALE = 1.4426950408889634 / (32 ** 0.5)


def f32bits(x):
    import struct
    return struct.unpack('<I', struct.pack('<f', x))[0]


def vr(a, n=1):
    return f'v{a}' if n == 1 else f'v[{a}:{a + n - 1}]'


def sr(a, n=1):
    return f's{a}' if n == 1 else f's[{a}:{a + n - 1}]'


def mfma32(d, a, b, c=None):
    cs = vr(d, 16) if c is None else (c if isinstance(c, str) else vr(c, 16))
    return f'v_mfma_f32_32x32x16_bf16 {vr(d, 16)}, {vr(a, 4)}, {vr(b, 4)}, {cs}'


def mfma16(d, a, b, c=None):
    cs = vr(d, 4) if c is None else (c if isinstance(c, str) else vr(c, 4))
    return f'v_mfma_f32_16x16x32_bf16 {vr(d, 4)}, {vr(a, 4)}, {vr(b, 4)}, {cs}'


def cvtpk(d, a, b=None):
    b = a + 1 if b is None else b
    return f'v_cvt_pk_bf16_f32 v{d}, v{a}, v{b}'


def make_srd(A, s, lo, hi, size):
    A(f's_mov_b32 s{s}, {lo}')
    A(f's_and_b32 s{s + 1}, {hi}, 0xffff')
    A(f's_mov_b32 s{s + 2}, {size}')
    A(f's_mov_b32 s{s + 3}, 0x00020000')


def emit_selector(A, vsel, lane, t0, t1):
    A(f'v_lshrrev_b32 v{t0}, 4, v{lane}')
    A(f'v_lshrrev_b32 v{t1}, 2, v{lane}')
    A(f'v_xor_b32 v{t0}, v{t0}, v{t1}')
    A(f'v_and_b32 v{t0}, 1, v{t0}')
    A(f'v_cmp_eq_u32 vcc, 0, v{t0}')
    A(f'v_mov_b32 v{t1}, 0x3f803f80')
    A(f'v_cndmask_b32 v{vsel}, 0, v{t1}, vcc')
    for k in range(1, 4):
        A(f'v_mov_b32 v{vsel + k}, v{vsel}')


def dual_softmax(A, P, E, OUT, T, sC):
    mx, mn, t0, t1, sp, sn = T, T + 1, T + 2, T + 3, T + 4, T + 6
    A(f'v_max3_f32 v{mx}, v{P}, v{P + 1}, v{P + 2}')
    A(f'v_min3_f32 v{mn}, v{P}, v{P + 1}, v{P + 2}')
    for r in range(3, 15, 2):
        A(f'v_max3_f32 v{mx}, v{mx}, v{P + r}, v{P + r + 1}')
        A(f'v_min3_f32 v{mn}, v{mn}, v{P + r}, v{P + r + 1}')
    A(f'v_max_f32 v{mx}, v{mx}, v{P + 15}')
    A(f'v_min_f32 v{mn}, v{mn}, v{P + 15}')
    A(f'v_mov_b32 v{t0}, v{mx}')
    A(f'v_mov_b32 v{t1}, v{mn}')
    A(f'v_permlane32_swap_b32 v{mx}, v{t0}')
    A(f'v_permlane32_swap_b32 v{mn}, v{t1}')
    A(f'v_max_f32 v{mx}, v{mx}, v{t0}')
    A(f'v_min_f32 v{mn}, v{mn}, v{t1}')
    A(f'v_mul_f32 v{t0}, s{sC}, v{mx}')
    A(f'v_mul_f32 v{mx}, s{sC}, v{mn}')
    for r in range(0, 16, 2):
        A(f'v_pk_fma_f32 {vr(E + r, 2)}, {vr(P + r, 2)}, {sr(sC, 2)}, {vr(t0, 2)} op_sel_hi:[1,0,0] neg_lo:[0,0,1] neg_hi:[0,0,1]')
        A(f'v_pk_fma_f32 {vr(P + r, 2)}, {vr(P + r, 2)}, {sr(sC, 2)}, {vr(mx, 2)} op_sel_hi:[1,0,0] neg_lo:[1,0,0] neg_hi:[1,0,0]')
    for r in range(16):
        A(f'v_exp_f32 v{E + r}, v{E + r}')
        A(f'v_exp_f32 v{P + r}, v{P + r}')
    A(f'v_pk_add_f32 {vr(sp, 2)}, {vr(E, 2)}, {vr(E + 2, 2)}')
    A(f'v_pk_add_f32 {vr(sn, 2)}, {vr(P, 2)}, {vr(P + 2, 2)}')
    for r in range(4, 16, 2):
        A(f'v_pk_add_f32 {vr(sp, 2)}, {vr(sp, 2)}, {vr(E + r, 2)}')
        A(f'v_pk_add_f32 {vr(sn, 2)}, {vr(sn, 2)}, {vr(P + r, 2)}')
    A(f'v_add_f32 v{sp}, v{sp}, v{sp + 1}')
    A(f'v_add_f32 v{sn}, v{sn}, v{sn + 1}')
    A(f'v_mov_b32 v{sp + 1}, v{sp}')
    A(f'v_mov_b32 v{sn + 1}, v{sn}')
    A(f'v_permlane32_swap_b32 v{sp}, v{sp + 1}')
    A(f'v_permlane32_swap_b32 v{sn}, v{sn + 1}')
    A(f'v_add_f32 v{sp}, v{sp}, v{sp + 1}')
    A(f'v_add_f32 v{sn}, v{sn}, v{sn + 1}')
    A(f'v_rcp_f32 v{sp}, v{sp}')
    A(f'v_rcp_f32 v{sn}, v{sn}')
    for r in range(0, 16, 2):
        A(f'v_pk_mul_f32 {vr(E + r, 2)}, {vr(E + r, 2)}, {vr(sp, 2)} op_sel_hi:[1,0]')
        A(f'v_pk_mul_f32 {vr(P + r, 2)}, {vr(P + r, 2)}, {vr(sn, 2)} op_sel_hi:[1,0]')
    for r in range(0, 16, 2):
        A(cvtpk((E if OUT is None else OUT) + r // 2, E + r))
        A(cvtpk((P if OUT is None else OUT + 8) + r // 2, P + r))


def dpp_max_reduce(A, v):
    for ctl in ('row_shr:1', 'row_shr:2', 'row_shr:4', 'row_shr:8', 'row_bcast:15 row_mask:0xa', 'row_bcast:31 row_mask:0xc'):
        A(f'v_max_f32_dpp v{v}, v{v}, v{v} {ctl}')


STAMPS = False
STAMP_BASE = 24 * MB


def stamp(A, i):
    if STAMPS == 3:
        A(f's_memrealtime s[{70 + 2 * i}:{71 + 2 * i}]')
        A(f's_memtime s[{82 + 2 * i}:{83 + 2 * i}]')
    elif STAMPS:
        A(f's_memrealtime s[{70 + 2 * i}:{71 + 2 * i}]' if STAMPS == 2 else f's_memtime s[{70 + 2 * i}:{71 + 2 * i}]')


def stamp_flush(A, n, kidx, swave='s5', waveadd=0, srd=48):
    if not STAMPS: return
    A('s_waitcnt lgkmcnt(0)')
    A('s_lshl_b32 s68, s2, 3')
    A(f's_add_u32 s68, s68, {swave}')
    A(f's_add_u32 s68, s68, {waveadd}')
    A('s_lshl_b32 s68, s68, 6')
    A(f's_add_u32 s68, s68, {STAMP_BASE + kidx * MB}')
    A('v_mov_b32 v1, 0')
    A('s_mov_b64 exec, 1')
    for i in range(n):
        A(f'v_mov_b32 v3, s{70 + 2 * i}')
        A(f'buffer_store_dword v3, v1, s[{srd}:{srd + 3}], s68 offen offset:{4 * i}')
        if STAMPS == 3:
            A(f'v_mov_b32 v3, s{82 + 2 * i}')
            A(f'buffer_store_dword v3, v1, s[{srd}:{srd + 3}], s68 offen offset:{32 + 4 * i}')
    A('s_mov_b64 exec, -1')


LX = 0
LW = 98304
LE = 147456
K1_LDS = 159744
SCR = 32768

sX, sW, sE, sWS = 36, 40, 44, 48
sLX, sLW, sLE, sGX, sGW, sGE, sT, sLDW4, sLDW64, sT2, sT3, sT4 = 52, 53, 54, 55, 56, 57, 58, 59, 60, 61, 62, 63
sC = 64
sK, sLDWK = 66, 67
import os
ROT = int(os.environ.get('ROT', '0'))
RT = os.environ.get('RT', '0')
RT = int(RT, 16)
XPF = int(os.environ.get('XPF', '0'))
SPF = int(os.environ.get('SPF', '0'))
SPFP = int(os.environ.get('SPFP', '0'))
XP2D = int(os.environ.get('XP2D', '4'))
XP2E = [int(c) for c in os.environ.get('XP2E', '32')]
I3 = int(os.environ.get('I3', '0'))
MIX = int(os.environ.get('MIX', '1'))
RR = int(os.environ.get('RR', '0'))
RC = int(os.environ.get('RC', '0'))
PF = int(os.environ.get('PF', '0'))
PFN = int(os.environ.get('PFN', '4'))
PFL = int(os.environ.get('PFL', '0'))
PFD = int(os.environ.get('PFD', '6'))
PFB = int(os.environ.get('PFB', '2'))
XP = os.environ.get('XP', '')
sWM, sWN = 12, 13
vLANE = 2
vXA = 4
vEXA = 10
vWA = 16
vEWA = 20
XF = 24
WF = 56
EXF = 88
EWF = 96
EACC = 112
ACC = 128


def acc(mb, nb):
    return ACC + (mb * 4 + nb) * 4


def eacc(mbl, nbl):
    return EACC + (mbl * 2 + nbl) * 4


def k1_loader(A, isB):
    n = 13 if isB else 12
    vX0, vX1, vW0, vW1, vE = 4, 5, 6, 7, 8
    t0, t1, t2, t3 = 10, 11, 12, 13
    A('s_sub_u32 s5, s5, 4')
    A(f'v_lshrrev_b32 v{t0}, 3, v{vLANE}')
    A('s_lshl_b32 s9, s5, 6')
    A(f'v_add_u32 v{t0}, s9, v{t0}')
    A(f'v_lshlrev_b32 v{t0}, 11, v{t0}')
    A(f'v_lshrrev_b32 v{t1}, 4, v{vLANE}')
    A(f'v_and_b32 v{t2}, 7, v{vLANE}')
    A(f'v_xor_b32 v{t2}, v{t2}, v{t1}')
    A(f'v_lshl_add_u32 v{vX0}, v{t2}, 4, v{t0}')
    A(f'v_xor_b32 v{t2}, 4, v{t2}')
    A(f'v_lshl_add_u32 v{vX1}, v{t2}, 4, v{t0}')
    for bit, vW in ((0, vW0), (1, vW1)):
        A(f'v_bfe_u32 v{t0}, v{vLANE}, 1, 3')
        A(f'v_xor_b32 v{t0}, v{t0}, v{t1}')
        if bit: A(f'v_xor_b32 v{t0}, 4, v{t0}')
        A(f'v_mul_lo_u32 v{vW}, v{t1}, s35')
        A(f'v_bfe_u32 v{t2}, v{t0}, 1, 1')
        A(f'v_mul_lo_u32 v{t2}, v{t2}, s15')
        A(f'v_add_u32 v{vW}, v{vW}, v{t2}')
        A(f'v_lshrrev_b32 v{t2}, 2, v{t0}')
        A(f'v_mul_lo_u32 v{t2}, v{t2}, s34')
        A(f'v_add_u32 v{vW}, v{vW}, v{t2}')
        A(f'v_and_b32 v{t2}, 1, v{t0}')
        A(f'v_lshl_add_u32 v{vW}, v{t2}, 5, v{vW}')
        A(f'v_and_b32 v{t2}, 1, v{vLANE}')
        A(f'v_lshl_add_u32 v{vW}, v{t2}, 4, v{vW}')
        A(f'v_add_u32 v{vW}, s14, v{vW}')
    if isB:
        A(f'v_lshlrev_b32 v{vE}, 4, v{vLANE}')
        A(f'v_and_b32 v{t2}, 32, v{vLANE}')
        A(f'v_xor_b32 v{vE}, v{vE}, v{t2}')
    else:
        A(f'v_lshlrev_b32 v{vE}, 4, v{vLANE}')
    A(f's_lshl_b32 s{sLX}, s5, 13')
    A(f's_lshl_b32 s{sLW}, s5, 12')
    A(f's_add_u32 s{sLW}, s{sLW}, {LW}')
    A(f's_lshl_b32 s{sLE}, s5, 10')
    A(f's_mov_b32 s{sGE}, s{sLE}')
    A(f's_add_u32 s{sLE}, s{sLE}, {LE}')
    A(f's_mov_b32 s{sGX}, 0')
    A(f's_lshl_b32 s{sLDW4}, s35, 2')
    A(f's_lshl_b32 s{sLDW64}, s35, 6')
    A(f's_lshl_b32 s{sGW}, s{sLDW4}, 2')
    A(f's_mul_i32 s{sGW}, s{sGW}, s5')
    if ROT:
        if RT:
            A(f's_lshl_b32 s{sK}, s3, 2')
            A(f's_lshr_b32 s{sK}, {RT}, s{sK}')
        else:
            A(f's_mul_i32 s{sK}, s3, {ROT}')
        if RR:
            A(f's_and_b32 s{sT}, s6, 3')
            A(f's_mul_i32 s{sT}, s{sT}, {RR}')
            A(f's_add_u32 s{sK}, s{sK}, s{sT}')
        if RC:
            A(f's_and_b32 s{sT}, s7, 7')
            A(f's_mul_i32 s{sT}, s{sT}, {RC}')
            A(f's_add_u32 s{sK}, s{sK}, s{sT}')
        A(f's_and_b32 s{sK}, s{sK}, 15')
        A(f's_lshl_b32 s{sGX}, s{sK}, 7')
        A(f's_mul_i32 s{sT}, s{sK}, s{sLDW64}')
        A(f's_add_u32 s{sGW}, s{sGW}, s{sT}')
        A(f's_lshl_b32 s{sLDWK}, s35, 10')
        if isB:
            A(f's_lshl_b32 s{sT}, s{sK}, 12')
            A(f's_add_u32 s{sGE}, s{sGE}, s{sT}')
    if not isB:
        A(f's_mov_b32 m0, s{sLE}')
        A('s_nop 0')
        A(f'buffer_load_dwordx4 v{vE}, {sr(sE, 4)}, s{sGE} offen lds')
        A(f's_add_u32 m0, s{sLE}, 4096')
        A(f's_add_u32 s{sGE}, s{sGE}, 4096')
        A(f'buffer_load_dwordx4 v{vE}, {sr(sE, 4)}, s{sGE} offen lds')

    def issue():
        order = [('x', 0), ('w', 0), ('x', 1), ('x', 2), ('w', 1), ('x', 3), ('x', 4), ('w', 2), ('x', 5), ('x', 6), ('w', 3), ('x', 7)]
        if 'd' in XP: order = []
        first_w = True
        for kind, j in order:
            if kind == 'x':
                A(f's_add_u32 m0, s{sLX}, {j * 1024}')
                A(f's_add_u32 s{sT}, s{sGX}, {j * 16384}')
                A(f'buffer_load_dwordx4 v{vX0 + (j & 1)}, {sr(sX, 4)}, s{sT} offen lds')
            else:
                A(f's_add_u32 m0, s{sLW}, {j * 1024}')
                if first_w:
                    A(f's_mov_b32 s{sT2}, s{sGW}')
                    first_w = False
                else:
                    A(f's_add_u32 s{sT2}, s{sT2}, s{sLDW4}')
                A(f'buffer_load_dwordx4 v{vW0 + (j >> 1)}, {sr(sW, 4)}, s{sT2} offen lds')
        if isB:
            A(f's_mov_b32 m0, s{sLE}')
            A('s_nop 0')
            A(f'buffer_load_dwordx4 v{vE}, {sr(sE, 4)}, s{sGE} offen lds')
            A(f's_add_u32 s{sGE}, s{sGE}, 4096')
        A(f's_add_u32 s{sGX}, s{sGX}, 128')
        A(f's_add_u32 s{sGW}, s{sGW}, s{sLDW64}')
        if ROT:
            A(f's_add_u32 s{sK}, s{sK}, 1')
            A(f's_cmp_eq_u32 s{sK}, 16')
            A(f's_cselect_b32 s{sT}, 2048, 0')
            A(f's_cselect_b32 s{sT2}, s{sLDWK}, 0')
            A(f's_cselect_b32 s{sT3}, 65536, 0')
            A(f's_sub_u32 s{sGX}, s{sGX}, s{sT}')
            A(f's_sub_u32 s{sGW}, s{sGW}, s{sT2}')
            if isB: A(f's_sub_u32 s{sGE}, s{sGE}, s{sT3}')
        A(f's_add_u32 s{sLX}, s{sLX}, 32768')
        A(f's_add_u32 s{sLW}, s{sLW}, 16384')
        A(f's_add_u32 s{sLE}, s{sLE}, 4096')
        A(f's_cmp_ge_u32 s{sLX}, {LW}')
        A(f's_cselect_b32 s{sT}, 98304, 0')
        A(f's_cselect_b32 s{sT2}, 49152, 0')
        A(f's_cselect_b32 s{sT3}, 12288, 0')
        A(f's_sub_u32 s{sLX}, s{sLX}, s{sT}')
        A(f's_sub_u32 s{sLW}, s{sLW}, s{sT2}')
        A(f's_sub_u32 s{sLE}, s{sLE}, s{sT3}')

    stamp(A, 1)
    for i_ in range(2):
        issue()
        if PF and i_ + 1 == PFB: A('s_barrier')
    if I3: issue()
    stamp(A, 2)
    A(f's_waitcnt vmcnt({n * (2 if I3 else 1)})')
    stamp(A, 3)
    A('s_barrier')
    if not I3: issue()
    A('s_mov_b32 s11, 13')
    L = A.label('K1LD')
    A(f'{L}:')
    A(f's_waitcnt vmcnt({n})')
    A('s_barrier')
    issue()
    A('s_sub_u32 s11, s11, 1')
    A('s_cmp_lg_u32 s11, 0')
    A(f's_cbranch_scc1 {L}')
    A(f's_waitcnt vmcnt({n})')
    A('s_barrier')
    A('s_waitcnt vmcnt(0)')
    stamp(A, 4)
    A('s_barrier')
    A('s_barrier')
    stamp(A, 5)
    stamp_flush(A, 6, 0, waveadd=4)
    A('s_endpgm')


def rdX(stage, s, mb):
    return f'ds_read_b128 {vr(XF + 4 * mb, 4)}, v{vXA + stage * 2 + s} offset:{mb * 2048}'


def rdW(stage, s, nb, u):
    return f'ds_read_b64_tr_b16 {vr(WF + s * 16 + 4 * nb + 2 * u, 2)}, v{vWA + nb} offset:{stage * 16384 + s * 8192 + u * 1024}'


def rdEX(stage, s, mbl):
    return f'ds_read_b128 {vr(EXF + 4 * mbl, 4)}, v{vEXA + stage * 2 + s} offset:{mbl * 2048}'


def rdEW(stage, s, nbl, u):
    return f'ds_read_b64_tr_b16 {vr(EWF + s * 8 + 4 * nbl + 2 * u, 2)}, v{vEWA + nbl} offset:{stage * 4096 + s * 2048 + u * 256}'


BPOS = 6


def all_reads(stage, s, extra):
    r = [rdX(stage, s, 0)]
    for nb in range(4):
        r += [rdW(stage, s, nb, 0), rdW(stage, s, nb, 1)]
    r += [rdX(stage, s, mb) for mb in range(1, 8)]
    if extra:
        for nbl in range(2):
            r += [rdEW(stage, s, nbl, 0), rdEW(stage, s, nbl, 1)]
        r += [rdEX(stage, s, 0), rdEX(stage, s, 1)]
    return r


def kstep(A, stage, ver, last):
    extra = ver in ('qk', 'qv')
    for s in range(2):
        mf = []
        for mb in range(8):
            for nb in range(4):
                x = XF + 4 * mb; w = WF + s * 16 + 4 * nb
                normal = (ver == 'kv' and nb >= 2)
                m = mfma16(acc(mb, nb), x, w) if normal else mfma16(acc(mb, nb), w, x)
                mf.append((m, ('x', mb) if nb == 3 else None))
        if extra:
            for mbl in range(2):
                for nbl in range(2):
                    x = EXF + 4 * mbl; w = EWF + s * 8 + 4 * nbl
                    m = mfma16(eacc(mbl, nbl), x, w) if ver == 'qv' else mfma16(eacc(mbl, nbl), w, x)
                    mf.append((m, ('e', mbl) if nbl == 1 else None))
        if s == 0:
            nst, ns = stage, 1
        else:
            nst, ns = (stage + 1) % 3, 0
        none = (s == 1 and last)
        wq = []
        if not none and 'r' not in XP and 'w' not in XP:
            for nb in range(4):
                wq += [rdW(nst, ns, nb, 0), rdW(nst, ns, nb, 1)]
            if extra:
                for nbl in range(2):
                    wq += [rdEW(nst, ns, nbl, 0), rdEW(nst, ns, nbl, 1)]
        xq = []
        for k, (m, fr) in enumerate(mf):
            if s == 1 and k == BPOS:
                A('s_waitcnt lgkmcnt(0)')
                A('s_barrier')
            if 'm' not in XP: A(m)
            if fr and not none and 'r' not in XP and 'x' not in XP:
                xq.append(rdX(nst, ns, fr[1]) if fr[0] == 'x' else rdEX(nst, ns, fr[1]))
            if s == 1 and k < BPOS: continue
            if xq:
                A(xq.pop(0))
            elif wq:
                A(wq.pop(0))
        for r in xq + wq: A(r)


def k1_compute(A, ver):
    extra = ver in ('qk', 'qv')
    t0, t1, t2, t3 = XF, XF + 1, XF + 2, XF + 3
    r16, g = XF + 4, XF + 5
    A(f'v_and_b32 v{r16}, 15, v{vLANE}')
    A(f'v_lshrrev_b32 v{g}, 4, v{vLANE}')
    A(f's_lshl_b32 s9, s{sWM}, 14')
    A(f'v_lshlrev_b32 v{t0}, 7, v{r16}')
    A(f'v_add_u32 v{t0}, s9, v{t0}')
    A(f'v_lshrrev_b32 v{t1}, 1, v{r16}')
    A(f'v_xor_b32 v{t1}, v{t1}, v{g}')
    for s in range(2):
        A(f'v_xor_b32 v{t2}, {4 * s}, v{t1}')
        A(f'v_lshl_add_u32 v{vXA + s}, v{t2}, 4, v{t0}')
        A(f'v_add_u32 v{vXA + 2 + s}, 0x8000, v{vXA + s}')
        A(f'v_add_u32 v{vXA + 4 + s}, 0x10000, v{vXA + s}')
    if extra:
        A('s_and_b32 s9, s7, 7')
        A('s_lshr_b32 s9, s9, 1')
        A('s_lshl_b32 s9, s9, 1')
        A('s_add_u32 s9, s9, s5')
        A(f's_mov_b32 s{sT4}, s9')
        A('s_lshl_b32 s9, s9, 12')
        for k in range(6):
            A(f'v_add_u32 v{vEXA + k}, s9, v{vXA + k}')
    A(f'v_bfe_u32 v{t0}, v{vLANE}, 2, 2')
    A(f'v_lshl_add_u32 v{t1}, v{g}, 3, v{t0}')
    A(f'v_and_b32 v{t2}, 1, v{g}')
    A(f'v_lshl_add_u32 v{t0}, v{t2}, 2, v{t0}')
    A(f'v_and_b32 v{t3}, 3, v{vLANE}')
    A(f'v_lshlrev_b32 v{t3}, 3, v{t3}')
    if extra:
        A(f'v_lshl_add_u32 v{vEWA}, v{t1}, 6, v{t3}')
        A(f'v_add_u32 v{vEWA}, {LE}, v{vEWA}')
        A(f'v_lshl_add_u32 v{vEWA}, v{t2}, 5, v{vEWA}')
        A(f'v_xor_b32 v{vEWA + 1}, 32, v{vEWA}')
    A(f'v_lshl_add_u32 v{t1}, v{t1}, 8, v{t3}')
    A(f'v_add_u32 v{t1}, {LW}, v{t1}')
    A(f's_lshl_b32 s9, s{sWN}, 2')
    A(f'v_xor_b32 v{t0}, s9, v{t0}')
    for nb in range(4):
        A(f'v_xor_b32 v{t2}, {nb}, v{t0}')
        A(f'v_lshl_add_u32 v{vWA + nb}, v{t2}, 5, v{t1}')
    for r in range(EACC if extra else ACC, 256):
        A(f'v_mov_b32 v{r}, 0')
    stamp(A, 1)
    if PF: k1_prefetch_issue(A)
    A('s_barrier')
    stamp(A, 2)
    if SPF & 4: A('buffer_load_dword v0, v1, s[16:19], s20 offen')
    if SPF & 8: A('buffer_load_dword v0, v1, s[16:19], s21 offen')
    cap = []
    kstep(cap.append, 2, ver, False)
    cap = cap[cap.index('s_barrier'):]
    for r in cap:
        if r.startswith('ds_read'): A(r)
    A('s_mov_b32 s11, 5')
    L = A.label('K1C')
    A('.p2align 6')
    A(f'{L}:')
    if XPF and not extra:
        Ls = A.label('K1XS')
        A('s_cmp_lg_u32 s11, s21')
        A(f's_cbranch_scc1 {Ls}')
        A('buffer_load_dword v0, v1, s[16:19], 0 offen')
        A(f'{Ls}:')
    for st in range(3):
        if PF and PFL and st == PFL - 1:
            A('s_add_u32 s21, s21, 3')
            A(f's_add_u32 s22, s21, {PFD - 3}')
            A('s_and_b32 s22, s22, 15')
            A('s_mul_i32 s22, s22, s20')
            A(f'buffer_load_dword v3, v1, s[16:19], s22 offen')
        if XP2D: xpf2_step(A)
        kstep(A, st, ver, False)
    A('s_sub_u32 s11, s11, 1')
    A('s_cmp_lg_u32 s11, 0')
    A(f's_cbranch_scc1 {L}')
    kstep(A, 0, ver, True)
    stamp(A, 3)
    def fin():
        stamp(A, 4)
        if STAMPS: A('s_waitcnt vmcnt(0)')
        stamp(A, 5)
        stamp_flush(A, 6, 0)
        A('s_endpgm')
    if ver == 'kv':
        k1_epi_kv(A)
    else:
        if ver == 'q':
            A('s_cmp_lt_u32 s7, 24')
            A('s_cbranch_scc1 K1_phi')
        k1_epi_q(A, ver)
    fin()
    if ver == 'q':
        A('K1_phi:')
        A('s_nop 15')
        if PF: A('s_waitcnt vmcnt(0)')
        if STAMPS: A('s_waitcnt lgkmcnt(0)')
        k1_epi_phi(A)
        fin()


def wph_addr(A, aP, hh, t0, t1, t2, t3, sh):
    A(f'v_bfe_u32 v{t0}, v{vLANE}, 2, 2')
    A(f'v_lshl_add_u32 v{t1}, v{hh}, 3, v{t0}')
    A(f'v_bfe_u32 v{t2}, v{vLANE}, 4, 1')
    A(f'v_and_b32 v{t3}, 3, v{vLANE}')
    A(f'v_lshl_add_u32 v{t3}, v{t2}, 2, v{t3}')
    A(f'v_lshlrev_b32 v{aP}, 3, v{t3}')
    A(f'v_lshl_add_u32 v{aP}, v{t1}, 6, v{aP}')
    A(f's_lshl_b32 s9, s{sWN}, {sh}')
    A(f's_add_u32 s9, s9, {LE}')
    A(f'v_add_u32 v{aP}, s9, v{aP}')


def k1_epi_phi(A):
    vo = 3
    T = (4, 12); KF = (52, 68); E = (20, 36, 52, 68); WPH = 100
    aP, hh, t0, t1, t2, t3 = 116, 117, 118, 119, 120, 121
    PK = lambda i, jn: ACC + 32 * i + 16 * jn
    A(f's_mov_b32 s{sC}, {LOG2E}')
    A(f's_mov_b32 s{sC + 1}, {LOG2E}')
    A(f'v_lshrrev_b32 v{hh}, 5, v{vLANE}')
    wph_addr(A, aP, hh, t0, t1, t2, t3, 12)
    for jn in range(2):
        for t in range(2):
            for u in range(2):
                A(f'ds_read_b64_tr_b16 {vr(WPH + 8 * jn + 4 * t + 2 * u, 2)}, v{aP} offset:{jn * 2048 + t * 256 + u * 1024}')
    A(f'v_lshlrev_b32 v{vo}, 4, v{vLANE}')
    A('s_and_b32 s9, s7, 7')
    A('s_lshl_b32 s9, s9, 2')
    A(f's_lshl_b32 s10, s{sWN}, 1')
    A('s_add_u32 s9, s9, s10')
    A('s_lshl_b32 s9, s9, 6')
    A('s_lshl_b32 s10, s6, 3')
    A('s_add_u32 s9, s9, s10')
    A(f's_lshl_b32 s10, s{sWM}, 2')
    A('s_add_u32 s9, s9, s10')
    A('s_lshl_b32 s9, s9, 12')
    A(f's_add_u32 s9, s9, {PHQ}')
    A('s_add_u32 s10, s9, 0x40000')
    for i in range(4):
        kf = KF[i & 1]
        for jn in range(2):
            for mbl in range(2):
                for nbl in range(2):
                    for x in range(2):
                        A(cvtpk(kf + 8 * jn + 4 * mbl + 2 * nbl + x, acc(2 * i + mbl, 2 * jn + nbl) + 2 * x))
        for jn in range(2):
            for x in range(4):
                A(f'v_permlane16_swap_b32 v{kf + 8 * jn + x}, v{kf + 8 * jn + 4 + x}')
        for t in range(2):
            for jn in range(2):
                A(mfma32(PK(i, jn), WPH + 8 * jn + 4 * t, kf + 8 * jn + 4 * t, '0' if t == 0 else None))
    pend = []
    for i in range(4):
        l = [[], []]
        for jn in range(2):
            e = E[2 * (i & 1) + jn]
            dual_softmax(l[jn].append, PK(i, jn), e, None, T[jn], sC)
        k = 0
        for a, b in zip(*l):
            A(a); A(b)
            k += 1
            if pend and k % 14 == 6: A(pend.pop(0))
        assert not pend
        for f in range(4):
            for jn in range(2):
                e = E[2 * (i & 1) + jn]
                src = (e if f < 2 else PK(i, jn)) + 4 * (f & 1)
                pend.append(f'buffer_store_dwordx4 {vr(src, 4)}, v{vo}, {sr(sWS, 4)}, s{9 + jn} offen offset:{f * 1024}')
        if i < 3:
            pend += ['s_add_u32 s9, s9, 4096', 's_add_u32 s10, s10, 4096']
            pend = pend[:7] + ['\n'.join(pend[7:])]
    for p in pend: A(p)


def k1_epi_q(A, ver):
    vo, t0, t1 = 4, 5, 6
    A(f'v_and_b32 v{t0}, 15, v{vLANE}')
    A(f'v_lshrrev_b32 v{t1}, 5, v{vLANE}')
    A(f'v_lshl_add_u32 v{t0}, v{t1}, 5, v{t0}')
    A(f'v_lshlrev_b32 v{vo}, 4, v{t0}')
    A(f'v_bfe_u32 v{t1}, v{vLANE}, 4, 1')
    A(f'v_lshl_add_u32 v{vo}, v{t1}, 10, v{vo}')
    A('s_and_b32 s9, s7, 7')
    A('s_lshl_b32 s9, s9, 2')
    A(f's_lshl_b32 s10, s{sWN}, 1')
    A('s_add_u32 s9, s9, s10')
    A('s_lshl_b32 s9, s9, 6')
    A('s_lshl_b32 s10, s6, 3')
    A('s_add_u32 s9, s9, s10')
    A(f's_lshl_b32 s10, s{sWM}, 2')
    A('s_add_u32 s9, s9, s10')
    A('s_lshl_b32 s9, s9, 11')
    A('s_add_u32 s9, s9, s8')
    k = 0
    for jn in range(2):
        for mb in range(8):
            tmp = XF + (k % 8) * 4
            k += 1
            for nbl in range(2):
                for x in range(2):
                    A(cvtpk(tmp + 2 * nbl + x, acc(mb, 2 * jn + nbl) + 2 * x))
            if mb % 4 == 0:
                A(f's_add_u32 s10, s9, {jn * 131072 + (mb >> 2) * 4096}')
            A(f'buffer_store_dwordx4 {vr(tmp, 4)}, v{vo}, {sr(sWS, 4)}, s10 offen offset:{((mb >> 1) & 1) * 2048 + (mb & 1) * 256}')
    if ver in ('qk', 'qv'):
        tmp = WF
        nr = 8
        A(f's_lshl_b32 s9, s6, 15')
        A(f's_lshl_b32 s10, s{sT4}, 11')
        A('s_add_u32 s9, s9, s10')
        A(f's_add_u32 s9, s9, {KV + (16384 if ver == "qv" else 0)}')
        if ver == 'qk':
            vk = 7
            A(f'v_and_b32 v{t0}, 4, v{vLANE}')
            A(f'v_lshlrev_b32 v{t0}, 2, v{t0}')
            A(f'v_and_b32 v{t1}, 8, v{vLANE}')
            A(f'v_lshrrev_b32 v{t1}, 1, v{t1}')
            A(f'v_or_b32 v{t0}, v{t0}, v{t1}')
            A(f'v_and_b32 v{t1}, 3, v{vLANE}')
            A(f'v_or_b32 v{t0}, v{t0}, v{t1}')
            A(f'v_and_b32 v{t1}, 32, v{vLANE}')
            A(f'v_or_b32 v{t0}, v{t0}, v{t1}')
            A(f'v_lshlrev_b32 v{vk}, 4, v{t0}')
            A(f'v_bfe_u32 v{t1}, v{vLANE}, 4, 1')
            A(f'v_lshl_add_u32 v{vk}, v{t1}, 10, v{vk}')
            A(f's_mov_b32 s10, {f32bits(KSCALE)}')
            for r in range(16):
                A(f'v_mul_f32 v{EACC + r}, s10, v{EACC + r}')
            for mbl in range(2):
                A(f'v_mul_f32 v{nr + mbl}, v{eacc(mbl, 0)}, v{eacc(mbl, 0)}')
                for r in range(1, 8):
                    A(f'v_fmac_f32 v{nr + mbl}, v{eacc(mbl, 0) + r}, v{eacc(mbl, 0) + r}')
            A(f'v_permlane16_swap_b32 v{nr}, v{nr + 1}')
            A(f'v_add_f32 v{nr}, v{nr}, v{nr + 1}')
            A(f'v_mov_b32 v{nr + 1}, v{nr}')
            A(f'v_permlane32_swap_b32 v{nr}, v{nr + 1}')
            A(f'v_add_f32 v{nr}, v{nr}, v{nr + 1}')
            for mbl in range(2):
                for nbl in range(2):
                    for x in range(2):
                        A(cvtpk(tmp + 4 * mbl + 2 * nbl + x, eacc(mbl, nbl) + 2 * x))
                A(f'buffer_store_dwordx4 {vr(tmp + 4 * mbl, 4)}, v{vk}, {sr(sWS, 4)}, s9 offen offset:{mbl * 128}')
        else:
            A(f'v_max3_f32 v{nr}, |v{EACC}|, |v{EACC + 1}|, |v{EACC + 2}|')
            for r in range(3, 15, 2):
                A(f'v_max3_f32 v{nr}, v{nr}, |v{EACC + r}|, |v{EACC + r + 1}|')
            A(f'v_max_f32 v{nr}, v{nr}, |v{EACC + 15}|')
            for nbl in range(2):
                for mbl in range(2):
                    for x in range(2):
                        A(cvtpk(tmp + 4 * nbl + 2 * mbl + x, eacc(mbl, nbl) + 2 * x))
                A(f'buffer_store_dwordx4 {vr(tmp + 4 * nbl, 4)}, v{vo}, {sr(sWS, 4)}, s9 offen offset:{nbl * 256}')
        dpp_max_reduce(A, nr)
        A('s_lshl_b32 s9, s6, 3')
        A(f's_add_u32 s9, s9, s{sT4}')
        A('s_lshl_b32 s9, s9, 2')
        A(f's_add_u32 s9, s9, {KN if ver == "qk" else VM}')
        A(f'v_mov_b32 v{nr + 1}, 0')
        A('s_mov_b32 exec_lo, 0')
        A('s_mov_b32 exec_hi, 0x80000000')
        A(f'buffer_store_dword v{nr}, v{nr + 1}, {sr(sWS, 4)}, s9 offen')
        A('s_mov_b64 exec, -1')


def k1_epi_kv(A):
    KF = 48
    VF = 80
    PHI = 48
    PHT = 64
    WPH = 112
    PK = lambda i: ACC + 32 * i
    ET = ACC + 16
    KV0 = ACC + 48
    KV1 = ACC + 80
    Z = 16
    SEL = 24
    T = 28
    aW = 36
    aR = 40
    aP = 42
    vo = 43
    t0, t1, t2, t3 = 44, 45, 46, 47
    l31, hh = 4, 5
    A(f's_mov_b32 s{sC}, {LOG2E}')
    A(f's_mov_b32 s{sC + 1}, {LOG2E}')
    A(f'v_and_b32 v{l31}, 31, v{vLANE}')
    A(f'v_lshrrev_b32 v{hh}, 5, v{vLANE}')
    wph_addr(A, aP, hh, t0, t1, t2, t3, 11)
    for t in range(2):
        for u in range(2):
            A(f'ds_read_b64_tr_b16 {vr(WPH + 4 * t + 2 * u, 2)}, v{aP} offset:{t * 256 + u * 1024}')
    A('s_lshl_b32 s9, s5, 14')
    A(f's_add_u32 s9, s9, {SCR}')
    A(f'v_lshrrev_b32 v{t2}, 1, v{t1}')
    A(f'v_xor_b32 v{t2}, v{t2}, v{t3}')
    A(f'v_lshlrev_b32 v{t1}, 6, v{t1}')
    A(f'v_add_u32 v{t1}, s9, v{t1}')
    A(f'v_lshl_add_u32 v{aR}, v{t2}, 3, v{t1}')
    A(f'v_xor_b32 v{t2}, 2, v{t2}')
    A(f'v_lshl_add_u32 v{aR + 1}, v{t2}, 3, v{t1}')
    A(f'v_add_u32 v{aR + 1}, 256, v{aR + 1}')
    A(f'v_bfe_u32 v{t0}, v{l31}, 1, 3')
    A(f'v_xor_b32 v{t0}, v{t0}, v{hh}')
    A(f'v_lshlrev_b32 v{t1}, 6, v{l31}')
    A(f'v_add_u32 v{t1}, s9, v{t1}')
    for a in range(4):
        A(f'v_xor_b32 v{t2}, {2 * a}, v{t0}')
        A(f'v_lshl_add_u32 v{aW + a}, v{t2}, 3, v{t1}')
    emit_selector(A, SEL, vLANE, t0, t1)
    A(f'v_lshlrev_b32 v{vo}, 4, v{vLANE}')
    for i in range(4):
        for mbl in range(2):
            for nbl in range(2):
                for x in range(2):
                    A(cvtpk(KF + i * 8 + 4 * mbl + 2 * nbl + x, acc(2 * i + mbl, nbl) + 2 * x))
        for mbl in range(2):
            for nbl in range(2):
                for x in range(2):
                    A(cvtpk(VF + i * 8 + 4 * nbl + 2 * mbl + x, acc(2 * i + mbl, 2 + nbl) + 2 * x))
        for x in range(4):
            A(f'v_permlane16_swap_b32 v{KF + i * 8 + x}, v{KF + i * 8 + 4 + x}')
        for x in range(4):
            A(f'v_permlane16_swap_b32 v{VF + i * 8 + x}, v{VF + i * 8 + 4 + x}')
        A(mfma32(PK(i), WPH, KF + i * 8, '0'))
        A(mfma32(PK(i), WPH + 4, KF + i * 8 + 4))
    for i in range(4):
        dual_softmax(A, PK(i), ET, PHI, T, sC)
        for fb in range(2):
            for a in range(4):
                A(f'ds_write_b64 v{aW + a}, {vr(PHI + fb * 8 + 2 * a, 2)} offset:{i * 4096 + fb * 2048}')
        for fb in range(2):
            for t in range(2):
                for u in range(2):
                    A(f'ds_read_b64_tr_b16 {vr(PHT + (fb * 2 + t) * 4 + 2 * u, 2)}, v{aR + t} offset:{i * 4096 + fb * 2048 + u * 1024}')
        for fb in range(2):
            kv = KV0 if fb == 0 else KV1
            for t in range(2):
                first = (i == 0 and t == 0)
                A(mfma32(kv, PHT + (fb * 2 + t) * 4, VF + i * 8 + 4 * t, '0' if first else None))
                A(mfma16(Z + 4 * fb, SEL, PHT + (fb * 2 + t) * 4, '0' if first else None))
    A('s_lshl_b32 s9, s7, 1')
    A(f's_add_u32 s9, s9, s{sWN}')
    A('s_lshl_b32 s9, s9, 4')
    A('s_lshl_b32 s10, s6, 1')
    A('s_add_u32 s9, s9, s10')
    A(f's_add_u32 s9, s9, s{sWM}')
    A('s_lshl_b32 s10, s9, 13')
    A(f's_add_u32 s10, s10, {KVP}')
    for fb in range(2):
        kv = KV0 if fb == 0 else KV1
        for q in range(4):
            A(f'buffer_store_dwordx4 {vr(kv + 4 * q, 4)}, v{vo}, {sr(sWS, 4)}, s10 offen offset:{q * 1024}')
        if fb == 0:
            A('s_add_u32 s10, s10, 4096')
    A('s_lshl_b32 s10, s9, 8')
    A(f's_add_u32 s10, s10, {ZP}')
    A(f'v_lshlrev_b32 v{t0}, 2, v{vLANE}')
    A('s_mov_b32 exec_hi, 0')
    for fb in range(2):
        A(f'buffer_store_dword v{Z + 4 * fb}, v{t0}, {sr(sWS, 4)}, s10 offen offset:{fb * 128}')
    A('s_mov_b64 exec, -1')


def k1_prefetch(A):
    va, t0, t1 = 4, 5, 6
    Lw = A.label('K1PW'); Lg = A.label('K1PG')
    A('s_cmp_ge_u32 s4, 16')
    A(f's_cbranch_scc1 {Lw}')
    A('s_and_b32 s9, s6, 3')
    A('s_lshl_b32 s9, s9, 19')
    A(f's_sub_u32 s16, s{sX}, s9')
    A(f's_subb_u32 s17, s{sX + 1}, 0')
    A('s_and_b32 s17, s17, 0xffff')
    A('s_mov_b32 s18, 0x200000')
    A('s_mov_b32 s19, 0x00020000')
    A('s_lshl_b32 s9, s4, 6')
    A(f'v_add_u32 v{va}, s9, v{vLANE}')
    A(f'v_lshlrev_b32 v{va}, 11, v{va}')
    A('s_movk_i32 s20, 128')
    A(f's_branch {Lg}')
    A(f'{Lw}:')
    A(f's_mov_b32 s16, s{sW}')
    A(f's_mov_b32 s17, s{sW + 1}')
    A(f's_mov_b32 s18, s{sW + 2}')
    A('s_mov_b32 s19, 0x00020000')
    A('s_sub_u32 s9, s4, 16')
    A('s_lshl_b32 s9, s9, 2')
    A(f'v_lshrrev_b32 v{t0}, 4, v{vLANE}')
    A(f'v_add_u32 v{t0}, s9, v{t0}')
    A(f'v_mul_lo_u32 v{va}, v{t0}, s35')
    A('s_lshr_b32 s9, s7, 3')
    A('s_lshl_b32 s9, s9, 10')
    A('s_add_u32 s9, s9, 2048')
    A('s_cmp_lt_u32 s7, 16')
    A('s_cselect_b32 s9, s9, 0')
    A('s_cselect_b32 s10, 11, 10')
    A(f'v_and_b32 v{t0}, 7, v{vLANE}')
    A(f'v_lshl_add_u32 v{va}, v{t0}, 7, v{va}')
    A(f'v_bfe_u32 v{t0}, v{vLANE}, 3, 1')
    A(f'v_lshlrev_b32 v{t0}, s10, v{t0}')
    A(f'v_add3_u32 v{va}, v{va}, v{t0}, s9')
    A('s_lshl_b32 s20, s35, 6')
    A(f'{Lg}:')
    A(f's_mul_i32 s21, s3, {ROT}')
    A('s_add_u32 s21, s21, s5')
    A(f'v_mov_b32 v1, v{va}')


def k1_xpf(A):
    r6, r7 = (RT >> 24) & 15, (RT >> 28) & 15
    assert r7 == (r6 + 8) & 15 and r6 == 0
    t0 = 4
    A('s_lshl_b32 s9, s3, 5')
    A('s_add_u32 s9, s9, s4')
    A('s_sub_u32 s10, s9, 96')
    A('s_cmp_ge_u32 s9, 96')
    A('s_cselect_b32 s9, s10, s9')
    A('s_cselect_b32 s16, s26, s24')
    A('s_cselect_b32 s17, s27, s25')
    A('s_cselect_b32 s18, 21, 22')
    A('s_cselect_b32 s22, 8, 16')
    A('s_cselect_b32 s23, 1, 0')
    A('s_lshl_b32 s18, 1, s18')
    A('s_and_b32 s17, s17, 0xffff')
    A('s_mov_b32 s19, 0x00020000')
    A('s_lshr_b32 s10, s9, 5')
    A('s_mul_i32 s11, s5, 3')
    A('s_add_u32 s10, s10, s11')
    A(f's_add_u32 s10, s10, {XPF}')
    A('s_sub_u32 s21, 5, s5')
    A('s_cmp_ge_u32 s10, s22')
    A('s_cselect_b32 s21, -1, s21')
    A('s_cmp_ge_u32 s3, 6')
    A('s_cselect_b32 s21, -1, s21')
    A('s_bfe_u32 s11, s9, 0x10004')
    A('s_lshl_b32 s22, s11, 3')
    A('s_add_u32 s10, s10, s22')
    A('s_and_b32 s10, s10, 15')
    A('s_and_b32 s9, s9, 15')
    A('s_cmp_eq_u32 s23, 1')
    Lw = A.label('K1XW'); Lg = A.label('K1XG')
    A(f's_cbranch_scc1 {Lw}')
    A('s_lshl_b32 s11, s11, 4')
    A('s_add_u32 s9, s9, s11')
    A('s_lshl_b32 s9, s9, 17')
    A('s_lshl_b32 s10, s10, 7')
    A('s_add_u32 s9, s9, s10')
    A(f'v_lshlrev_b32 v1, 11, v{vLANE}')
    A(f'v_add_u32 v1, s9, v1')
    A(f's_branch {Lg}')
    A(f'{Lw}:')
    A('s_lshl_b32 s10, s10, 4')
    A('s_add_u32 s9, s9, s10')
    A('s_lshl_b32 s9, s9, 13')
    A(f'v_lshrrev_b32 v1, 4, v{vLANE}')
    A(f'v_lshlrev_b32 v1, 11, v1')
    A(f'v_and_b32 v{t0}, 15, v{vLANE}')
    A(f'v_lshl_add_u32 v1, v{t0}, 7, v1')
    A(f'v_add_u32 v1, s9, v1')
    A(f'{Lg}:')


def k1_spf(A):
    A('s_lshl_b32 s9, s2, 2')
    A('s_add_u32 s9, s9, s5')
    if SPFP:
        A('s_lshl_b32 s9, s3, 7')
        A('s_lshl_b32 s10, s4, 2')
        A('s_add_u32 s9, s9, s10')
        A('s_add_u32 s9, s9, s5')
    A('s_mov_b32 s10, s9')
    A('s_mov_b32 s22, s16')
    A('s_mov_b32 s23, s17')
    A('s_mov_b32 s11, 0x400000')
    for lim, (lo, hi, sz) in ((256, (18, 19, 0x600000)), (640, (24, 25, 0x400000)), (896, (26, 27, 0x200000))):
        A(f's_sub_u32 s21, s9, {lim}')
        A(f's_cmp_ge_u32 s9, {lim}')
        A('s_cselect_b32 s10, s21, s10')
        A(f's_cselect_b32 s22, s{lo}, s22')
        A(f's_cselect_b32 s23, s{hi}, s23')
        A(f's_cselect_b32 s11, {sz}, s11')
    A('s_mov_b32 s16, s22')
    A('s_and_b32 s17, s23, 0xffff')
    A('s_mov_b32 s18, s11')
    A('s_mov_b32 s19, 0x00020000')
    A('s_lshl_b32 s20, s10, 14')
    A('s_add_u32 s21, s20, 8192')
    A(f'v_lshlrev_b32 v1, 7, v{vLANE}')
    if SPF & 1: A('buffer_load_dword v0, v1, s[16:19], s20 offen')
    if SPF & 2: A('buffer_load_dword v0, v1, s[16:19], s21 offen')


def k1_xpf2(A):
    t0 = 4
    A('s_lshl_b32 s9, s2, 2')
    A('s_add_u32 s9, s9, s5')
    A('s_lshr_b32 s21, s9, 7')
    A('s_and_b32 s9, s9, 127')
    A(f's_add_u32 s10, s21, {XP2D}')
    Lb = A.label('X2B'); Lw = A.label('X2W'); Lv = A.label('X2V'); Lg = A.label('X2G'); Lx = A.label('X2X')
    A('s_cmp_ge_u32 s9, 112')
    A(f's_cbranch_scc1 {Lv}')
    A('s_cmp_ge_u32 s9, 64')
    A(f's_cbranch_scc1 {Lw}')
    A('s_cmp_ge_u32 s9, 32')
    A('s_cselect_b32 s16, s24, s16')
    A('s_cselect_b32 s17, s25, s17')
    A('s_mov_b32 s18, 0x400000')
    A('s_and_b32 s9, s9, 31')
    A('s_lshl_b32 s9, s9, 17')
    A('s_lshl_b32 s20, s10, 7')
    A('s_add_u32 s20, s20, s9')
    A('s_movk_i32 s22, 1024')
    A(f'v_lshlrev_b32 v1, 11, v{vLANE}')
    A(f's_branch {Lg}')
    A(f'{Lw}:')
    A('s_mov_b32 s16, s18')
    A('s_mov_b32 s17, s19')
    A('s_mov_b32 s18, 0x600000')
    A('s_sub_u32 s9, s9, 64')
    A('s_lshl_b32 s9, s9, 13')
    A('s_mul_i32 s20, s10, 0x60000')
    A('s_add_u32 s20, s20, s9')
    A('s_mov_b32 s22, 0x300000')
    A(f'v_lshlrev_b32 v1, 7, v{vLANE}')
    A(f's_branch {Lg}')
    A(f'{Lv}:')
    A('s_mov_b32 s16, s26')
    A('s_mov_b32 s17, s27')
    A('s_mov_b32 s18, 0x200000')
    A('s_sub_u32 s9, s9, 112')
    A('s_lshl_b32 s9, s9, 13')
    A('s_lshl_b32 s20, s10, 17')
    A('s_add_u32 s20, s20, s9')
    A('s_mov_b32 s22, 0x100000')
    A(f'v_lshlrev_b32 v1, 7, v{vLANE}')
    A(f'{Lg}:')
    A('s_and_b32 s17, s17, 0xffff')
    A('s_mov_b32 s19, 0x00020000')
    A('s_mov_b32 s23, 0')
    for n_, ks in enumerate(XP2E):
        tw = 4 + n_
        Le = A.label('X2E')
        A(f's_cmp_lg_u32 s21, {tw}')
        A(f's_cbranch_scc1 {Le}')
        A('s_lshr_b32 s9, s22, 3')
        A(f's_mul_i32 s9, s9, {tw + XP2D - ks}')
        A('s_sub_u32 s9, s20, s9')
        A('buffer_load_dword v0, v1, s[16:19], s9 offen')
        A(f'{Le}:')


def xpf2_step(A):
    Ls = A.label('K1XS')
    A('s_cmp_lg_u32 s23, s21')
    A(f's_cbranch_scc1 {Ls}')
    A('buffer_load_dword v0, v1, s[16:19], s20 offen')
    A('s_add_u32 s20, s20, s22')
    A('s_add_u32 s21, s21, 8')
    A(f's_cmp_ge_u32 s21, {16 - XP2D}')
    A('s_cselect_b32 s21, -1, s21')
    A(f'{Ls}:')
    A('s_add_u32 s23, s23, 1')


def k1_prefetch_issue(A):
    A('s_barrier')
    for j in range(PFN):
        A(f's_add_u32 s22, s21, {4 * j + PF - 1}')
        A('s_and_b32 s22, s22, 15')
        A('s_mul_i32 s22, s22, s20')
        A(f'buffer_load_dword v3, v1, s[16:19], s22 offen')


def k1(A):
    A('k1_kernel:')
    A('s_cmp_ge_u32 s2, 256')
    A('s_cbranch_scc0 K1_go')
    A('s_endpgm')
    A('K1_go:')
    stamp(A, 0)
    A('s_load_dwordx16 s[16:31], s[0:1], 0')
    A('s_load_dwordx2 s[32:33], s[0:1], 88')
    A('v_lshrrev_b32 v1, 6, v0')
    A(f'v_and_b32 v{vLANE}, 63, v0')
    A('v_readfirstlane_b32 s5, v1')
    A('s_and_b32 s3, s2, 7')
    A('s_lshr_b32 s4, s2, 3')
    A('s_and_b32 s9, s4, 3')
    A('s_lshr_b32 s10, s4, 2')
    A('s_and_b32 s6, s3, 1')
    A('s_lshl_b32 s6, s6, 2')
    A('s_add_u32 s6, s6, s9')
    A('s_lshr_b32 s7, s3, 1')
    A('s_lshl_b32 s7, s7, 3')
    A('s_add_u32 s7, s7, s10')
    if MIX:
        A('s_mul_i32 s9, s7, 11')
        A('s_lshr_b32 s9, s9, 5')
        A('s_mul_i32 s10, s9, 3')
        A('s_sub_u32 s10, s7, s10')
        A('s_lshl_b32 s11, s9, 1')
        A('s_add_u32 s11, s11, s10')
        A('s_add_u32 s9, s9, 16')
        A('s_cmp_eq_u32 s10, 2')
        A('s_cselect_b32 s9, s9, s11')
        A('s_cmp_lt_u32 s7, 24')
        A('s_cselect_b32 s7, s9, s7')
    A(f's_bfe_u32 s{sWM}, s5, 0x10001')
    A(f's_and_b32 s{sWN}, s5, 1')
    A('s_lshl_b32 s9, s7, 7')
    A('s_add_u32 s9, s9, 2048')
    A('s_and_b32 s10, s7, 7')
    A('s_lshl_b32 s10, s10, 8')
    A('s_cmp_lt_u32 s7, 16')
    A('s_cselect_b32 s14, s9, s10')
    A('s_cselect_b32 s15, 2048, 64')
    A('s_cselect_b32 s34, 64, 128')
    A('s_cselect_b32 s11, 12, 13')
    A(f's_lshl_b32 s{sE + 2}, 1, s11')
    A('s_movk_i32 s35, 6144')
    A(f's_mov_b32 s{sW + 2}, 0x600000')
    A('s_waitcnt lgkmcnt(0)')
    A('s_cmp_ge_u32 s7, 24')
    A('s_cselect_b32 s35, 2048, s35')
    A(f's_cselect_b32 s8, {QB}, {QA}')
    A(f's_cselect_b32 s{sX}, s24, s16')
    A(f's_cselect_b32 s{sX + 1}, s25, s17')
    A(f's_cselect_b32 s{sW}, s26, s18')
    A(f's_cselect_b32 s{sW + 1}, s27, s19')
    A(f's_cselect_b32 s{sW + 2}, 0x200000, s{sW + 2}')
    A(f's_cselect_b32 s{sE + 2}, 65536, s{sE + 2}')
    A('s_lshl_b32 s9, s6, 19')
    A(f's_add_u32 s{sX}, s{sX}, s9')
    A(f's_addc_u32 s{sX + 1}, s{sX + 1}, 0')
    A(f's_and_b32 s{sX + 1}, s{sX + 1}, 0xffff')
    A(f's_mov_b32 s{sX + 2}, 0x80000')
    A(f's_mov_b32 s{sX + 3}, 0x00020000')
    A(f's_and_b32 s{sW + 1}, s{sW + 1}, 0xffff')
    A(f's_mov_b32 s{sW + 3}, 0x00020000')
    A('s_and_b32 s9, s7, 15')
    A('s_lshl_b32 s9, s9, s11')
    A('s_add_u32 s20, s20, s9')
    A('s_addc_u32 s21, s21, 0')
    A('s_bitcmp1_b32 s7, 0')
    A('s_cselect_b32 s28, s30, s28')
    A('s_cselect_b32 s29, s31, s29')
    A('s_cmp_ge_u32 s7, 24')
    A(f's_cselect_b32 s{sE}, s28, s20')
    A(f's_cselect_b32 s{sE + 1}, s29, s21')
    A(f's_and_b32 s{sE + 1}, s{sE + 1}, 0xffff')
    A(f's_mov_b32 s{sE + 3}, 0x00020000')
    make_srd(A, sWS, 's32', 's33', WS_SIZE)
    A('s_cmp_ge_u32 s5, 4')
    A('s_cbranch_scc1 K1_loader')
    if PF: k1_prefetch(A)
    if XPF: k1_xpf(A)
    if XP2D: k1_xpf2(A)
    if SPF: k1_spf(A)
    A('s_cmp_lt_u32 s7, 16')
    A('s_cbranch_scc1 K1_kv')
    A('s_cmp_lt_u32 s7, 24')
    A('s_cbranch_scc1 K1_q')
    A('s_cmp_ge_u32 s5, 2')
    A('s_cbranch_scc1 K1_q')
    if 'n' in XP: A('s_branch K1_q')
    A('s_bitcmp1_b32 s7, 0')
    A('s_cbranch_scc1 K1_qv')
    k1_compute(A, 'qk')
    A('K1_qv:')
    k1_compute(A, 'qv')
    A('K1_q:')
    k1_compute(A, 'q')
    A('K1_kv:')
    k1_compute(A, 'kv')
    A('K1_loader:')
    A('s_cmp_ge_u32 s7, 24')
    A('s_cbranch_scc1 K1_loaderB')
    k1_loader(A, False)
    A('K1_loaderB:')
    k1_loader(A, True)
```

```python
import sys, os, re
STDEF={'0':'','1':'sc0 sc1','2':'sc0 sc1','3':'sc0 sc1'}
from asmlib import Asm
import gen_k1
NAME='concat_heads__linear_kernel_hedgehog__grouped_kv_mqa__prompt'
REF=open(f'cdna_kernels/{NAME}.s.ref').read().split('\n')
def desc(name, vgpr, sgpr=96):
    acc=(vgpr+3)//4*4
    return f""".section .rodata,"a"
.p2align 6
.amdhsa_kernel {name}
  .amdhsa_next_free_vgpr {vgpr}
  .amdhsa_next_free_sgpr {sgpr}
  .amdhsa_accum_offset {acc}
  .amdhsa_group_segment_fixed_size 0
  .amdhsa_kernarg_size 96
  .amdhsa_user_sgpr_count 2
  .amdhsa_user_sgpr_kernarg_segment_ptr 1
  .amdhsa_system_sgpr_workgroup_id_x 1
.end_amdhsa_kernel
"""
def build(stages, out):
    ks=[]
    if 0 in stages:
        import gen_k0
        ks.append(('k0_kernel', gen_k0.k0, 256, 64, 0, 16))
    if 1 in stages: ks.append(('k1_kernel', gen_k1.k1, 256, 512, gen_k1.K1_LDS, 256))
    if 2 in stages:
        import gen_k2
        ks.append(('k2_kernel', gen_k2.k2, 256, 512, gen_k2.K2_LDS, gen_k2.K2_VGPR))
    if 3 in stages:
        import gen_k3
        ks.append(('k3_kernel', gen_k3.k3, 256, gen_k3.K3_THREADS, gen_k3.K3_LDS, gen_k3.K3_VGPR))
    head=[l for l in REF if l.startswith(';') and '@launch' not in l and not l.startswith('; Override') and not l.startswith('; grid=')]
    head=head[:13]
    txt='\n'.join(head)+'\n'
    for n,f,g,b,l,v in ks:
        txt+=f'; @launch kernel={n} grid=({g},1,1) block=({b},1,1) lds={l}\n'
    txt+='.amdgcn_target "amdgcn-amd-amdhsa--gfx950"\n'
    nprob=0
    for n,f,g,b,l,v in ks:
        A=Asm()
        f(A)
        nprob+=len(A.verify())
        body=A.text()
        mod=os.environ.get('ST'+n[1], STDEF[n[1]])
        if mod: body=re.sub(r'(?m)^(  buffer_store_dwordx4 [^;\n]*?)\s*$', lambda m: m.group(1)+' '+mod, body)
        txt+=f'.text\n.globl {n}\n.p2align 8\n.type {n},@function\n'+body
        txt+=desc(n,v)
    open(out,'w').write(txt)
    return nprob
if __name__=='__main__':
    import os
    gen_k1.STAMPS=int(os.environ.get('STAMPS','0'))
    st=[int(c) for c in (sys.argv[1] if len(sys.argv)>1 else '123')]
    out=sys.argv[2] if len(sys.argv)>2 else f'cdna_kernels/{NAME}.s'
    sys.exit(1 if build(st,out) else 0)
```

```python
from asmlib import Asm

MB = 1 << 20
QA = 0
QB = 4 * MB
KV = 8 * MB
KVP = 9 * MB
ZP = 13 * MB
KN = 13 * MB + 256 * 1024
VM = KN + 256
WPF = 13 * MB + 512 * 1024
OA = 16 * MB
OB = 20 * MB
PHQ = 32 * MB
WS_SIZE = 0x10000000
LOG2E = 0x3fb8aa3b
KSCALE = 1.4426950408889634 / (32 ** 0.5)


def f32bits(x):
    import struct
    return struct.unpack('<I', struct.pack('<f', x))[0]


def vr(a, n=1):
    return f'v{a}' if n == 1 else f'v[{a}:{a + n - 1}]'


def sr(a, n=1):
    return f's{a}' if n == 1 else f's[{a}:{a + n - 1}]'


def mfma32(d, a, b, c=None):
    cs = vr(d, 16) if c is None else (c if isinstance(c, str) else vr(c, 16))
    return f'v_mfma_f32_32x32x16_bf16 {vr(d, 16)}, {vr(a, 4)}, {vr(b, 4)}, {cs}'


def mfma16(d, a, b, c=None):
    cs = vr(d, 4) if c is None else (c if isinstance(c, str) else vr(c, 4))
    return f'v_mfma_f32_16x16x32_bf16 {vr(d, 4)}, {vr(a, 4)}, {vr(b, 4)}, {cs}'


def cvtpk(d, a, b=None):
    b = a + 1 if b is None else b
    return f'v_cvt_pk_bf16_f32 v{d}, v{a}, v{b}'


def make_srd(A, s, lo, hi, size):
    A(f's_mov_b32 s{s}, {lo}')
    A(f's_and_b32 s{s + 1}, {hi}, 0xffff')
    A(f's_mov_b32 s{s + 2}, {size}')
    A(f's_mov_b32 s{s + 3}, 0x00020000')


def emit_selector(A, vsel, lane, t0, t1):
    A(f'v_lshrrev_b32 v{t0}, 4, v{lane}')
    A(f'v_lshrrev_b32 v{t1}, 2, v{lane}')
    A(f'v_xor_b32 v{t0}, v{t0}, v{t1}')
    A(f'v_and_b32 v{t0}, 1, v{t0}')
    A(f'v_cmp_eq_u32 vcc, 0, v{t0}')
    A(f'v_mov_b32 v{t1}, 0x3f803f80')
    A(f'v_cndmask_b32 v{vsel}, 0, v{t1}, vcc')
    for k in range(1, 4):
        A(f'v_mov_b32 v{vsel + k}, v{vsel}')


def dual_softmax(A, P, E, OUT, T, sC):
    mx, mn, t0, t1, sp, sn = T, T + 1, T + 2, T + 3, T + 4, T + 6
    A(f'v_max3_f32 v{mx}, v{P}, v{P + 1}, v{P + 2}')
    A(f'v_min3_f32 v{mn}, v{P}, v{P + 1}, v{P + 2}')
    for r in range(3, 15, 2):
        A(f'v_max3_f32 v{mx}, v{mx}, v{P + r}, v{P + r + 1}')
        A(f'v_min3_f32 v{mn}, v{mn}, v{P + r}, v{P + r + 1}')
    A(f'v_max_f32 v{mx}, v{mx}, v{P + 15}')
    A(f'v_min_f32 v{mn}, v{mn}, v{P + 15}')
    A(f'v_mov_b32 v{t0}, v{mx}')
    A(f'v_mov_b32 v{t1}, v{mn}')
    A(f'v_permlane32_swap_b32 v{mx}, v{t0}')
    A(f'v_permlane32_swap_b32 v{mn}, v{t1}')
    A(f'v_max_f32 v{mx}, v{mx}, v{t0}')
    A(f'v_min_f32 v{mn}, v{mn}, v{t1}')
    A(f'v_mul_f32 v{t0}, s{sC}, v{mx}')
    A(f'v_mul_f32 v{mx}, s{sC}, v{mn}')
    for r in range(0, 16, 2):
        A(f'v_pk_fma_f32 {vr(E + r, 2)}, {vr(P + r, 2)}, {sr(sC, 2)}, {vr(t0, 2)} op_sel_hi:[1,0,0] neg_lo:[0,0,1] neg_hi:[0,0,1]')
        A(f'v_pk_fma_f32 {vr(P + r, 2)}, {vr(P + r, 2)}, {sr(sC, 2)}, {vr(mx, 2)} op_sel_hi:[1,0,0] neg_lo:[1,0,0] neg_hi:[1,0,0]')
    for r in range(16):
        A(f'v_exp_f32 v{E + r}, v{E + r}')
        A(f'v_exp_f32 v{P + r}, v{P + r}')
    A(f'v_pk_add_f32 {vr(sp, 2)}, {vr(E, 2)}, {vr(E + 2, 2)}')
    A(f'v_pk_add_f32 {vr(sn, 2)}, {vr(P, 2)}, {vr(P + 2, 2)}')
    for r in range(4, 16, 2):
        A(f'v_pk_add_f32 {vr(sp, 2)}, {vr(sp, 2)}, {vr(E + r, 2)}')
        A(f'v_pk_add_f32 {vr(sn, 2)}, {vr(sn, 2)}, {vr(P + r, 2)}')
    A(f'v_add_f32 v{sp}, v{sp}, v{sp + 1}')
    A(f'v_add_f32 v{sn}, v{sn}, v{sn + 1}')
    A(f'v_mov_b32 v{sp + 1}, v{sp}')
    A(f'v_mov_b32 v{sn + 1}, v{sn}')
    A(f'v_permlane32_swap_b32 v{sp}, v{sp + 1}')
    A(f'v_permlane32_swap_b32 v{sn}, v{sn + 1}')
    A(f'v_add_f32 v{sp}, v{sp}, v{sp + 1}')
    A(f'v_add_f32 v{sn}, v{sn}, v{sn + 1}')
    A(f'v_rcp_f32 v{sp}, v{sp}')
    A(f'v_rcp_f32 v{sn}, v{sn}')
    for r in range(0, 16, 2):
        A(f'v_pk_mul_f32 {vr(E + r, 2)}, {vr(E + r, 2)}, {vr(sp, 2)} op_sel_hi:[1,0]')
        A(f'v_pk_mul_f32 {vr(P + r, 2)}, {vr(P + r, 2)}, {vr(sn, 2)} op_sel_hi:[1,0]')
    for r in range(0, 16, 2):
        A(cvtpk((E if OUT is None else OUT) + r // 2, E + r))
        A(cvtpk((P if OUT is None else OUT + 8) + r // 2, P + r))


def dpp_max_reduce(A, v):
    for ctl in ('row_shr:1', 'row_shr:2', 'row_shr:4', 'row_shr:8', 'row_bcast:15 row_mask:0xa', 'row_bcast:31 row_mask:0xc'):
        A(f'v_max_f32_dpp v{v}, v{v}, v{v} {ctl}')


STAMPS = False
STAMP_BASE = 24 * MB


def stamp(A, i):
    if STAMPS == 3:
        A(f's_memrealtime s[{70 + 2 * i}:{71 + 2 * i}]')
        A(f's_memtime s[{82 + 2 * i}:{83 + 2 * i}]')
    elif STAMPS:
        A(f's_memrealtime s[{70 + 2 * i}:{71 + 2 * i}]' if STAMPS == 2 else f's_memtime s[{70 + 2 * i}:{71 + 2 * i}]')


def stamp_flush(A, n, kidx, swave='s5', waveadd=0, srd=48):
    if not STAMPS: return
    A('s_waitcnt lgkmcnt(0)')
    A('s_lshl_b32 s68, s2, 3')
    A(f's_add_u32 s68, s68, {swave}')
    A(f's_add_u32 s68, s68, {waveadd}')
    A('s_lshl_b32 s68, s68, 6')
    A(f's_add_u32 s68, s68, {STAMP_BASE + kidx * MB}')
    A('v_mov_b32 v1, 0')
    A('s_mov_b64 exec, 1')
    for i in range(n):
        A(f'v_mov_b32 v3, s{70 + 2 * i}')
        A(f'buffer_store_dword v3, v1, s[{srd}:{srd + 3}], s68 offen offset:{4 * i}')
        if STAMPS == 3:
            A(f'v_mov_b32 v3, s{82 + 2 * i}')
            A(f'buffer_store_dword v3, v1, s[{srd}:{srd + 3}], s68 offen offset:{32 + 4 * i}')
    A('s_mov_b64 exec, -1')


LX = 0
LW = 98304
LE = 147456
K1_LDS = 159744
SCR = 32768

sX, sW, sE, sWS = 36, 40, 44, 48
sLX, sLW, sLE, sGX, sGW, sGE, sT, sLDW4, sLDW64, sT2, sT3, sT4 = 52, 53, 54, 55, 56, 57, 58, 59, 60, 61, 62, 63
sC = 64
sK, sLDWK = 66, 67
import os
ROT = int(os.environ.get('ROT', '0'))
RT = os.environ.get('RT', '0')
RT = int(RT, 16)
XPF = int(os.environ.get('XPF', '0'))
SPF = int(os.environ.get('SPF', '0'))
SPFP = int(os.environ.get('SPFP', '0'))
XP2D = int(os.environ.get('XP2D', '5'))
XP2E = [int(c) for c in os.environ.get('XP2E', '432')]
I3 = int(os.environ.get('I3', '0'))
WARM = int(os.environ.get('WARM', '1'))
WARMF = int(os.environ.get('WARMF', '100'))
MIX = int(os.environ.get('MIX', '1'))
RR = int(os.environ.get('RR', '0'))
RC = int(os.environ.get('RC', '0'))
PF = int(os.environ.get('PF', '0'))
PFN = int(os.environ.get('PFN', '4'))
PFL = int(os.environ.get('PFL', '0'))
PFD = int(os.environ.get('PFD', '6'))
PFB = int(os.environ.get('PFB', '2'))
XP = os.environ.get('XP', '')
sWM, sWN = 12, 13
vLANE = 2
vXA = 4
vEXA = 10
vWA = 16
vEWA = 20
XF = 24
WF = 56
EXF = 88
EWF = 96
EACC = 112
ACC = 128


def acc(mb, nb):
    return ACC + (mb * 4 + nb) * 4


def eacc(mbl, nbl):
    return EACC + (mbl * 2 + nbl) * 4


def k1_loader(A, isB):
    n = 13 if isB else 12
    vX0, vX1, vW0, vW1, vE = 4, 5, 6, 7, 8
    t0, t1, t2, t3 = 10, 11, 12, 13
    A('s_sub_u32 s5, s5, 4')
    A(f'v_lshrrev_b32 v{t0}, 3, v{vLANE}')
    A('s_lshl_b32 s9, s5, 6')
    A(f'v_add_u32 v{t0}, s9, v{t0}')
    A(f'v_lshlrev_b32 v{t0}, 11, v{t0}')
    A(f'v_lshrrev_b32 v{t1}, 4, v{vLANE}')
    A(f'v_and_b32 v{t2}, 7, v{vLANE}')
    A(f'v_xor_b32 v{t2}, v{t2}, v{t1}')
    A(f'v_lshl_add_u32 v{vX0}, v{t2}, 4, v{t0}')
    A(f'v_xor_b32 v{t2}, 4, v{t2}')
    A(f'v_lshl_add_u32 v{vX1}, v{t2}, 4, v{t0}')
    for bit, vW in ((0, vW0), (1, vW1)):
        A(f'v_bfe_u32 v{t0}, v{vLANE}, 1, 3')
        A(f'v_xor_b32 v{t0}, v{t0}, v{t1}')
        if bit: A(f'v_xor_b32 v{t0}, 4, v{t0}')
        A(f'v_mul_lo_u32 v{vW}, v{t1}, s35')
        A(f'v_bfe_u32 v{t2}, v{t0}, 1, 1')
        A(f'v_mul_lo_u32 v{t2}, v{t2}, s15')
        A(f'v_add_u32 v{vW}, v{vW}, v{t2}')
        A(f'v_lshrrev_b32 v{t2}, 2, v{t0}')
        A(f'v_mul_lo_u32 v{t2}, v{t2}, s34')
        A(f'v_add_u32 v{vW}, v{vW}, v{t2}')
        A(f'v_and_b32 v{t2}, 1, v{t0}')
        A(f'v_lshl_add_u32 v{vW}, v{t2}, 5, v{vW}')
        A(f'v_and_b32 v{t2}, 1, v{vLANE}')
        A(f'v_lshl_add_u32 v{vW}, v{t2}, 4, v{vW}')
        A(f'v_add_u32 v{vW}, s14, v{vW}')
    if isB:
        A(f'v_lshlrev_b32 v{vE}, 4, v{vLANE}')
        A(f'v_and_b32 v{t2}, 32, v{vLANE}')
        A(f'v_xor_b32 v{vE}, v{vE}, v{t2}')
    else:
        A(f'v_lshlrev_b32 v{vE}, 4, v{vLANE}')
    A(f's_lshl_b32 s{sLX}, s5, 13')
    A(f's_lshl_b32 s{sLW}, s5, 12')
    A(f's_add_u32 s{sLW}, s{sLW}, {LW}')
    A(f's_lshl_b32 s{sLE}, s5, 10')
    A(f's_mov_b32 s{sGE}, s{sLE}')
    A(f's_add_u32 s{sLE}, s{sLE}, {LE}')
    A(f's_mov_b32 s{sGX}, 0')
    A(f's_lshl_b32 s{sLDW4}, s35, 2')
    A(f's_lshl_b32 s{sLDW64}, s35, 6')
    A(f's_lshl_b32 s{sGW}, s{sLDW4}, 2')
    A(f's_mul_i32 s{sGW}, s{sGW}, s5')
    if ROT:
        if RT:
            A(f's_lshl_b32 s{sK}, s3, 2')
            A(f's_lshr_b32 s{sK}, {RT}, s{sK}')
        else:
            A(f's_mul_i32 s{sK}, s3, {ROT}')
        if RR:
            A(f's_and_b32 s{sT}, s6, 3')
            A(f's_mul_i32 s{sT}, s{sT}, {RR}')
            A(f's_add_u32 s{sK}, s{sK}, s{sT}')
        if RC:
            A(f's_and_b32 s{sT}, s7, 7')
            A(f's_mul_i32 s{sT}, s{sT}, {RC}')
            A(f's_add_u32 s{sK}, s{sK}, s{sT}')
        A(f's_and_b32 s{sK}, s{sK}, 15')
        A(f's_lshl_b32 s{sGX}, s{sK}, 7')
        A(f's_mul_i32 s{sT}, s{sK}, s{sLDW64}')
        A(f's_add_u32 s{sGW}, s{sGW}, s{sT}')
        A(f's_lshl_b32 s{sLDWK}, s35, 10')
        if isB:
            A(f's_lshl_b32 s{sT}, s{sK}, 12')
            A(f's_add_u32 s{sGE}, s{sGE}, s{sT}')
    if not isB:
        A(f's_mov_b32 m0, s{sLE}')
        A('s_nop 0')
        A(f'buffer_load_dwordx4 v{vE}, {sr(sE, 4)}, s{sGE} offen lds')
        A(f's_add_u32 m0, s{sLE}, 4096')
        A(f's_add_u32 s{sGE}, s{sGE}, 4096')
        A(f'buffer_load_dwordx4 v{vE}, {sr(sE, 4)}, s{sGE} offen lds')

    def issue():
        order = [('x', 0), ('w', 0), ('x', 1), ('x', 2), ('w', 1), ('x', 3), ('x', 4), ('w', 2), ('x', 5), ('x', 6), ('w', 3), ('x', 7)]
        if 'd' in XP: order = []
        first_w = True
        for kind, j in order:
            if kind == 'x':
                A(f's_add_u32 m0, s{sLX}, {j * 1024}')
                A(f's_add_u32 s{sT}, s{sGX}, {j * 16384}')
                A(f'buffer_load_dwordx4 v{vX0 + (j & 1)}, {sr(sX, 4)}, s{sT} offen lds')
            else:
                A(f's_add_u32 m0, s{sLW}, {j * 1024}')
                if first_w:
                    A(f's_mov_b32 s{sT2}, s{sGW}')
                    first_w = False
                else:
                    A(f's_add_u32 s{sT2}, s{sT2}, s{sLDW4}')
                A(f'buffer_load_dwordx4 v{vW0 + (j >> 1)}, {sr(sW, 4)}, s{sT2} offen lds')
        if isB:
            A(f's_mov_b32 m0, s{sLE}')
            A('s_nop 0')
            A(f'buffer_load_dwordx4 v{vE}, {sr(sE, 4)}, s{sGE} offen lds')
            A(f's_add_u32 s{sGE}, s{sGE}, 4096')
        A(f's_add_u32 s{sGX}, s{sGX}, 128')
        A(f's_add_u32 s{sGW}, s{sGW}, s{sLDW64}')
        if ROT:
            A(f's_add_u32 s{sK}, s{sK}, 1')
            A(f's_cmp_eq_u32 s{sK}, 16')
            A(f's_cselect_b32 s{sT}, 2048, 0')
            A(f's_cselect_b32 s{sT2}, s{sLDWK}, 0')
            A(f's_cselect_b32 s{sT3}, 65536, 0')
            A(f's_sub_u32 s{sGX}, s{sGX}, s{sT}')
            A(f's_sub_u32 s{sGW}, s{sGW}, s{sT2}')
            if isB: A(f's_sub_u32 s{sGE}, s{sGE}, s{sT3}')
        A(f's_add_u32 s{sLX}, s{sLX}, 32768')
        A(f's_add_u32 s{sLW}, s{sLW}, 16384')
        A(f's_add_u32 s{sLE}, s{sLE}, 4096')
        A(f's_cmp_ge_u32 s{sLX}, {LW}')
        A(f's_cselect_b32 s{sT}, 98304, 0')
        A(f's_cselect_b32 s{sT2}, 49152, 0')
        A(f's_cselect_b32 s{sT3}, 12288, 0')
        A(f's_sub_u32 s{sLX}, s{sLX}, s{sT}')
        A(f's_sub_u32 s{sLW}, s{sLW}, s{sT2}')
        A(f's_sub_u32 s{sLE}, s{sLE}, s{sT3}')

    stamp(A, 1)
    for i_ in range(2):
        issue()
        if PF and i_ + 1 == PFB: A('s_barrier')
    if I3: issue()
    stamp(A, 2)
    A(f's_waitcnt vmcnt({n * (2 if I3 else 1)})')
    stamp(A, 3)
    A('s_barrier')
    if not I3: issue()
    A('s_mov_b32 s11, 13')
    L = A.label('K1LD')
    A(f'{L}:')
    A(f's_waitcnt vmcnt({n})')
    A('s_barrier')
    issue()
    A('s_sub_u32 s11, s11, 1')
    A('s_cmp_lg_u32 s11, 0')
    A(f's_cbranch_scc1 {L}')
    A(f's_waitcnt vmcnt({n})')
    A('s_barrier')
    A('s_waitcnt vmcnt(0)')
    stamp(A, 4)
    A('s_barrier')
    A('s_barrier')
    stamp(A, 5)
    stamp_flush(A, 6, 0, waveadd=4)
    A('s_endpgm')


def rdX(stage, s, mb):
    return f'ds_read_b128 {vr(XF + 4 * mb, 4)}, v{vXA + stage * 2 + s} offset:{mb * 2048}'


def rdW(stage, s, nb, u):
    return f'ds_read_b64_tr_b16 {vr(WF + s * 16 + 4 * nb + 2 * u, 2)}, v{vWA + nb} offset:{stage * 16384 + s * 8192 + u * 1024}'


def rdEX(stage, s, mbl):
    return f'ds_read_b128 {vr(EXF + 4 * mbl, 4)}, v{vEXA + stage * 2 + s} offset:{mbl * 2048}'


def rdEW(stage, s, nbl, u):
    return f'ds_read_b64_tr_b16 {vr(EWF + s * 8 + 4 * nbl + 2 * u, 2)}, v{vEWA + nbl} offset:{stage * 4096 + s * 2048 + u * 256}'


BPOS = 6


def all_reads(stage, s, extra):
    r = [rdX(stage, s, 0)]
    for nb in range(4):
        r += [rdW(stage, s, nb, 0), rdW(stage, s, nb, 1)]
    r += [rdX(stage, s, mb) for mb in range(1, 8)]
    if extra:
        for nbl in range(2):
            r += [rdEW(stage, s, nbl, 0), rdEW(stage, s, nbl, 1)]
        r += [rdEX(stage, s, 0), rdEX(stage, s, 1)]
    return r


def kstep(A, stage, ver, last):
    extra = ver in ('qk', 'qv')
    for s in range(2):
        mf = []
        for mb in range(8):
            for nb in range(4):
                x = XF + 4 * mb; w = WF + s * 16 + 4 * nb
                normal = (ver == 'kv' and nb >= 2)
                m = mfma16(acc(mb, nb), x, w) if normal else mfma16(acc(mb, nb), w, x)
                mf.append((m, ('x', mb) if nb == 3 else None))
        if extra:
            for mbl in range(2):
                for nbl in range(2):
                    x = EXF + 4 * mbl; w = EWF + s * 8 + 4 * nbl
                    m = mfma16(eacc(mbl, nbl), x, w) if ver == 'qv' else mfma16(eacc(mbl, nbl), w, x)
                    mf.append((m, ('e', mbl) if nbl == 1 else None))
        if s == 0:
            nst, ns = stage, 1
        else:
            nst, ns = (stage + 1) % 3, 0
        none = (s == 1 and last)
        wq = []
        if not none and 'r' not in XP and 'w' not in XP:
            for nb in range(4):
                wq += [rdW(nst, ns, nb, 0), rdW(nst, ns, nb, 1)]
            if extra:
                for nbl in range(2):
                    wq += [rdEW(nst, ns, nbl, 0), rdEW(nst, ns, nbl, 1)]
        xq = []
        for k, (m, fr) in enumerate(mf):
            if s == 1 and k == BPOS:
                A('s_waitcnt lgkmcnt(0)')
                A('s_barrier')
            if 'm' not in XP: A(m)
            if fr and not none and 'r' not in XP and 'x' not in XP:
                xq.append(rdX(nst, ns, fr[1]) if fr[0] == 'x' else rdEX(nst, ns, fr[1]))
            if s == 1 and k < BPOS: continue
            if xq:
                A(xq.pop(0))
            elif wq:
                A(wq.pop(0))
        for r in xq + wq: A(r)


def emit_warmable(A, fn, name, nparts, ret):
    cap = []
    fn(cap.append)
    if not WARM:
        for c in cap: A(c)
        return
    end = next((i for i, c in enumerate(cap) if 'exec' in c), len(cap))
    if nparts == 4: end = end * WARMF // 100
    cuts = [end * p // nparts for p in range(nparts + 1)]
    for i, c in enumerate(cap):
        if i in cuts[1:]: A(f's_cbranch_execz {ret}')
        if i in cuts[:-1]: A(f'{name}_{cuts.index(i)}:')
        A(c)
    if end == len(cap): A(f's_cbranch_execz {ret}')


def warm_dispatch(A, ver):
    ret = f'K1W_{ver}_ret'
    for v in (3, 4, 7, 9, 43, 44):
        A(f'v_mov_b32 v{v}, 0')
    A(f's_mov_b32 s{sT4}, 0')
    A('s_mov_b64 exec, 0')
    def disp(name, n):
        for p in range(1, n):
            A(f's_and_b32 s9, s5, {n - 1}')
            A(f's_cmp_eq_u32 s9, {p}')
            A(f's_cbranch_scc1 {name}_{p}')
        A(f's_branch {name}_0')
    if ver == 'q':
        A('s_cmp_lt_u32 s7, 24')
        A('s_cbranch_scc1 K1W_phi_d')
        disp('K1W_q', 2)
        A('K1W_phi_d:')
        disp('K1W_phi', 4)
    else:
        disp(f'K1W_{ver}', 4 if ver == 'kv' else 2)
    A(f'{ret}:')
    A('s_mov_b64 exec, -1')


def k1_compute(A, ver):
    extra = ver in ('qk', 'qv')
    t0, t1, t2, t3 = XF, XF + 1, XF + 2, XF + 3
    r16, g = XF + 4, XF + 5
    if WARM: warm_dispatch(A, ver)
    A(f'v_and_b32 v{r16}, 15, v{vLANE}')
    A(f'v_lshrrev_b32 v{g}, 4, v{vLANE}')
    A(f's_lshl_b32 s9, s{sWM}, 14')
    A(f'v_lshlrev_b32 v{t0}, 7, v{r16}')
    A(f'v_add_u32 v{t0}, s9, v{t0}')
    A(f'v_lshrrev_b32 v{t1}, 1, v{r16}')
    A(f'v_xor_b32 v{t1}, v{t1}, v{g}')
    for s in range(2):
        A(f'v_xor_b32 v{t2}, {4 * s}, v{t1}')
        A(f'v_lshl_add_u32 v{vXA + s}, v{t2}, 4, v{t0}')
        A(f'v_add_u32 v{vXA + 2 + s}, 0x8000, v{vXA + s}')
        A(f'v_add_u32 v{vXA + 4 + s}, 0x10000, v{vXA + s}')
    if extra:
        A('s_and_b32 s9, s7, 7')
        A('s_lshr_b32 s9, s9, 1')
        A('s_lshl_b32 s9, s9, 1')
        A('s_add_u32 s9, s9, s5')
        A(f's_mov_b32 s{sT4}, s9')
        A('s_lshl_b32 s9, s9, 12')
        for k in range(6):
            A(f'v_add_u32 v{vEXA + k}, s9, v{vXA + k}')
    A(f'v_bfe_u32 v{t0}, v{vLANE}, 2, 2')
    A(f'v_lshl_add_u32 v{t1}, v{g}, 3, v{t0}')
    A(f'v_and_b32 v{t2}, 1, v{g}')
    A(f'v_lshl_add_u32 v{t0}, v{t2}, 2, v{t0}')
    A(f'v_and_b32 v{t3}, 3, v{vLANE}')
    A(f'v_lshlrev_b32 v{t3}, 3, v{t3}')
    if extra:
        A(f'v_lshl_add_u32 v{vEWA}, v{t1}, 6, v{t3}')
        A(f'v_add_u32 v{vEWA}, {LE}, v{vEWA}')
        A(f'v_lshl_add_u32 v{vEWA}, v{t2}, 5, v{vEWA}')
        A(f'v_xor_b32 v{vEWA + 1}, 32, v{vEWA}')
    A(f'v_lshl_add_u32 v{t1}, v{t1}, 8, v{t3}')
    A(f'v_add_u32 v{t1}, {LW}, v{t1}')
    A(f's_lshl_b32 s9, s{sWN}, 2')
    A(f'v_xor_b32 v{t0}, s9, v{t0}')
    for nb in range(4):
        A(f'v_xor_b32 v{t2}, {nb}, v{t0}')
        A(f'v_lshl_add_u32 v{vWA + nb}, v{t2}, 5, v{t1}')
    for r in range(EACC if extra else ACC, 256):
        A(f'v_mov_b32 v{r}, 0')
    stamp(A, 1)
    if PF: k1_prefetch_issue(A)
    A('s_barrier')
    stamp(A, 2)
    if SPF & 4: A('buffer_load_dword v0, v1, s[16:19], s20 offen')
    if SPF & 8: A('buffer_load_dword v0, v1, s[16:19], s21 offen')
    cap = []
    kstep(cap.append, 2, ver, False)
    cap = cap[cap.index('s_barrier'):]
    for r in cap:
        if r.startswith('ds_read'): A(r)
    A('s_mov_b32 s11, 5')
    L = A.label('K1C')
    A('.p2align 6')
    A(f'{L}:')
    if XPF and not extra:
        Ls = A.label('K1XS')
        A('s_cmp_lg_u32 s11, s21')
        A(f's_cbranch_scc1 {Ls}')
        A('buffer_load_dword v0, v1, s[16:19], 0 offen')
        A(f'{Ls}:')
    for st in range(3):
        if PF and PFL and st == PFL - 1:
            A('s_add_u32 s21, s21, 3')
            A(f's_add_u32 s22, s21, {PFD - 3}')
            A('s_and_b32 s22, s22, 15')
            A('s_mul_i32 s22, s22, s20')
            A(f'buffer_load_dword v3, v1, s[16:19], s22 offen')
        if XP2D: xpf2_step(A)
        kstep(A, st, ver, False)
    A('s_sub_u32 s11, s11, 1')
    A('s_cmp_lg_u32 s11, 0')
    A(f's_cbranch_scc1 {L}')
    kstep(A, 0, ver, True)
    stamp(A, 3)
    def fin():
        stamp(A, 4)
        if STAMPS: A('s_waitcnt vmcnt(0)')
        stamp(A, 5)
        stamp_flush(A, 6, 0)
        A('s_endpgm')
    ret = f'K1W_{ver}_ret'
    if ver == 'kv':
        emit_warmable(A, k1_epi_kv, 'K1W_kv', 4, ret)
    else:
        if ver == 'q':
            A('s_cmp_lt_u32 s7, 24')
            A('s_cbranch_scc1 K1_phi')
        emit_warmable(A, lambda a: k1_epi_q(a, ver), f'K1W_{ver}', 2, ret)
    fin()
    if ver == 'q':
        A('K1_phi:')
        A('s_nop 15')
        if PF: A('s_waitcnt vmcnt(0)')
        if STAMPS: A('s_waitcnt lgkmcnt(0)')
        emit_warmable(A, k1_epi_phi, 'K1W_phi', 4, ret)
        fin()


def wph_addr(A, aP, hh, t0, t1, t2, t3, sh):
    A(f'v_bfe_u32 v{t0}, v{vLANE}, 2, 2')
    A(f'v_lshl_add_u32 v{t1}, v{hh}, 3, v{t0}')
    A(f'v_bfe_u32 v{t2}, v{vLANE}, 4, 1')
    A(f'v_and_b32 v{t3}, 3, v{vLANE}')
    A(f'v_lshl_add_u32 v{t3}, v{t2}, 2, v{t3}')
    A(f'v_lshlrev_b32 v{aP}, 3, v{t3}')
    A(f'v_lshl_add_u32 v{aP}, v{t1}, 6, v{aP}')
    A(f's_lshl_b32 s9, s{sWN}, {sh}')
    A(f's_add_u32 s9, s9, {LE}')
    A(f'v_add_u32 v{aP}, s9, v{aP}')


def k1_epi_phi(A):
    vo = 3
    T = (4, 12); KF = (52, 68); E = (20, 36, 52, 68); WPH = 100
    aP, hh, t0, t1, t2, t3 = 116, 117, 118, 119, 120, 121
    PK = lambda i, jn: ACC + 32 * i + 16 * jn
    A(f's_mov_b32 s{sC}, {LOG2E}')
    A(f's_mov_b32 s{sC + 1}, {LOG2E}')
    A(f'v_lshrrev_b32 v{hh}, 5, v{vLANE}')
    wph_addr(A, aP, hh, t0, t1, t2, t3, 12)
    for jn in range(2):
        for t in range(2):
            for u in range(2):
                A(f'ds_read_b64_tr_b16 {vr(WPH + 8 * jn + 4 * t + 2 * u, 2)}, v{aP} offset:{jn * 2048 + t * 256 + u * 1024}')
    A(f'v_lshlrev_b32 v{vo}, 4, v{vLANE}')
    A('s_and_b32 s9, s7, 7')
    A('s_lshl_b32 s9, s9, 2')
    A(f's_lshl_b32 s10, s{sWN}, 1')
    A('s_add_u32 s9, s9, s10')
    A('s_lshl_b32 s9, s9, 6')
    A('s_lshl_b32 s10, s6, 3')
    A('s_add_u32 s9, s9, s10')
    A(f's_lshl_b32 s10, s{sWM}, 2')
    A('s_add_u32 s9, s9, s10')
    A('s_lshl_b32 s9, s9, 12')
    A(f's_add_u32 s9, s9, {PHQ}')
    A('s_add_u32 s10, s9, 0x40000')
    for i in range(4):
        kf = KF[i & 1]
        for jn in range(2):
            for mbl in range(2):
                for nbl in range(2):
                    for x in range(2):
                        A(cvtpk(kf + 8 * jn + 4 * mbl + 2 * nbl + x, acc(2 * i + mbl, 2 * jn + nbl) + 2 * x))
        for jn in range(2):
            for x in range(4):
                A(f'v_permlane16_swap_b32 v{kf + 8 * jn + x}, v{kf + 8 * jn + 4 + x}')
        for t in range(2):
            for jn in range(2):
                A(mfma32(PK(i, jn), WPH + 8 * jn + 4 * t, kf + 8 * jn + 4 * t, '0' if t == 0 else None))
    pend = []
    for i in range(4):
        l = [[], []]
        for jn in range(2):
            e = E[2 * (i & 1) + jn]
            dual_softmax(l[jn].append, PK(i, jn), e, None, T[jn], sC)
        k = 0
        for a, b in zip(*l):
            A(a); A(b)
            k += 1
            if pend and k % 14 == 6: A(pend.pop(0))
        assert not pend
        for f in range(4):
            for jn in range(2):
                e = E[2 * (i & 1) + jn]
                src = (e if f < 2 else PK(i, jn)) + 4 * (f & 1)
                pend.append(f'buffer_store_dwordx4 {vr(src, 4)}, v{vo}, {sr(sWS, 4)}, s{9 + jn} offen offset:{f * 1024}')
        if i < 3:
            pend += ['s_add_u32 s9, s9, 4096', 's_add_u32 s10, s10, 4096']
            pend = pend[:7] + ['\n'.join(pend[7:])]
    for p in pend: A(p)


def k1_epi_q(A, ver):
    vo, t0, t1 = 4, 5, 6
    A(f'v_and_b32 v{t0}, 15, v{vLANE}')
    A(f'v_lshrrev_b32 v{t1}, 5, v{vLANE}')
    A(f'v_lshl_add_u32 v{t0}, v{t1}, 5, v{t0}')
    A(f'v_lshlrev_b32 v{vo}, 4, v{t0}')
    A(f'v_bfe_u32 v{t1}, v{vLANE}, 4, 1')
    A(f'v_lshl_add_u32 v{vo}, v{t1}, 10, v{vo}')
    A('s_and_b32 s9, s7, 7')
    A('s_lshl_b32 s9, s9, 2')
    A(f's_lshl_b32 s10, s{sWN}, 1')
    A('s_add_u32 s9, s9, s10')
    A('s_lshl_b32 s9, s9, 6')
    A('s_lshl_b32 s10, s6, 3')
    A('s_add_u32 s9, s9, s10')
    A(f's_lshl_b32 s10, s{sWM}, 2')
    A('s_add_u32 s9, s9, s10')
    A('s_lshl_b32 s9, s9, 11')
    A('s_add_u32 s9, s9, s8')
    k = 0
    for jn in range(2):
        for mb in range(8):
            tmp = XF + (k % 8) * 4
            k += 1
            for nbl in range(2):
                for x in range(2):
                    A(cvtpk(tmp + 2 * nbl + x, acc(mb, 2 * jn + nbl) + 2 * x))
            if mb % 4 == 0:
                A(f's_add_u32 s10, s9, {jn * 131072 + (mb >> 2) * 4096}')
            A(f'buffer_store_dwordx4 {vr(tmp, 4)}, v{vo}, {sr(sWS, 4)}, s10 offen offset:{((mb >> 1) & 1) * 2048 + (mb & 1) * 256}')
    if ver in ('qk', 'qv'):
        tmp = WF
        nr = 8
        A(f's_lshl_b32 s9, s6, 15')
        A(f's_lshl_b32 s10, s{sT4}, 11')
        A('s_add_u32 s9, s9, s10')
        A(f's_add_u32 s9, s9, {KV + (16384 if ver == "qv" else 0)}')
        if ver == 'qk':
            vk = 7
            A(f'v_and_b32 v{t0}, 4, v{vLANE}')
            A(f'v_lshlrev_b32 v{t0}, 2, v{t0}')
            A(f'v_and_b32 v{t1}, 8, v{vLANE}')
            A(f'v_lshrrev_b32 v{t1}, 1, v{t1}')
            A(f'v_or_b32 v{t0}, v{t0}, v{t1}')
            A(f'v_and_b32 v{t1}, 3, v{vLANE}')
            A(f'v_or_b32 v{t0}, v{t0}, v{t1}')
            A(f'v_and_b32 v{t1}, 32, v{vLANE}')
            A(f'v_or_b32 v{t0}, v{t0}, v{t1}')
            A(f'v_lshlrev_b32 v{vk}, 4, v{t0}')
            A(f'v_bfe_u32 v{t1}, v{vLANE}, 4, 1')
            A(f'v_lshl_add_u32 v{vk}, v{t1}, 10, v{vk}')
            A(f's_mov_b32 s10, {f32bits(KSCALE)}')
            for r in range(16):
                A(f'v_mul_f32 v{EACC + r}, s10, v{EACC + r}')
            for mbl in range(2):
                A(f'v_mul_f32 v{nr + mbl}, v{eacc(mbl, 0)}, v{eacc(mbl, 0)}')
                for r in range(1, 8):
                    A(f'v_fmac_f32 v{nr + mbl}, v{eacc(mbl, 0) + r}, v{eacc(mbl, 0) + r}')
            A(f'v_permlane16_swap_b32 v{nr}, v{nr + 1}')
            A(f'v_add_f32 v{nr}, v{nr}, v{nr + 1}')
            A(f'v_mov_b32 v{nr + 1}, v{nr}')
            A(f'v_permlane32_swap_b32 v{nr}, v{nr + 1}')
            A(f'v_add_f32 v{nr}, v{nr}, v{nr + 1}')
            for mbl in range(2):
                for nbl in range(2):
                    for x in range(2):
                        A(cvtpk(tmp + 4 * mbl + 2 * nbl + x, eacc(mbl, nbl) + 2 * x))
                A(f'buffer_store_dwordx4 {vr(tmp + 4 * mbl, 4)}, v{vk}, {sr(sWS, 4)}, s9 offen offset:{mbl * 128}')
        else:
            A(f'v_max3_f32 v{nr}, |v{EACC}|, |v{EACC + 1}|, |v{EACC + 2}|')
            for r in range(3, 15, 2):
                A(f'v_max3_f32 v{nr}, v{nr}, |v{EACC + r}|, |v{EACC + r + 1}|')
            A(f'v_max_f32 v{nr}, v{nr}, |v{EACC + 15}|')
            for nbl in range(2):
                for mbl in range(2):
                    for x in range(2):
                        A(cvtpk(tmp + 4 * nbl + 2 * mbl + x, eacc(mbl, nbl) + 2 * x))
                A(f'buffer_store_dwordx4 {vr(tmp + 4 * nbl, 4)}, v{vo}, {sr(sWS, 4)}, s9 offen offset:{nbl * 256}')
        dpp_max_reduce(A, nr)
        A('s_lshl_b32 s9, s6, 3')
        A(f's_add_u32 s9, s9, s{sT4}')
        A('s_lshl_b32 s9, s9, 2')
        A(f's_add_u32 s9, s9, {KN if ver == "qk" else VM}')
        A(f'v_mov_b32 v{nr + 1}, 0')
        A('s_mov_b32 exec_lo, 0')
        A('s_mov_b32 exec_hi, 0x80000000')
        A(f'buffer_store_dword v{nr}, v{nr + 1}, {sr(sWS, 4)}, s9 offen')
        A('s_mov_b64 exec, -1')


def k1_epi_kv(A):
    KF = 48
    VF = 80
    PHI = 48
    PHT = 64
    WPH = 112
    PK = lambda i: ACC + 32 * i
    ET = ACC + 16
    KV0 = ACC + 48
    KV1 = ACC + 80
    Z = 16
    SEL = 24
    T = 28
    aW = 36
    aR = 40
    aP = 42
    vo = 43
    t0, t1, t2, t3 = 44, 45, 46, 47
    l31, hh = 4, 5
    A(f's_mov_b32 s{sC}, {LOG2E}')
    A(f's_mov_b32 s{sC + 1}, {LOG2E}')
    A(f'v_and_b32 v{l31}, 31, v{vLANE}')
    A(f'v_lshrrev_b32 v{hh}, 5, v{vLANE}')
    wph_addr(A, aP, hh, t0, t1, t2, t3, 11)
    for t in range(2):
        for u in range(2):
            A(f'ds_read_b64_tr_b16 {vr(WPH + 4 * t + 2 * u, 2)}, v{aP} offset:{t * 256 + u * 1024}')
    A('s_lshl_b32 s9, s5, 14')
    A(f's_add_u32 s9, s9, {SCR}')
    A(f'v_lshrrev_b32 v{t2}, 1, v{t1}')
    A(f'v_xor_b32 v{t2}, v{t2}, v{t3}')
    A(f'v_lshlrev_b32 v{t1}, 6, v{t1}')
    A(f'v_add_u32 v{t1}, s9, v{t1}')
    A(f'v_lshl_add_u32 v{aR}, v{t2}, 3, v{t1}')
    A(f'v_xor_b32 v{t2}, 2, v{t2}')
    A(f'v_lshl_add_u32 v{aR + 1}, v{t2}, 3, v{t1}')
    A(f'v_add_u32 v{aR + 1}, 256, v{aR + 1}')
    A(f'v_bfe_u32 v{t0}, v{l31}, 1, 3')
    A(f'v_xor_b32 v{t0}, v{t0}, v{hh}')
    A(f'v_lshlrev_b32 v{t1}, 6, v{l31}')
    A(f'v_add_u32 v{t1}, s9, v{t1}')
    for a in range(4):
        A(f'v_xor_b32 v{t2}, {2 * a}, v{t0}')
        A(f'v_lshl_add_u32 v{aW + a}, v{t2}, 3, v{t1}')
    emit_selector(A, SEL, vLANE, t0, t1)
    A(f'v_lshlrev_b32 v{vo}, 4, v{vLANE}')
    for i in range(4):
        for mbl in range(2):
            for nbl in range(2):
                for x in range(2):
                    A(cvtpk(KF + i * 8 + 4 * mbl + 2 * nbl + x, acc(2 * i + mbl, nbl) + 2 * x))
        for mbl in range(2):
            for nbl in range(2):
                for x in range(2):
                    A(cvtpk(VF + i * 8 + 4 * nbl + 2 * mbl + x, acc(2 * i + mbl, 2 + nbl) + 2 * x))
        for x in range(4):
            A(f'v_permlane16_swap_b32 v{KF + i * 8 + x}, v{KF + i * 8 + 4 + x}')
        for x in range(4):
            A(f'v_permlane16_swap_b32 v{VF + i * 8 + x}, v{VF + i * 8 + 4 + x}')
        A(mfma32(PK(i), WPH, KF + i * 8, '0'))
        A(mfma32(PK(i), WPH + 4, KF + i * 8 + 4))
    for i in range(4):
        dual_softmax(A, PK(i), ET, PHI, T, sC)
        for fb in range(2):
            for a in range(4):
                A(f'ds_write_b64 v{aW + a}, {vr(PHI + fb * 8 + 2 * a, 2)} offset:{i * 4096 + fb * 2048}')
        for fb in range(2):
            for t in range(2):
                for u in range(2):
                    A(f'ds_read_b64_tr_b16 {vr(PHT + (fb * 2 + t) * 4 + 2 * u, 2)}, v{aR + t} offset:{i * 4096 + fb * 2048 + u * 1024}')
        for fb in range(2):
            kv = KV0 if fb == 0 else KV1
            for t in range(2):
                first = (i == 0 and t == 0)
                A(mfma32(kv, PHT + (fb * 2 + t) * 4, VF + i * 8 + 4 * t, '0' if first else None))
                A(mfma16(Z + 4 * fb, SEL, PHT + (fb * 2 + t) * 4, '0' if first else None))
    A('s_lshl_b32 s9, s7, 1')
    A(f's_add_u32 s9, s9, s{sWN}')
    A('s_lshl_b32 s9, s9, 4')
    A('s_lshl_b32 s10, s6, 1')
    A('s_add_u32 s9, s9, s10')
    A(f's_add_u32 s9, s9, s{sWM}')
    A('s_lshl_b32 s10, s9, 13')
    A(f's_add_u32 s10, s10, {KVP}')
    for fb in range(2):
        kv = KV0 if fb == 0 else KV1
        for q in range(4):
            A(f'buffer_store_dwordx4 {vr(kv + 4 * q, 4)}, v{vo}, {sr(sWS, 4)}, s10 offen offset:{q * 1024}')
        if fb == 0:
            A('s_add_u32 s10, s10, 4096')
    A('s_lshl_b32 s10, s9, 8')
    A(f's_add_u32 s10, s10, {ZP}')
    A(f'v_lshlrev_b32 v{t0}, 2, v{vLANE}')
    A('s_mov_b32 exec_hi, 0')
    for fb in range(2):
        A(f'buffer_store_dword v{Z + 4 * fb}, v{t0}, {sr(sWS, 4)}, s10 offen offset:{fb * 128}')
    A('s_mov_b64 exec, -1')


def k1_prefetch(A):
    va, t0, t1 = 4, 5, 6
    Lw = A.label('K1PW'); Lg = A.label('K1PG')
    A('s_cmp_ge_u32 s4, 16')
    A(f's_cbranch_scc1 {Lw}')
    A('s_and_b32 s9, s6, 3')
    A('s_lshl_b32 s9, s9, 19')
    A(f's_sub_u32 s16, s{sX}, s9')
    A(f's_subb_u32 s17, s{sX + 1}, 0')
    A('s_and_b32 s17, s17, 0xffff')
    A('s_mov_b32 s18, 0x200000')
    A('s_mov_b32 s19, 0x00020000')
    A('s_lshl_b32 s9, s4, 6')
    A(f'v_add_u32 v{va}, s9, v{vLANE}')
    A(f'v_lshlrev_b32 v{va}, 11, v{va}')
    A('s_movk_i32 s20, 128')
    A(f's_branch {Lg}')
    A(f'{Lw}:')
    A(f's_mov_b32 s16, s{sW}')
    A(f's_mov_b32 s17, s{sW + 1}')
    A(f's_mov_b32 s18, s{sW + 2}')
    A('s_mov_b32 s19, 0x00020000')
    A('s_sub_u32 s9, s4, 16')
    A('s_lshl_b32 s9, s9, 2')
    A(f'v_lshrrev_b32 v{t0}, 4, v{vLANE}')
    A(f'v_add_u32 v{t0}, s9, v{t0}')
    A(f'v_mul_lo_u32 v{va}, v{t0}, s35')
    A('s_lshr_b32 s9, s7, 3')
    A('s_lshl_b32 s9, s9, 10')
    A('s_add_u32 s9, s9, 2048')
    A('s_cmp_lt_u32 s7, 16')
    A('s_cselect_b32 s9, s9, 0')
    A('s_cselect_b32 s10, 11, 10')
    A(f'v_and_b32 v{t0}, 7, v{vLANE}')
    A(f'v_lshl_add_u32 v{va}, v{t0}, 7, v{va}')
    A(f'v_bfe_u32 v{t0}, v{vLANE}, 3, 1')
    A(f'v_lshlrev_b32 v{t0}, s10, v{t0}')
    A(f'v_add3_u32 v{va}, v{va}, v{t0}, s9')
    A('s_lshl_b32 s20, s35, 6')
    A(f'{Lg}:')
    A(f's_mul_i32 s21, s3, {ROT}')
    A('s_add_u32 s21, s21, s5')
    A(f'v_mov_b32 v1, v{va}')


def k1_xpf(A):
    r6, r7 = (RT >> 24) & 15, (RT >> 28) & 15
    assert r7 == (r6 + 8) & 15 and r6 == 0
    t0 = 4
    A('s_lshl_b32 s9, s3, 5')
    A('s_add_u32 s9, s9, s4')
    A('s_sub_u32 s10, s9, 96')
    A('s_cmp_ge_u32 s9, 96')
    A('s_cselect_b32 s9, s10, s9')
    A('s_cselect_b32 s16, s26, s24')
    A('s_cselect_b32 s17, s27, s25')
    A('s_cselect_b32 s18, 21, 22')
    A('s_cselect_b32 s22, 8, 16')
    A('s_cselect_b32 s23, 1, 0')
    A('s_lshl_b32 s18, 1, s18')
    A('s_and_b32 s17, s17, 0xffff')
    A('s_mov_b32 s19, 0x00020000')
    A('s_lshr_b32 s10, s9, 5')
    A('s_mul_i32 s11, s5, 3')
    A('s_add_u32 s10, s10, s11')
    A(f's_add_u32 s10, s10, {XPF}')
    A('s_sub_u32 s21, 5, s5')
    A('s_cmp_ge_u32 s10, s22')
    A('s_cselect_b32 s21, -1, s21')
    A('s_cmp_ge_u32 s3, 6')
    A('s_cselect_b32 s21, -1, s21')
    A('s_bfe_u32 s11, s9, 0x10004')
    A('s_lshl_b32 s22, s11, 3')
    A('s_add_u32 s10, s10, s22')
    A('s_and_b32 s10, s10, 15')
    A('s_and_b32 s9, s9, 15')
    A('s_cmp_eq_u32 s23, 1')
    Lw = A.label('K1XW'); Lg = A.label('K1XG')
    A(f's_cbranch_scc1 {Lw}')
    A('s_lshl_b32 s11, s11, 4')
    A('s_add_u32 s9, s9, s11')
    A('s_lshl_b32 s9, s9, 17')
    A('s_lshl_b32 s10, s10, 7')
    A('s_add_u32 s9, s9, s10')
    A(f'v_lshlrev_b32 v1, 11, v{vLANE}')
    A(f'v_add_u32 v1, s9, v1')
    A(f's_branch {Lg}')
    A(f'{Lw}:')
    A('s_lshl_b32 s10, s10, 4')
    A('s_add_u32 s9, s9, s10')
    A('s_lshl_b32 s9, s9, 13')
    A(f'v_lshrrev_b32 v1, 4, v{vLANE}')
    A(f'v_lshlrev_b32 v1, 11, v1')
    A(f'v_and_b32 v{t0}, 15, v{vLANE}')
    A(f'v_lshl_add_u32 v1, v{t0}, 7, v1')
    A(f'v_add_u32 v1, s9, v1')
    A(f'{Lg}:')


def k1_spf(A):
    A('s_lshl_b32 s9, s2, 2')
    A('s_add_u32 s9, s9, s5')
    if SPFP:
        A('s_lshl_b32 s9, s3, 7')
        A('s_lshl_b32 s10, s4, 2')
        A('s_add_u32 s9, s9, s10')
        A('s_add_u32 s9, s9, s5')
    A('s_mov_b32 s10, s9')
    A('s_mov_b32 s22, s16')
    A('s_mov_b32 s23, s17')
    A('s_mov_b32 s11, 0x400000')
    for lim, (lo, hi, sz) in ((256, (18, 19, 0x600000)), (640, (24, 25, 0x400000)), (896, (26, 27, 0x200000))):
        A(f's_sub_u32 s21, s9, {lim}')
        A(f's_cmp_ge_u32 s9, {lim}')
        A('s_cselect_b32 s10, s21, s10')
        A(f's_cselect_b32 s22, s{lo}, s22')
        A(f's_cselect_b32 s23, s{hi}, s23')
        A(f's_cselect_b32 s11, {sz}, s11')
    A('s_mov_b32 s16, s22')
    A('s_and_b32 s17, s23, 0xffff')
    A('s_mov_b32 s18, s11')
    A('s_mov_b32 s19, 0x00020000')
    A('s_lshl_b32 s20, s10, 14')
    A('s_add_u32 s21, s20, 8192')
    A(f'v_lshlrev_b32 v1, 7, v{vLANE}')
    if SPF & 1: A('buffer_load_dword v0, v1, s[16:19], s20 offen')
    if SPF & 2: A('buffer_load_dword v0, v1, s[16:19], s21 offen')


def k1_xpf2(A):
    t0 = 4
    A('s_lshl_b32 s9, s2, 2')
    A('s_add_u32 s9, s9, s5')
    A('s_lshr_b32 s21, s9, 7')
    A('s_and_b32 s9, s9, 127')
    A(f's_add_u32 s10, s21, {XP2D}')
    Lb = A.label('X2B'); Lw = A.label('X2W'); Lv = A.label('X2V'); Lg = A.label('X2G'); Lx = A.label('X2X')
    A('s_cmp_ge_u32 s9, 112')
    A(f's_cbranch_scc1 {Lv}')
    A('s_cmp_ge_u32 s9, 64')
    A(f's_cbranch_scc1 {Lw}')
    A('s_cmp_ge_u32 s9, 32')
    A('s_cselect_b32 s16, s24, s16')
    A('s_cselect_b32 s17, s25, s17')
    A('s_mov_b32 s18, 0x400000')
    A('s_and_b32 s9, s9, 31')
    A('s_lshl_b32 s9, s9, 17')
    A('s_lshl_b32 s20, s10, 7')
    A('s_add_u32 s20, s20, s9')
    A('s_movk_i32 s22, 1024')
    A(f'v_lshlrev_b32 v1, 11, v{vLANE}')
    A(f's_branch {Lg}')
    A(f'{Lw}:')
    A('s_mov_b32 s16, s18')
    A('s_mov_b32 s17, s19')
    A('s_mov_b32 s18, 0x600000')
    A('s_sub_u32 s9, s9, 64')
    A('s_lshl_b32 s9, s9, 13')
    A('s_mul_i32 s20, s10, 0x60000')
    A('s_add_u32 s20, s20, s9')
    A('s_mov_b32 s22, 0x300000')
    A(f'v_lshlrev_b32 v1, 7, v{vLANE}')
    A(f's_branch {Lg}')
    A(f'{Lv}:')
    A('s_mov_b32 s16, s26')
    A('s_mov_b32 s17, s27')
    A('s_mov_b32 s18, 0x200000')
    A('s_sub_u32 s9, s9, 112')
    A('s_lshl_b32 s9, s9, 13')
    A('s_lshl_b32 s20, s10, 17')
    A('s_add_u32 s20, s20, s9')
    A('s_mov_b32 s22, 0x100000')
    A(f'v_lshlrev_b32 v1, 7, v{vLANE}')
    A(f'{Lg}:')
    A('s_and_b32 s17, s17, 0xffff')
    A('s_mov_b32 s19, 0x00020000')
    A('s_mov_b32 s23, 0')
    for n_, ks in enumerate(XP2E):
        tw = 4 + n_
        Le = A.label('X2E')
        A(f's_cmp_lg_u32 s21, {tw}')
        A(f's_cbranch_scc1 {Le}')
        A('s_lshr_b32 s9, s22, 3')
        A(f's_mul_i32 s9, s9, {tw + XP2D - ks}')
        A('s_sub_u32 s9, s20, s9')
        A('buffer_load_dword v0, v1, s[16:19], s9 offen')
        A(f'{Le}:')


def xpf2_step(A):
    Ls = A.label('K1XS')
    A('s_cmp_lg_u32 s23, s21')
    A(f's_cbranch_scc1 {Ls}')
    A('buffer_load_dword v0, v1, s[16:19], s20 offen')
    A('s_add_u32 s20, s20, s22')
    A('s_add_u32 s21, s21, 8')
    A(f's_cmp_ge_u32 s21, {16 - XP2D}')
    A('s_cselect_b32 s21, -1, s21')
    A(f'{Ls}:')
    A('s_add_u32 s23, s23, 1')


def k1_prefetch_issue(A):
    A('s_barrier')
    for j in range(PFN):
        A(f's_add_u32 s22, s21, {4 * j + PF - 1}')
        A('s_and_b32 s22, s22, 15')
        A('s_mul_i32 s22, s22, s20')
        A(f'buffer_load_dword v3, v1, s[16:19], s22 offen')


def k1(A):
    A('k1_kernel:')
    A('s_cmp_ge_u32 s2, 256')
    A('s_cbranch_scc0 K1_go')
    A('s_endpgm')
    A('K1_go:')
    stamp(A, 0)
    A('s_load_dwordx16 s[16:31], s[0:1], 0')
    A('s_load_dwordx2 s[32:33], s[0:1], 88')
    A('v_lshrrev_b32 v1, 6, v0')
    A(f'v_and_b32 v{vLANE}, 63, v0')
    A('v_readfirstlane_b32 s5, v1')
    A('s_and_b32 s3, s2, 7')
    A('s_lshr_b32 s4, s2, 3')
    A('s_and_b32 s9, s4, 3')
    A('s_lshr_b32 s10, s4, 2')
    A('s_and_b32 s6, s3, 1')
    A('s_lshl_b32 s6, s6, 2')
    A('s_add_u32 s6, s6, s9')
    A('s_lshr_b32 s7, s3, 1')
    A('s_lshl_b32 s7, s7, 3')
    A('s_add_u32 s7, s7, s10')
    if MIX:
        A('s_mul_i32 s9, s7, 11')
        A('s_lshr_b32 s9, s9, 5')
        A('s_mul_i32 s10, s9, 3')
        A('s_sub_u32 s10, s7, s10')
        A('s_lshl_b32 s11, s9, 1')
        A('s_add_u32 s11, s11, s10')
        A('s_add_u32 s9, s9, 16')
        A('s_cmp_eq_u32 s10, 2')
        A('s_cselect_b32 s9, s9, s11')
        A('s_cmp_lt_u32 s7, 24')
        A('s_cselect_b32 s7, s9, s7')
    A(f's_bfe_u32 s{sWM}, s5, 0x10001')
    A(f's_and_b32 s{sWN}, s5, 1')
    A('s_lshl_b32 s9, s7, 7')
    A('s_add_u32 s9, s9, 2048')
    A('s_and_b32 s10, s7, 7')
    A('s_lshl_b32 s10, s10, 8')
    A('s_cmp_lt_u32 s7, 16')
    A('s_cselect_b32 s14, s9, s10')
    A('s_cselect_b32 s15, 2048, 64')
    A('s_cselect_b32 s34, 64, 128')
    A('s_cselect_b32 s11, 12, 13')
    A(f's_lshl_b32 s{sE + 2}, 1, s11')
    A('s_movk_i32 s35, 6144')
    A(f's_mov_b32 s{sW + 2}, 0x600000')
    A('s_waitcnt lgkmcnt(0)')
    A('s_cmp_ge_u32 s7, 24')
    A('s_cselect_b32 s35, 2048, s35')
    A(f's_cselect_b32 s8, {QB}, {QA}')
    A(f's_cselect_b32 s{sX}, s24, s16')
    A(f's_cselect_b32 s{sX + 1}, s25, s17')
    A(f's_cselect_b32 s{sW}, s26, s18')
    A(f's_cselect_b32 s{sW + 1}, s27, s19')
    A(f's_cselect_b32 s{sW + 2}, 0x200000, s{sW + 2}')
    A(f's_cselect_b32 s{sE + 2}, 65536, s{sE + 2}')
    A('s_lshl_b32 s9, s6, 19')
    A(f's_add_u32 s{sX}, s{sX}, s9')
    A(f's_addc_u32 s{sX + 1}, s{sX + 1}, 0')
    A(f's_and_b32 s{sX + 1}, s{sX + 1}, 0xffff')
    A(f's_mov_b32 s{sX + 2}, 0x80000')
    A(f's_mov_b32 s{sX + 3}, 0x00020000')
    A(f's_and_b32 s{sW + 1}, s{sW + 1}, 0xffff')
    A(f's_mov_b32 s{sW + 3}, 0x00020000')
    A('s_and_b32 s9, s7, 15')
    A('s_lshl_b32 s9, s9, s11')
    A('s_add_u32 s20, s20, s9')
    A('s_addc_u32 s21, s21, 0')
    A('s_bitcmp1_b32 s7, 0')
    A('s_cselect_b32 s28, s30, s28')
    A('s_cselect_b32 s29, s31, s29')
    A('s_cmp_ge_u32 s7, 24')
    A(f's_cselect_b32 s{sE}, s28, s20')
    A(f's_cselect_b32 s{sE + 1}, s29, s21')
    A(f's_and_b32 s{sE + 1}, s{sE + 1}, 0xffff')
    A(f's_mov_b32 s{sE + 3}, 0x00020000')
    make_srd(A, sWS, 's32', 's33', WS_SIZE)
    A('s_cmp_ge_u32 s5, 4')
    A('s_cbranch_scc1 K1_loader')
    if PF: k1_prefetch(A)
    if XPF: k1_xpf(A)
    if XP2D: k1_xpf2(A)
    if SPF: k1_spf(A)
    A('s_cmp_lt_u32 s7, 16')
    A('s_cbranch_scc1 K1_kv')
    A('s_cmp_lt_u32 s7, 24')
    A('s_cbranch_scc1 K1_q')
    A('s_cmp_ge_u32 s5, 2')
    A('s_cbranch_scc1 K1_q')
    if 'n' in XP: A('s_branch K1_q')
    A('s_bitcmp1_b32 s7, 0')
    A('s_cbranch_scc1 K1_qv')
    k1_compute(A, 'qk')
    A('K1_qv:')
    k1_compute(A, 'qv')
    A('K1_q:')
    k1_compute(A, 'q')
    A('K1_kv:')
    k1_compute(A, 'kv')
    A('K1_loader:')
    A('s_cmp_ge_u32 s7, 24')
    A('s_cbranch_scc1 K1_loaderB')
    k1_loader(A, False)
    A('K1_loaderB:')
    k1_loader(A, True)
```

```python
from asmlib import Asm

MB = 1 << 20
QA = 0
QB = 4 * MB
KV = 8 * MB
KVP = 9 * MB
ZP = 13 * MB
KN = 13 * MB + 256 * 1024
VM = KN + 256
WPF = 13 * MB + 512 * 1024
OA = 16 * MB
OB = 20 * MB
PHQ = 32 * MB
WS_SIZE = 0x10000000
LOG2E = 0x3fb8aa3b
KSCALE = 1.4426950408889634 / (32 ** 0.5)


def f32bits(x):
    import struct
    return struct.unpack('<I', struct.pack('<f', x))[0]


def vr(a, n=1):
    return f'v{a}' if n == 1 else f'v[{a}:{a + n - 1}]'


def sr(a, n=1):
    return f's{a}' if n == 1 else f's[{a}:{a + n - 1}]'


def mfma32(d, a, b, c=None):
    cs = vr(d, 16) if c is None else (c if isinstance(c, str) else vr(c, 16))
    return f'v_mfma_f32_32x32x16_bf16 {vr(d, 16)}, {vr(a, 4)}, {vr(b, 4)}, {cs}'


def mfma16(d, a, b, c=None):
    cs = vr(d, 4) if c is None else (c if isinstance(c, str) else vr(c, 4))
    return f'v_mfma_f32_16x16x32_bf16 {vr(d, 4)}, {vr(a, 4)}, {vr(b, 4)}, {cs}'


def cvtpk(d, a, b=None):
    b = a + 1 if b is None else b
    return f'v_cvt_pk_bf16_f32 v{d}, v{a}, v{b}'


def make_srd(A, s, lo, hi, size):
    A(f's_mov_b32 s{s}, {lo}')
    A(f's_and_b32 s{s + 1}, {hi}, 0xffff')
    A(f's_mov_b32 s{s + 2}, {size}')
    A(f's_mov_b32 s{s + 3}, 0x00020000')


def emit_selector(A, vsel, lane, t0, t1):
    A(f'v_lshrrev_b32 v{t0}, 4, v{lane}')
    A(f'v_lshrrev_b32 v{t1}, 2, v{lane}')
    A(f'v_xor_b32 v{t0}, v{t0}, v{t1}')
    A(f'v_and_b32 v{t0}, 1, v{t0}')
    A(f'v_cmp_eq_u32 vcc, 0, v{t0}')
    A(f'v_mov_b32 v{t1}, 0x3f803f80')
    A(f'v_cndmask_b32 v{vsel}, 0, v{t1}, vcc')
    for k in range(1, 4):
        A(f'v_mov_b32 v{vsel + k}, v{vsel}')


def dual_softmax(A, P, E, OUT, T, sC):
    mx, mn, t0, t1, sp, sn = T, T + 1, T + 2, T + 3, T + 4, T + 6
    A(f'v_max3_f32 v{mx}, v{P}, v{P + 1}, v{P + 2}')
    A(f'v_min3_f32 v{mn}, v{P}, v{P + 1}, v{P + 2}')
    for r in range(3, 15, 2):
        A(f'v_max3_f32 v{mx}, v{mx}, v{P + r}, v{P + r + 1}')
        A(f'v_min3_f32 v{mn}, v{mn}, v{P + r}, v{P + r + 1}')
    A(f'v_max_f32 v{mx}, v{mx}, v{P + 15}')
    A(f'v_min_f32 v{mn}, v{mn}, v{P + 15}')
    A(f'v_mov_b32 v{t0}, v{mx}')
    A(f'v_mov_b32 v{t1}, v{mn}')
    A(f'v_permlane32_swap_b32 v{mx}, v{t0}')
    A(f'v_permlane32_swap_b32 v{mn}, v{t1}')
    A(f'v_max_f32 v{mx}, v{mx}, v{t0}')
    A(f'v_min_f32 v{mn}, v{mn}, v{t1}')
    A(f'v_mul_f32 v{t0}, s{sC}, v{mx}')
    A(f'v_mul_f32 v{mx}, s{sC}, v{mn}')
    for r in range(0, 16, 2):
        A(f'v_pk_fma_f32 {vr(E + r, 2)}, {vr(P + r, 2)}, {sr(sC, 2)}, {vr(t0, 2)} op_sel_hi:[1,0,0] neg_lo:[0,0,1] neg_hi:[0,0,1]')
        A(f'v_pk_fma_f32 {vr(P + r, 2)}, {vr(P + r, 2)}, {sr(sC, 2)}, {vr(mx, 2)} op_sel_hi:[1,0,0] neg_lo:[1,0,0] neg_hi:[1,0,0]')
    for r in range(16):
        A(f'v_exp_f32 v{E + r}, v{E + r}')
        A(f'v_exp_f32 v{P + r}, v{P + r}')
    A(f'v_pk_add_f32 {vr(sp, 2)}, {vr(E, 2)}, {vr(E + 2, 2)}')
    A(f'v_pk_add_f32 {vr(sn, 2)}, {vr(P, 2)}, {vr(P + 2, 2)}')
    for r in range(4, 16, 2):
        A(f'v_pk_add_f32 {vr(sp, 2)}, {vr(sp, 2)}, {vr(E + r, 2)}')
        A(f'v_pk_add_f32 {vr(sn, 2)}, {vr(sn, 2)}, {vr(P + r, 2)}')
    A(f'v_add_f32 v{sp}, v{sp}, v{sp + 1}')
    A(f'v_add_f32 v{sn}, v{sn}, v{sn + 1}')
    A(f'v_mov_b32 v{sp + 1}, v{sp}')
    A(f'v_mov_b32 v{sn + 1}, v{sn}')
    A(f'v_permlane32_swap_b32 v{sp}, v{sp + 1}')
    A(f'v_permlane32_swap_b32 v{sn}, v{sn + 1}')
    A(f'v_add_f32 v{sp}, v{sp}, v{sp + 1}')
    A(f'v_add_f32 v{sn}, v{sn}, v{sn + 1}')
    A(f'v_rcp_f32 v{sp}, v{sp}')
    A(f'v_rcp_f32 v{sn}, v{sn}')
    for r in range(0, 16, 2):
        A(f'v_pk_mul_f32 {vr(E + r, 2)}, {vr(E + r, 2)}, {vr(sp, 2)} op_sel_hi:[1,0]')
        A(f'v_pk_mul_f32 {vr(P + r, 2)}, {vr(P + r, 2)}, {vr(sn, 2)} op_sel_hi:[1,0]')
    for r in range(0, 16, 2):
        A(cvtpk((E if OUT is None else OUT) + r // 2, E + r))
        A(cvtpk((P if OUT is None else OUT + 8) + r // 2, P + r))


def dpp_max_reduce(A, v):
    for ctl in ('row_shr:1', 'row_shr:2', 'row_shr:4', 'row_shr:8', 'row_bcast:15 row_mask:0xa', 'row_bcast:31 row_mask:0xc'):
        A(f'v_max_f32_dpp v{v}, v{v}, v{v} {ctl}')


STAMPS = False
ZFLG = False
STAMP_BASE = 24 * MB


def stamp(A, i):
    if STAMPS == 3:
        A(f's_memrealtime s[{70 + 2 * i}:{71 + 2 * i}]')
        A(f's_memtime s[{82 + 2 * i}:{83 + 2 * i}]')
    elif STAMPS:
        A(f's_memrealtime s[{70 + 2 * i}:{71 + 2 * i}]' if STAMPS == 2 else f's_memtime s[{70 + 2 * i}:{71 + 2 * i}]')


def stamp_flush(A, n, kidx, swave='s5', waveadd=0, srd=48):
    if not STAMPS: return
    A('s_waitcnt lgkmcnt(0)')
    A('s_lshl_b32 s68, s2, 3')
    A(f's_add_u32 s68, s68, {swave}')
    A(f's_add_u32 s68, s68, {waveadd}')
    A('s_lshl_b32 s68, s68, 6')
    A(f's_add_u32 s68, s68, {STAMP_BASE + kidx * MB}')
    A('v_mov_b32 v1, 0')
    A('s_mov_b64 exec, 1')
    for i in range(n):
        A(f'v_mov_b32 v3, s{70 + 2 * i}')
        A(f'buffer_store_dword v3, v1, s[{srd}:{srd + 3}], s68 offen offset:{4 * i}')
        if STAMPS == 3:
            A(f'v_mov_b32 v3, s{82 + 2 * i}')
            A(f'buffer_store_dword v3, v1, s[{srd}:{srd + 3}], s68 offen offset:{32 + 4 * i}')
    A('s_mov_b64 exec, -1')


LX = 0
LW = 98304
LE = 147456
K1_LDS = 159744
SCR = 32768

sX, sW, sE, sWS = 36, 40, 44, 48
sLX, sLW, sLE, sGX, sGW, sGE, sT, sLDW4, sLDW64, sT2, sT3, sT4 = 52, 53, 54, 55, 56, 57, 58, 59, 60, 61, 62, 63
sC = 64
sK, sLDWK = 66, 67
import os
ROT = int(os.environ.get('ROT', '0'))
RT = os.environ.get('RT', '0')
RT = int(RT, 16)
XPF = int(os.environ.get('XPF', '0'))
SPF = int(os.environ.get('SPF', '0'))
SPFP = int(os.environ.get('SPFP', '0'))
XP2D = int(os.environ.get('XP2D', '5'))
XP2E = [int(c) for c in os.environ.get('XP2E', '432')]
I3 = int(os.environ.get('I3', '0'))
WARM = int(os.environ.get('WARM', '1'))
WARMF = int(os.environ.get('WARMF', '100'))
MIX = int(os.environ.get('MIX', '1'))
RR = int(os.environ.get('RR', '0'))
RC = int(os.environ.get('RC', '0'))
PF = int(os.environ.get('PF', '0'))
PFN = int(os.environ.get('PFN', '4'))
PFL = int(os.environ.get('PFL', '0'))
PFD = int(os.environ.get('PFD', '6'))
PFB = int(os.environ.get('PFB', '2'))
XP = os.environ.get('XP', '')
sWM, sWN = 12, 13
vLANE = 2
vXA = 4
vEXA = 10
vWA = 16
vEWA = 20
XF = 24
WF = 56
EXF = 88
EWF = 96
EACC = 112
ACC = 128


def acc(mb, nb):
    return ACC + (mb * 4 + nb) * 4


def eacc(mbl, nbl):
    return EACC + (mbl * 2 + nbl) * 4


def k1_loader(A, isB):
    n = 13 if isB else 12
    vX0, vX1, vW0, vW1, vE = 4, 5, 6, 7, 8
    t0, t1, t2, t3 = 10, 11, 12, 13
    A('s_sub_u32 s5, s5, 4')
    A(f'v_lshrrev_b32 v{t0}, 3, v{vLANE}')
    A('s_lshl_b32 s9, s5, 6')
    A(f'v_add_u32 v{t0}, s9, v{t0}')
    A(f'v_lshlrev_b32 v{t0}, 11, v{t0}')
    A(f'v_lshrrev_b32 v{t1}, 4, v{vLANE}')
    A(f'v_and_b32 v{t2}, 7, v{vLANE}')
    A(f'v_xor_b32 v{t2}, v{t2}, v{t1}')
    A(f'v_lshl_add_u32 v{vX0}, v{t2}, 4, v{t0}')
    A(f'v_xor_b32 v{t2}, 4, v{t2}')
    A(f'v_lshl_add_u32 v{vX1}, v{t2}, 4, v{t0}')
    for bit, vW in ((0, vW0), (1, vW1)):
        A(f'v_bfe_u32 v{t0}, v{vLANE}, 1, 3')
        A(f'v_xor_b32 v{t0}, v{t0}, v{t1}')
        if bit: A(f'v_xor_b32 v{t0}, 4, v{t0}')
        A(f'v_mul_lo_u32 v{vW}, v{t1}, s35')
        A(f'v_bfe_u32 v{t2}, v{t0}, 1, 1')
        A(f'v_mul_lo_u32 v{t2}, v{t2}, s15')
        A(f'v_add_u32 v{vW}, v{vW}, v{t2}')
        A(f'v_lshrrev_b32 v{t2}, 2, v{t0}')
        A(f'v_mul_lo_u32 v{t2}, v{t2}, s34')
        A(f'v_add_u32 v{vW}, v{vW}, v{t2}')
        A(f'v_and_b32 v{t2}, 1, v{t0}')
        A(f'v_lshl_add_u32 v{vW}, v{t2}, 5, v{vW}')
        A(f'v_and_b32 v{t2}, 1, v{vLANE}')
        A(f'v_lshl_add_u32 v{vW}, v{t2}, 4, v{vW}')
        A(f'v_add_u32 v{vW}, s14, v{vW}')
    if isB:
        A(f'v_lshlrev_b32 v{vE}, 4, v{vLANE}')
        A(f'v_and_b32 v{t2}, 32, v{vLANE}')
        A(f'v_xor_b32 v{vE}, v{vE}, v{t2}')
    else:
        A(f'v_lshlrev_b32 v{vE}, 4, v{vLANE}')
    A(f's_lshl_b32 s{sLX}, s5, 13')
    A(f's_lshl_b32 s{sLW}, s5, 12')
    A(f's_add_u32 s{sLW}, s{sLW}, {LW}')
    A(f's_lshl_b32 s{sLE}, s5, 10')
    A(f's_mov_b32 s{sGE}, s{sLE}')
    A(f's_add_u32 s{sLE}, s{sLE}, {LE}')
    A(f's_mov_b32 s{sGX}, 0')
    A(f's_lshl_b32 s{sLDW4}, s35, 2')
    A(f's_lshl_b32 s{sLDW64}, s35, 6')
    A(f's_lshl_b32 s{sGW}, s{sLDW4}, 2')
    A(f's_mul_i32 s{sGW}, s{sGW}, s5')
    if ROT:
        if RT:
            A(f's_lshl_b32 s{sK}, s3, 2')
            A(f's_lshr_b32 s{sK}, {RT}, s{sK}')
        else:
            A(f's_mul_i32 s{sK}, s3, {ROT}')
        if RR:
            A(f's_and_b32 s{sT}, s6, 3')
            A(f's_mul_i32 s{sT}, s{sT}, {RR}')
            A(f's_add_u32 s{sK}, s{sK}, s{sT}')
        if RC:
            A(f's_and_b32 s{sT}, s7, 7')
            A(f's_mul_i32 s{sT}, s{sT}, {RC}')
            A(f's_add_u32 s{sK}, s{sK}, s{sT}')
        A(f's_and_b32 s{sK}, s{sK}, 15')
        A(f's_lshl_b32 s{sGX}, s{sK}, 7')
        A(f's_mul_i32 s{sT}, s{sK}, s{sLDW64}')
        A(f's_add_u32 s{sGW}, s{sGW}, s{sT}')
        A(f's_lshl_b32 s{sLDWK}, s35, 10')
        if isB:
            A(f's_lshl_b32 s{sT}, s{sK}, 12')
            A(f's_add_u32 s{sGE}, s{sGE}, s{sT}')
    if not isB:
        A(f's_mov_b32 m0, s{sLE}')
        A('s_nop 0')
        A(f'buffer_load_dwordx4 v{vE}, {sr(sE, 4)}, s{sGE} offen lds')
        A(f's_add_u32 m0, s{sLE}, 4096')
        A(f's_add_u32 s{sGE}, s{sGE}, 4096')
        A(f'buffer_load_dwordx4 v{vE}, {sr(sE, 4)}, s{sGE} offen lds')

    def issue():
        order = [('x', 0), ('w', 0), ('x', 1), ('x', 2), ('w', 1), ('x', 3), ('x', 4), ('w', 2), ('x', 5), ('x', 6), ('w', 3), ('x', 7)]
        if 'd' in XP: order = []
        first_w = True
        for kind, j in order:
            if kind == 'x':
                A(f's_add_u32 m0, s{sLX}, {j * 1024}')
                A(f's_add_u32 s{sT}, s{sGX}, {j * 16384}')
                A(f'buffer_load_dwordx4 v{vX0 + (j & 1)}, {sr(sX, 4)}, s{sT} offen lds')
            else:
                A(f's_add_u32 m0, s{sLW}, {j * 1024}')
                if first_w:
                    A(f's_mov_b32 s{sT2}, s{sGW}')
                    first_w = False
                else:
                    A(f's_add_u32 s{sT2}, s{sT2}, s{sLDW4}')
                A(f'buffer_load_dwordx4 v{vW0 + (j >> 1)}, {sr(sW, 4)}, s{sT2} offen lds')
        if isB:
            A(f's_mov_b32 m0, s{sLE}')
            A('s_nop 0')
            A(f'buffer_load_dwordx4 v{vE}, {sr(sE, 4)}, s{sGE} offen lds')
            A(f's_add_u32 s{sGE}, s{sGE}, 4096')
        A(f's_add_u32 s{sGX}, s{sGX}, 128')
        A(f's_add_u32 s{sGW}, s{sGW}, s{sLDW64}')
        if ROT:
            A(f's_add_u32 s{sK}, s{sK}, 1')
            A(f's_cmp_eq_u32 s{sK}, 16')
            A(f's_cselect_b32 s{sT}, 2048, 0')
            A(f's_cselect_b32 s{sT2}, s{sLDWK}, 0')
            A(f's_cselect_b32 s{sT3}, 65536, 0')
            A(f's_sub_u32 s{sGX}, s{sGX}, s{sT}')
            A(f's_sub_u32 s{sGW}, s{sGW}, s{sT2}')
            if isB: A(f's_sub_u32 s{sGE}, s{sGE}, s{sT3}')
        A(f's_add_u32 s{sLX}, s{sLX}, 32768')
        A(f's_add_u32 s{sLW}, s{sLW}, 16384')
        A(f's_add_u32 s{sLE}, s{sLE}, 4096')
        A(f's_cmp_ge_u32 s{sLX}, {LW}')
        A(f's_cselect_b32 s{sT}, 98304, 0')
        A(f's_cselect_b32 s{sT2}, 49152, 0')
        A(f's_cselect_b32 s{sT3}, 12288, 0')
        A(f's_sub_u32 s{sLX}, s{sLX}, s{sT}')
        A(f's_sub_u32 s{sLW}, s{sLW}, s{sT2}')
        A(f's_sub_u32 s{sLE}, s{sLE}, s{sT3}')

    stamp(A, 1)
    for i_ in range(2):
        issue()
        if PF and i_ + 1 == PFB: A('s_barrier')
    if I3: issue()
    stamp(A, 2)
    A(f's_waitcnt vmcnt({n * (2 if I3 else 1)})')
    stamp(A, 3)
    A('s_barrier')
    if not I3: issue()
    A('s_mov_b32 s11, 13')
    L = A.label('K1LD')
    A(f'{L}:')
    A(f's_waitcnt vmcnt({n})')
    A('s_barrier')
    issue()
    A('s_sub_u32 s11, s11, 1')
    A('s_cmp_lg_u32 s11, 0')
    A(f's_cbranch_scc1 {L}')
    A(f's_waitcnt vmcnt({n})')
    A('s_barrier')
    A('s_waitcnt vmcnt(0)')
    stamp(A, 4)
    if ZFLG:
        A('s_lshl_b32 s9, s2, 7')
        A('s_lshl_b32 s10, s5, 5')
        A('s_add_u32 s9, s9, s10')
        A(f's_add_u32 s9, s9, {14 * MB}')
        A(f'v_lshlrev_b32 v10, 2, v{vLANE}')
        A('v_mov_b32 v11, 0')
        A('s_mov_b64 exec, 0xff')
        A(f'buffer_store_dword v11, v10, {sr(sWS, 4)}, s9 offen sc0 sc1')
        A('s_mov_b64 exec, -1')
    A('s_barrier')
    A('s_barrier')
    stamp(A, 5)
    stamp_flush(A, 6, 0, waveadd=4)
    A('s_endpgm')


def rdX(stage, s, mb):
    return f'ds_read_b128 {vr(XF + 4 * mb, 4)}, v{vXA + stage * 2 + s} offset:{mb * 2048}'


def rdW(stage, s, nb, u):
    return f'ds_read_b64_tr_b16 {vr(WF + s * 16 + 4 * nb + 2 * u, 2)}, v{vWA + nb} offset:{stage * 16384 + s * 8192 + u * 1024}'


def rdEX(stage, s, mbl):
    return f'ds_read_b128 {vr(EXF + 4 * mbl, 4)}, v{vEXA + stage * 2 + s} offset:{mbl * 2048}'


def rdEW(stage, s, nbl, u):
    return f'ds_read_b64_tr_b16 {vr(EWF + s * 8 + 4 * nbl + 2 * u, 2)}, v{vEWA + nbl} offset:{stage * 4096 + s * 2048 + u * 256}'


BPOS = 6


def all_reads(stage, s, extra):
    r = [rdX(stage, s, 0)]
    for nb in range(4):
        r += [rdW(stage, s, nb, 0), rdW(stage, s, nb, 1)]
    r += [rdX(stage, s, mb) for mb in range(1, 8)]
    if extra:
        for nbl in range(2):
            r += [rdEW(stage, s, nbl, 0), rdEW(stage, s, nbl, 1)]
        r += [rdEX(stage, s, 0), rdEX(stage, s, 1)]
    return r


def kstep(A, stage, ver, last):
    extra = ver in ('qk', 'qv')
    for s in range(2):
        mf = []
        for mb in range(8):
            for nb in range(4):
                x = XF + 4 * mb; w = WF + s * 16 + 4 * nb
                normal = (ver == 'kv' and nb >= 2)
                m = mfma16(acc(mb, nb), x, w) if normal else mfma16(acc(mb, nb), w, x)
                mf.append((m, ('x', mb) if nb == 3 else None))
        if extra:
            for mbl in range(2):
                for nbl in range(2):
                    x = EXF + 4 * mbl; w = EWF + s * 8 + 4 * nbl
                    m = mfma16(eacc(mbl, nbl), x, w) if ver == 'qv' else mfma16(eacc(mbl, nbl), w, x)
                    mf.append((m, ('e', mbl) if nbl == 1 else None))
        if s == 0:
            nst, ns = stage, 1
        else:
            nst, ns = (stage + 1) % 3, 0
        none = (s == 1 and last)
        wq = []
        if not none and 'r' not in XP and 'w' not in XP:
            for nb in range(4):
                wq += [rdW(nst, ns, nb, 0), rdW(nst, ns, nb, 1)]
            if extra:
                for nbl in range(2):
                    wq += [rdEW(nst, ns, nbl, 0), rdEW(nst, ns, nbl, 1)]
        xq = []
        for k, (m, fr) in enumerate(mf):
            if s == 1 and k == BPOS:
                A('s_waitcnt lgkmcnt(0)')
                A('s_barrier')
            if 'm' not in XP: A(m)
            if fr and not none and 'r' not in XP and 'x' not in XP:
                xq.append(rdX(nst, ns, fr[1]) if fr[0] == 'x' else rdEX(nst, ns, fr[1]))
            if s == 1 and k < BPOS: continue
            if xq:
                A(xq.pop(0))
            elif wq:
                A(wq.pop(0))
        for r in xq + wq: A(r)


def emit_warmable(A, fn, name, nparts, ret):
    cap = []
    fn(cap.append)
    if not WARM:
        for c in cap: A(c)
        return
    end = next((i for i, c in enumerate(cap) if 'exec' in c), len(cap))
    if nparts == 4: end = end * WARMF // 100
    cuts = [end * p // nparts for p in range(nparts + 1)]
    for i, c in enumerate(cap):
        if i in cuts[1:]: A(f's_cbranch_execz {ret}')
        if i in cuts[:-1]: A(f'{name}_{cuts.index(i)}:')
        A(c)
    if end == len(cap): A(f's_cbranch_execz {ret}')


def warm_dispatch(A, ver):
    ret = f'K1W_{ver}_ret'
    for v in (3, 4, 7, 9, 43, 44):
        A(f'v_mov_b32 v{v}, 0')
    A(f's_mov_b32 s{sT4}, 0')
    A('s_mov_b64 exec, 0')
    def disp(name, n):
        for p in range(1, n):
            A(f's_and_b32 s9, s5, {n - 1}')
            A(f's_cmp_eq_u32 s9, {p}')
            A(f's_cbranch_scc1 {name}_{p}')
        A(f's_branch {name}_0')
    if ver == 'q':
        A('s_cmp_lt_u32 s7, 24')
        A('s_cbranch_scc1 K1W_phi_d')
        disp('K1W_q', 2)
        A('K1W_phi_d:')
        disp('K1W_phi', 4)
    else:
        disp(f'K1W_{ver}', 4 if ver == 'kv' else 2)
    A(f'{ret}:')
    A('s_mov_b64 exec, -1')


def k1_compute(A, ver):
    extra = ver in ('qk', 'qv')
    t0, t1, t2, t3 = XF, XF + 1, XF + 2, XF + 3
    r16, g = XF + 4, XF + 5
    if WARM: warm_dispatch(A, ver)
    A(f'v_and_b32 v{r16}, 15, v{vLANE}')
    A(f'v_lshrrev_b32 v{g}, 4, v{vLANE}')
    A(f's_lshl_b32 s9, s{sWM}, 14')
    A(f'v_lshlrev_b32 v{t0}, 7, v{r16}')
    A(f'v_add_u32 v{t0}, s9, v{t0}')
    A(f'v_lshrrev_b32 v{t1}, 1, v{r16}')
    A(f'v_xor_b32 v{t1}, v{t1}, v{g}')
    for s in range(2):
        A(f'v_xor_b32 v{t2}, {4 * s}, v{t1}')
        A(f'v_lshl_add_u32 v{vXA + s}, v{t2}, 4, v{t0}')
        A(f'v_add_u32 v{vXA + 2 + s}, 0x8000, v{vXA + s}')
        A(f'v_add_u32 v{vXA + 4 + s}, 0x10000, v{vXA + s}')
    if extra:
        A('s_and_b32 s9, s7, 7')
        A('s_lshr_b32 s9, s9, 1')
        A('s_lshl_b32 s9, s9, 1')
        A('s_add_u32 s9, s9, s5')
        A(f's_mov_b32 s{sT4}, s9')
        A('s_lshl_b32 s9, s9, 12')
        for k in range(6):
            A(f'v_add_u32 v{vEXA + k}, s9, v{vXA + k}')
    A(f'v_bfe_u32 v{t0}, v{vLANE}, 2, 2')
    A(f'v_lshl_add_u32 v{t1}, v{g}, 3, v{t0}')
    A(f'v_and_b32 v{t2}, 1, v{g}')
    A(f'v_lshl_add_u32 v{t0}, v{t2}, 2, v{t0}')
    A(f'v_and_b32 v{t3}, 3, v{vLANE}')
    A(f'v_lshlrev_b32 v{t3}, 3, v{t3}')
    if extra:
        A(f'v_lshl_add_u32 v{vEWA}, v{t1}, 6, v{t3}')
        A(f'v_add_u32 v{vEWA}, {LE}, v{vEWA}')
        A(f'v_lshl_add_u32 v{vEWA}, v{t2}, 5, v{vEWA}')
        A(f'v_xor_b32 v{vEWA + 1}, 32, v{vEWA}')
    A(f'v_lshl_add_u32 v{t1}, v{t1}, 8, v{t3}')
    A(f'v_add_u32 v{t1}, {LW}, v{t1}')
    A(f's_lshl_b32 s9, s{sWN}, 2')
    A(f'v_xor_b32 v{t0}, s9, v{t0}')
    for nb in range(4):
        A(f'v_xor_b32 v{t2}, {nb}, v{t0}')
        A(f'v_lshl_add_u32 v{vWA + nb}, v{t2}, 5, v{t1}')
    for r in range(EACC if extra else ACC, 256):
        A(f'v_mov_b32 v{r}, 0')
    stamp(A, 1)
    if PF: k1_prefetch_issue(A)
    A('s_barrier')
    stamp(A, 2)
    if SPF & 4: A('buffer_load_dword v0, v1, s[16:19], s20 offen')
    if SPF & 8: A('buffer_load_dword v0, v1, s[16:19], s21 offen')
    cap = []
    kstep(cap.append, 2, ver, False)
    cap = cap[cap.index('s_barrier'):]
    for r in cap:
        if r.startswith('ds_read'): A(r)
    A('s_mov_b32 s11, 5')
    L = A.label('K1C')
    A('.p2align 6')
    A(f'{L}:')
    if XPF and not extra:
        Ls = A.label('K1XS')
        A('s_cmp_lg_u32 s11, s21')
        A(f's_cbranch_scc1 {Ls}')
        A('buffer_load_dword v0, v1, s[16:19], 0 offen')
        A(f'{Ls}:')
    for st in range(3):
        if PF and PFL and st == PFL - 1:
            A('s_add_u32 s21, s21, 3')
            A(f's_add_u32 s22, s21, {PFD - 3}')
            A('s_and_b32 s22, s22, 15')
            A('s_mul_i32 s22, s22, s20')
            A(f'buffer_load_dword v3, v1, s[16:19], s22 offen')
        if XP2D: xpf2_step(A)
        kstep(A, st, ver, False)
    A('s_sub_u32 s11, s11, 1')
    A('s_cmp_lg_u32 s11, 0')
    A(f's_cbranch_scc1 {L}')
    kstep(A, 0, ver, True)
    stamp(A, 3)
    def fin():
        stamp(A, 4)
        if STAMPS: A('s_waitcnt vmcnt(0)')
        stamp(A, 5)
        stamp_flush(A, 6, 0)
        A('s_endpgm')
    ret = f'K1W_{ver}_ret'
    if ver == 'kv':
        emit_warmable(A, k1_epi_kv, 'K1W_kv', 4, ret)
    else:
        if ver == 'q':
            A('s_cmp_lt_u32 s7, 24')
            A('s_cbranch_scc1 K1_phi')
        emit_warmable(A, lambda a: k1_epi_q(a, ver), f'K1W_{ver}', 2, ret)
    fin()
    if ver == 'q':
        A('K1_phi:')
        A('s_nop 15')
        if PF: A('s_waitcnt vmcnt(0)')
        if STAMPS: A('s_waitcnt lgkmcnt(0)')
        emit_warmable(A, k1_epi_phi, 'K1W_phi', 4, ret)
        fin()


def wph_addr(A, aP, hh, t0, t1, t2, t3, sh):
    A(f'v_bfe_u32 v{t0}, v{vLANE}, 2, 2')
    A(f'v_lshl_add_u32 v{t1}, v{hh}, 3, v{t0}')
    A(f'v_bfe_u32 v{t2}, v{vLANE}, 4, 1')
    A(f'v_and_b32 v{t3}, 3, v{vLANE}')
    A(f'v_lshl_add_u32 v{t3}, v{t2}, 2, v{t3}')
    A(f'v_lshlrev_b32 v{aP}, 3, v{t3}')
    A(f'v_lshl_add_u32 v{aP}, v{t1}, 6, v{aP}')
    A(f's_lshl_b32 s9, s{sWN}, {sh}')
    A(f's_add_u32 s9, s9, {LE}')
    A(f'v_add_u32 v{aP}, s9, v{aP}')


def k1_epi_phi(A):
    vo = 3
    T = (4, 12); KF = (52, 68); E = (20, 36, 52, 68); WPH = 100
    aP, hh, t0, t1, t2, t3 = 116, 117, 118, 119, 120, 121
    PK = lambda i, jn: ACC + 32 * i + 16 * jn
    A(f's_mov_b32 s{sC}, {LOG2E}')
    A(f's_mov_b32 s{sC + 1}, {LOG2E}')
    A(f'v_lshrrev_b32 v{hh}, 5, v{vLANE}')
    wph_addr(A, aP, hh, t0, t1, t2, t3, 12)
    for jn in range(2):
        for t in range(2):
            for u in range(2):
                A(f'ds_read_b64_tr_b16 {vr(WPH + 8 * jn + 4 * t + 2 * u, 2)}, v{aP} offset:{jn * 2048 + t * 256 + u * 1024}')
    A(f'v_lshlrev_b32 v{vo}, 4, v{vLANE}')
    A('s_and_b32 s9, s7, 7')
    A('s_lshl_b32 s9, s9, 2')
    A(f's_lshl_b32 s10, s{sWN}, 1')
    A('s_add_u32 s9, s9, s10')
    A('s_lshl_b32 s9, s9, 6')
    A('s_lshl_b32 s10, s6, 3')
    A('s_add_u32 s9, s9, s10')
    A(f's_lshl_b32 s10, s{sWM}, 2')
    A('s_add_u32 s9, s9, s10')
    A('s_lshl_b32 s9, s9, 12')
    A(f's_add_u32 s9, s9, {PHQ}')
    A('s_add_u32 s10, s9, 0x40000')
    for i in range(4):
        kf = KF[i & 1]
        for jn in range(2):
            for mbl in range(2):
                for nbl in range(2):
                    for x in range(2):
                        A(cvtpk(kf + 8 * jn + 4 * mbl + 2 * nbl + x, acc(2 * i + mbl, 2 * jn + nbl) + 2 * x))
        for jn in range(2):
            for x in range(4):
                A(f'v_permlane16_swap_b32 v{kf + 8 * jn + x}, v{kf + 8 * jn + 4 + x}')
        for t in range(2):
            for jn in range(2):
                A(mfma32(PK(i, jn), WPH + 8 * jn + 4 * t, kf + 8 * jn + 4 * t, '0' if t == 0 else None))
    pend = []
    for i in range(4):
        l = [[], []]
        for jn in range(2):
            e = E[2 * (i & 1) + jn]
            dual_softmax(l[jn].append, PK(i, jn), e, None, T[jn], sC)
        k = 0
        for a, b in zip(*l):
            A(a); A(b)
            k += 1
            if pend and k % 14 == 6: A(pend.pop(0))
        assert not pend
        for f in range(4):
            for jn in range(2):
                e = E[2 * (i & 1) + jn]
                src = (e if f < 2 else PK(i, jn)) + 4 * (f & 1)
                pend.append(f'buffer_store_dwordx4 {vr(src, 4)}, v{vo}, {sr(sWS, 4)}, s{9 + jn} offen offset:{f * 1024}')
        if i < 3:
            pend += ['s_add_u32 s9, s9, 4096', 's_add_u32 s10, s10, 4096']
            pend = pend[:7] + ['\n'.join(pend[7:])]
    for p in pend: A(p)


def k1_epi_q(A, ver):
    vo, t0, t1 = 4, 5, 6
    A(f'v_and_b32 v{t0}, 15, v{vLANE}')
    A(f'v_lshrrev_b32 v{t1}, 5, v{vLANE}')
    A(f'v_lshl_add_u32 v{t0}, v{t1}, 5, v{t0}')
    A(f'v_lshlrev_b32 v{vo}, 4, v{t0}')
    A(f'v_bfe_u32 v{t1}, v{vLANE}, 4, 1')
    A(f'v_lshl_add_u32 v{vo}, v{t1}, 10, v{vo}')
    A('s_and_b32 s9, s7, 7')
    A('s_lshl_b32 s9, s9, 2')
    A(f's_lshl_b32 s10, s{sWN}, 1')
    A('s_add_u32 s9, s9, s10')
    A('s_lshl_b32 s9, s9, 6')
    A('s_lshl_b32 s10, s6, 3')
    A('s_add_u32 s9, s9, s10')
    A(f's_lshl_b32 s10, s{sWM}, 2')
    A('s_add_u32 s9, s9, s10')
    A('s_lshl_b32 s9, s9, 11')
    A('s_add_u32 s9, s9, s8')
    k = 0
    for jn in range(2):
        for mb in range(8):
            tmp = XF + (k % 8) * 4
            k += 1
            for nbl in range(2):
                for x in range(2):
                    A(cvtpk(tmp + 2 * nbl + x, acc(mb, 2 * jn + nbl) + 2 * x))
            if mb % 4 == 0:
                A(f's_add_u32 s10, s9, {jn * 131072 + (mb >> 2) * 4096}')
            A(f'buffer_store_dwordx4 {vr(tmp, 4)}, v{vo}, {sr(sWS, 4)}, s10 offen offset:{((mb >> 1) & 1) * 2048 + (mb & 1) * 256}')
    if ver in ('qk', 'qv'):
        tmp = WF
        nr = 8
        A(f's_lshl_b32 s9, s6, 15')
        A(f's_lshl_b32 s10, s{sT4}, 11')
        A('s_add_u32 s9, s9, s10')
        A(f's_add_u32 s9, s9, {KV + (16384 if ver == "qv" else 0)}')
        if ver == 'qk':
            vk = 7
            A(f'v_and_b32 v{t0}, 4, v{vLANE}')
            A(f'v_lshlrev_b32 v{t0}, 2, v{t0}')
            A(f'v_and_b32 v{t1}, 8, v{vLANE}')
            A(f'v_lshrrev_b32 v{t1}, 1, v{t1}')
            A(f'v_or_b32 v{t0}, v{t0}, v{t1}')
            A(f'v_and_b32 v{t1}, 3, v{vLANE}')
            A(f'v_or_b32 v{t0}, v{t0}, v{t1}')
            A(f'v_and_b32 v{t1}, 32, v{vLANE}')
            A(f'v_or_b32 v{t0}, v{t0}, v{t1}')
            A(f'v_lshlrev_b32 v{vk}, 4, v{t0}')
            A(f'v_bfe_u32 v{t1}, v{vLANE}, 4, 1')
            A(f'v_lshl_add_u32 v{vk}, v{t1}, 10, v{vk}')
            A(f's_mov_b32 s10, {f32bits(KSCALE)}')
            for r in range(16):
                A(f'v_mul_f32 v{EACC + r}, s10, v{EACC + r}')
            for mbl in range(2):
                A(f'v_mul_f32 v{nr + mbl}, v{eacc(mbl, 0)}, v{eacc(mbl, 0)}')
                for r in range(1, 8):
                    A(f'v_fmac_f32 v{nr + mbl}, v{eacc(mbl, 0) + r}, v{eacc(mbl, 0) + r}')
            A(f'v_permlane16_swap_b32 v{nr}, v{nr + 1}')
            A(f'v_add_f32 v{nr}, v{nr}, v{nr + 1}')
            A(f'v_mov_b32 v{nr + 1}, v{nr}')
            A(f'v_permlane32_swap_b32 v{nr}, v{nr + 1}')
            A(f'v_add_f32 v{nr}, v{nr}, v{nr + 1}')
            for mbl in range(2):
                for nbl in range(2):
                    for x in range(2):
                        A(cvtpk(tmp + 4 * mbl + 2 * nbl + x, eacc(mbl, nbl) + 2 * x))
                A(f'buffer_store_dwordx4 {vr(tmp + 4 * mbl, 4)}, v{vk}, {sr(sWS, 4)}, s9 offen offset:{mbl * 128}')
        else:
            A(f'v_max3_f32 v{nr}, |v{EACC}|, |v{EACC + 1}|, |v{EACC + 2}|')
            for r in range(3, 15, 2):
                A(f'v_max3_f32 v{nr}, v{nr}, |v{EACC + r}|, |v{EACC + r + 1}|')
            A(f'v_max_f32 v{nr}, v{nr}, |v{EACC + 15}|')
            for nbl in range(2):
                for mbl in range(2):
                    for x in range(2):
                        A(cvtpk(tmp + 4 * nbl + 2 * mbl + x, eacc(mbl, nbl) + 2 * x))
                A(f'buffer_store_dwordx4 {vr(tmp + 4 * nbl, 4)}, v{vo}, {sr(sWS, 4)}, s9 offen offset:{nbl * 256}')
        dpp_max_reduce(A, nr)
        A('s_lshl_b32 s9, s6, 3')
        A(f's_add_u32 s9, s9, s{sT4}')
        A('s_lshl_b32 s9, s9, 2')
        A(f's_add_u32 s9, s9, {KN if ver == "qk" else VM}')
        A(f'v_mov_b32 v{nr + 1}, 0')
        A('s_mov_b32 exec_lo, 0')
        A('s_mov_b32 exec_hi, 0x80000000')
        A(f'buffer_store_dword v{nr}, v{nr + 1}, {sr(sWS, 4)}, s9 offen')
        A('s_mov_b64 exec, -1')


def k1_epi_kv(A):
    KF = 48
    VF = 80
    PHI = 48
    PHT = 64
    WPH = 112
    PK = lambda i: ACC + 32 * i
    ET = ACC + 16
    KV0 = ACC + 48
    KV1 = ACC + 80
    Z = 16
    SEL = 24
    T = 28
    aW = 36
    aR = 40
    aP = 42
    vo = 43
    t0, t1, t2, t3 = 44, 45, 46, 47
    l31, hh = 4, 5
    A(f's_mov_b32 s{sC}, {LOG2E}')
    A(f's_mov_b32 s{sC + 1}, {LOG2E}')
    A(f'v_and_b32 v{l31}, 31, v{vLANE}')
    A(f'v_lshrrev_b32 v{hh}, 5, v{vLANE}')
    wph_addr(A, aP, hh, t0, t1, t2, t3, 11)
    for t in range(2):
        for u in range(2):
            A(f'ds_read_b64_tr_b16 {vr(WPH + 4 * t + 2 * u, 2)}, v{aP} offset:{t * 256 + u * 1024}')
    A('s_lshl_b32 s9, s5, 14')
    A(f's_add_u32 s9, s9, {SCR}')
    A(f'v_lshrrev_b32 v{t2}, 1, v{t1}')
    A(f'v_xor_b32 v{t2}, v{t2}, v{t3}')
    A(f'v_lshlrev_b32 v{t1}, 6, v{t1}')
    A(f'v_add_u32 v{t1}, s9, v{t1}')
    A(f'v_lshl_add_u32 v{aR}, v{t2}, 3, v{t1}')
    A(f'v_xor_b32 v{t2}, 2, v{t2}')
    A(f'v_lshl_add_u32 v{aR + 1}, v{t2}, 3, v{t1}')
    A(f'v_add_u32 v{aR + 1}, 256, v{aR + 1}')
    A(f'v_bfe_u32 v{t0}, v{l31}, 1, 3')
    A(f'v_xor_b32 v{t0}, v{t0}, v{hh}')
    A(f'v_lshlrev_b32 v{t1}, 6, v{l31}')
    A(f'v_add_u32 v{t1}, s9, v{t1}')
    for a in range(4):
        A(f'v_xor_b32 v{t2}, {2 * a}, v{t0}')
        A(f'v_lshl_add_u32 v{aW + a}, v{t2}, 3, v{t1}')
    emit_selector(A, SEL, vLANE, t0, t1)
    A(f'v_lshlrev_b32 v{vo}, 4, v{vLANE}')
    for i in range(4):
        for mbl in range(2):
            for nbl in range(2):
                for x in range(2):
                    A(cvtpk(KF + i * 8 + 4 * mbl + 2 * nbl + x, acc(2 * i + mbl, nbl) + 2 * x))
        for mbl in range(2):
            for nbl in range(2):
                for x in range(2):
                    A(cvtpk(VF + i * 8 + 4 * nbl + 2 * mbl + x, acc(2 * i + mbl, 2 + nbl) + 2 * x))
        for x in range(4):
            A(f'v_permlane16_swap_b32 v{KF + i * 8 + x}, v{KF + i * 8 + 4 + x}')
        for x in range(4):
            A(f'v_permlane16_swap_b32 v{VF + i * 8 + x}, v{VF + i * 8 + 4 + x}')
        A(mfma32(PK(i), WPH, KF + i * 8, '0'))
        A(mfma32(PK(i), WPH + 4, KF + i * 8 + 4))
    for i in range(4):
        dual_softmax(A, PK(i), ET, PHI, T, sC)
        for fb in range(2):
            for a in range(4):
                A(f'ds_write_b64 v{aW + a}, {vr(PHI + fb * 8 + 2 * a, 2)} offset:{i * 4096 + fb * 2048}')
        for fb in range(2):
            for t in range(2):
                for u in range(2):
                    A(f'ds_read_b64_tr_b16 {vr(PHT + (fb * 2 + t) * 4 + 2 * u, 2)}, v{aR + t} offset:{i * 4096 + fb * 2048 + u * 1024}')
        for fb in range(2):
            kv = KV0 if fb == 0 else KV1
            for t in range(2):
                first = (i == 0 and t == 0)
                A(mfma32(kv, PHT + (fb * 2 + t) * 4, VF + i * 8 + 4 * t, '0' if first else None))
                A(mfma16(Z + 4 * fb, SEL, PHT + (fb * 2 + t) * 4, '0' if first else None))
    A('s_lshl_b32 s9, s7, 1')
    A(f's_add_u32 s9, s9, s{sWN}')
    A('s_lshl_b32 s9, s9, 4')
    A('s_lshl_b32 s10, s6, 1')
    A('s_add_u32 s9, s9, s10')
    A(f's_add_u32 s9, s9, s{sWM}')
    A('s_lshl_b32 s10, s9, 13')
    A(f's_add_u32 s10, s10, {KVP}')
    for fb in range(2):
        kv = KV0 if fb == 0 else KV1
        for q in range(4):
            A(f'buffer_store_dwordx4 {vr(kv + 4 * q, 4)}, v{vo}, {sr(sWS, 4)}, s10 offen offset:{q * 1024}')
        if fb == 0:
            A('s_add_u32 s10, s10, 4096')
    A('s_lshl_b32 s10, s9, 8')
    A(f's_add_u32 s10, s10, {ZP}')
    A(f'v_lshlrev_b32 v{t0}, 2, v{vLANE}')
    A('s_mov_b32 exec_hi, 0')
    for fb in range(2):
        A(f'buffer_store_dword v{Z + 4 * fb}, v{t0}, {sr(sWS, 4)}, s10 offen offset:{fb * 128}')
    A('s_mov_b64 exec, -1')


def k1_prefetch(A):
    va, t0, t1 = 4, 5, 6
    Lw = A.label('K1PW'); Lg = A.label('K1PG')
    A('s_cmp_ge_u32 s4, 16')
    A(f's_cbranch_scc1 {Lw}')
    A('s_and_b32 s9, s6, 3')
    A('s_lshl_b32 s9, s9, 19')
    A(f's_sub_u32 s16, s{sX}, s9')
    A(f's_subb_u32 s17, s{sX + 1}, 0')
    A('s_and_b32 s17, s17, 0xffff')
    A('s_mov_b32 s18, 0x200000')
    A('s_mov_b32 s19, 0x00020000')
    A('s_lshl_b32 s9, s4, 6')
    A(f'v_add_u32 v{va}, s9, v{vLANE}')
    A(f'v_lshlrev_b32 v{va}, 11, v{va}')
    A('s_movk_i32 s20, 128')
    A(f's_branch {Lg}')
    A(f'{Lw}:')
    A(f's_mov_b32 s16, s{sW}')
    A(f's_mov_b32 s17, s{sW + 1}')
    A(f's_mov_b32 s18, s{sW + 2}')
    A('s_mov_b32 s19, 0x00020000')
    A('s_sub_u32 s9, s4, 16')
    A('s_lshl_b32 s9, s9, 2')
    A(f'v_lshrrev_b32 v{t0}, 4, v{vLANE}')
    A(f'v_add_u32 v{t0}, s9, v{t0}')
    A(f'v_mul_lo_u32 v{va}, v{t0}, s35')
    A('s_lshr_b32 s9, s7, 3')
    A('s_lshl_b32 s9, s9, 10')
    A('s_add_u32 s9, s9, 2048')
    A('s_cmp_lt_u32 s7, 16')
    A('s_cselect_b32 s9, s9, 0')
    A('s_cselect_b32 s10, 11, 10')
    A(f'v_and_b32 v{t0}, 7, v{vLANE}')
    A(f'v_lshl_add_u32 v{va}, v{t0}, 7, v{va}')
    A(f'v_bfe_u32 v{t0}, v{vLANE}, 3, 1')
    A(f'v_lshlrev_b32 v{t0}, s10, v{t0}')
    A(f'v_add3_u32 v{va}, v{va}, v{t0}, s9')
    A('s_lshl_b32 s20, s35, 6')
    A(f'{Lg}:')
    A(f's_mul_i32 s21, s3, {ROT}')
    A('s_add_u32 s21, s21, s5')
    A(f'v_mov_b32 v1, v{va}')


def k1_xpf(A):
    r6, r7 = (RT >> 24) & 15, (RT >> 28) & 15
    assert r7 == (r6 + 8) & 15 and r6 == 0
    t0 = 4
    A('s_lshl_b32 s9, s3, 5')
    A('s_add_u32 s9, s9, s4')
    A('s_sub_u32 s10, s9, 96')
    A('s_cmp_ge_u32 s9, 96')
    A('s_cselect_b32 s9, s10, s9')
    A('s_cselect_b32 s16, s26, s24')
    A('s_cselect_b32 s17, s27, s25')
    A('s_cselect_b32 s18, 21, 22')
    A('s_cselect_b32 s22, 8, 16')
    A('s_cselect_b32 s23, 1, 0')
    A('s_lshl_b32 s18, 1, s18')
    A('s_and_b32 s17, s17, 0xffff')
    A('s_mov_b32 s19, 0x00020000')
    A('s_lshr_b32 s10, s9, 5')
    A('s_mul_i32 s11, s5, 3')
    A('s_add_u32 s10, s10, s11')
    A(f's_add_u32 s10, s10, {XPF}')
    A('s_sub_u32 s21, 5, s5')
    A('s_cmp_ge_u32 s10, s22')
    A('s_cselect_b32 s21, -1, s21')
    A('s_cmp_ge_u32 s3, 6')
    A('s_cselect_b32 s21, -1, s21')
    A('s_bfe_u32 s11, s9, 0x10004')
    A('s_lshl_b32 s22, s11, 3')
    A('s_add_u32 s10, s10, s22')
    A('s_and_b32 s10, s10, 15')
    A('s_and_b32 s9, s9, 15')
    A('s_cmp_eq_u32 s23, 1')
    Lw = A.label('K1XW'); Lg = A.label('K1XG')
    A(f's_cbranch_scc1 {Lw}')
    A('s_lshl_b32 s11, s11, 4')
    A('s_add_u32 s9, s9, s11')
    A('s_lshl_b32 s9, s9, 17')
    A('s_lshl_b32 s10, s10, 7')
    A('s_add_u32 s9, s9, s10')
    A(f'v_lshlrev_b32 v1, 11, v{vLANE}')
    A(f'v_add_u32 v1, s9, v1')
    A(f's_branch {Lg}')
    A(f'{Lw}:')
    A('s_lshl_b32 s10, s10, 4')
    A('s_add_u32 s9, s9, s10')
    A('s_lshl_b32 s9, s9, 13')
    A(f'v_lshrrev_b32 v1, 4, v{vLANE}')
    A(f'v_lshlrev_b32 v1, 11, v1')
    A(f'v_and_b32 v{t0}, 15, v{vLANE}')
    A(f'v_lshl_add_u32 v1, v{t0}, 7, v1')
    A(f'v_add_u32 v1, s9, v1')
    A(f'{Lg}:')


def k1_spf(A):
    A('s_lshl_b32 s9, s2, 2')
    A('s_add_u32 s9, s9, s5')
    if SPFP:
        A('s_lshl_b32 s9, s3, 7')
        A('s_lshl_b32 s10, s4, 2')
        A('s_add_u32 s9, s9, s10')
        A('s_add_u32 s9, s9, s5')
    A('s_mov_b32 s10, s9')
    A('s_mov_b32 s22, s16')
    A('s_mov_b32 s23, s17')
    A('s_mov_b32 s11, 0x400000')
    for lim, (lo, hi, sz) in ((256, (18, 19, 0x600000)), (640, (24, 25, 0x400000)), (896, (26, 27, 0x200000))):
        A(f's_sub_u32 s21, s9, {lim}')
        A(f's_cmp_ge_u32 s9, {lim}')
        A('s_cselect_b32 s10, s21, s10')
        A(f's_cselect_b32 s22, s{lo}, s22')
        A(f's_cselect_b32 s23, s{hi}, s23')
        A(f's_cselect_b32 s11, {sz}, s11')
    A('s_mov_b32 s16, s22')
    A('s_and_b32 s17, s23, 0xffff')
    A('s_mov_b32 s18, s11')
    A('s_mov_b32 s19, 0x00020000')
    A('s_lshl_b32 s20, s10, 14')
    A('s_add_u32 s21, s20, 8192')
    A(f'v_lshlrev_b32 v1, 7, v{vLANE}')
    if SPF & 1: A('buffer_load_dword v0, v1, s[16:19], s20 offen')
    if SPF & 2: A('buffer_load_dword v0, v1, s[16:19], s21 offen')


def k1_xpf2(A):
    t0 = 4
    A('s_lshl_b32 s9, s2, 2')
    A('s_add_u32 s9, s9, s5')
    A('s_lshr_b32 s21, s9, 7')
    A('s_and_b32 s9, s9, 127')
    A(f's_add_u32 s10, s21, {XP2D}')
    Lb = A.label('X2B'); Lw = A.label('X2W'); Lv = A.label('X2V'); Lg = A.label('X2G'); Lx = A.label('X2X')
    A('s_cmp_ge_u32 s9, 112')
    A(f's_cbranch_scc1 {Lv}')
    A('s_cmp_ge_u32 s9, 64')
    A(f's_cbranch_scc1 {Lw}')
    A('s_cmp_ge_u32 s9, 32')
    A('s_cselect_b32 s16, s24, s16')
    A('s_cselect_b32 s17, s25, s17')
    A('s_mov_b32 s18, 0x400000')
    A('s_and_b32 s9, s9, 31')
    A('s_lshl_b32 s9, s9, 17')
    A('s_lshl_b32 s20, s10, 7')
    A('s_add_u32 s20, s20, s9')
    A('s_movk_i32 s22, 1024')
    A(f'v_lshlrev_b32 v1, 11, v{vLANE}')
    A(f's_branch {Lg}')
    A(f'{Lw}:')
    A('s_mov_b32 s16, s18')
    A('s_mov_b32 s17, s19')
    A('s_mov_b32 s18, 0x600000')
    A('s_sub_u32 s9, s9, 64')
    A('s_lshl_b32 s9, s9, 13')
    A('s_mul_i32 s20, s10, 0x60000')
    A('s_add_u32 s20, s20, s9')
    A('s_mov_b32 s22, 0x300000')
    A(f'v_lshlrev_b32 v1, 7, v{vLANE}')
    A(f's_branch {Lg}')
    A(f'{Lv}:')
    A('s_mov_b32 s16, s26')
    A('s_mov_b32 s17, s27')
    A('s_mov_b32 s18, 0x200000')
    A('s_sub_u32 s9, s9, 112')
    A('s_lshl_b32 s9, s9, 13')
    A('s_lshl_b32 s20, s10, 17')
    A('s_add_u32 s20, s20, s9')
    A('s_mov_b32 s22, 0x100000')
    A(f'v_lshlrev_b32 v1, 7, v{vLANE}')
    A(f'{Lg}:')
    A('s_and_b32 s17, s17, 0xffff')
    A('s_mov_b32 s19, 0x00020000')
    A('s_mov_b32 s23, 0')
    for n_, ks in enumerate(XP2E):
        tw = 4 + n_
        Le = A.label('X2E')
        A(f's_cmp_lg_u32 s21, {tw}')
        A(f's_cbranch_scc1 {Le}')
        A('s_lshr_b32 s9, s22, 3')
        A(f's_mul_i32 s9, s9, {tw + XP2D - ks}')
        A('s_sub_u32 s9, s20, s9')
        A('buffer_load_dword v0, v1, s[16:19], s9 offen')
        A(f'{Le}:')


def xpf2_step(A):
    Ls = A.label('K1XS')
    A('s_cmp_lg_u32 s23, s21')
    A(f's_cbranch_scc1 {Ls}')
    A('buffer_load_dword v0, v1, s[16:19], s20 offen')
    A('s_add_u32 s20, s20, s22')
    A('s_add_u32 s21, s21, 8')
    A(f's_cmp_ge_u32 s21, {16 - XP2D}')
    A('s_cselect_b32 s21, -1, s21')
    A(f'{Ls}:')
    A('s_add_u32 s23, s23, 1')


def k1_prefetch_issue(A):
    A('s_barrier')
    for j in range(PFN):
        A(f's_add_u32 s22, s21, {4 * j + PF - 1}')
        A('s_and_b32 s22, s22, 15')
        A('s_mul_i32 s22, s22, s20')
        A(f'buffer_load_dword v3, v1, s[16:19], s22 offen')


def k1(A):
    A('k1_kernel:')
    A('s_cmp_ge_u32 s2, 256')
    A('s_cbranch_scc0 K1_go')
    A('s_endpgm')
    A('K1_go:')
    stamp(A, 0)
    A('s_load_dwordx16 s[16:31], s[0:1], 0')
    A('s_load_dwordx2 s[32:33], s[0:1], 88')
    A('v_lshrrev_b32 v1, 6, v0')
    A(f'v_and_b32 v{vLANE}, 63, v0')
    A('v_readfirstlane_b32 s5, v1')
    A('s_and_b32 s3, s2, 7')
    A('s_lshr_b32 s4, s2, 3')
    A('s_and_b32 s9, s4, 3')
    A('s_lshr_b32 s10, s4, 2')
    A('s_and_b32 s6, s3, 1')
    A('s_lshl_b32 s6, s6, 2')
    A('s_add_u32 s6, s6, s9')
    A('s_lshr_b32 s7, s3, 1')
    A('s_lshl_b32 s7, s7, 3')
    A('s_add_u32 s7, s7, s10')
    if MIX:
        A('s_mul_i32 s9, s7, 11')
        A('s_lshr_b32 s9, s9, 5')
        A('s_mul_i32 s10, s9, 3')
        A('s_sub_u32 s10, s7, s10')
        A('s_lshl_b32 s11, s9, 1')
        A('s_add_u32 s11, s11, s10')
        A('s_add_u32 s9, s9, 16')
        A('s_cmp_eq_u32 s10, 2')
        A('s_cselect_b32 s9, s9, s11')
        A('s_cmp_lt_u32 s7, 24')
        A('s_cselect_b32 s7, s9, s7')
    A(f's_bfe_u32 s{sWM}, s5, 0x10001')
    A(f's_and_b32 s{sWN}, s5, 1')
    A('s_lshl_b32 s9, s7, 7')
    A('s_add_u32 s9, s9, 2048')
    A('s_and_b32 s10, s7, 7')
    A('s_lshl_b32 s10, s10, 8')
    A('s_cmp_lt_u32 s7, 16')
    A('s_cselect_b32 s14, s9, s10')
    A('s_cselect_b32 s15, 2048, 64')
    A('s_cselect_b32 s34, 64, 128')
    A('s_cselect_b32 s11, 12, 13')
    A(f's_lshl_b32 s{sE + 2}, 1, s11')
    A('s_movk_i32 s35, 6144')
    A(f's_mov_b32 s{sW + 2}, 0x600000')
    A('s_waitcnt lgkmcnt(0)')
    A('s_cmp_ge_u32 s7, 24')
    A('s_cselect_b32 s35, 2048, s35')
    A(f's_cselect_b32 s8, {QB}, {QA}')
    A(f's_cselect_b32 s{sX}, s24, s16')
    A(f's_cselect_b32 s{sX + 1}, s25, s17')
    A(f's_cselect_b32 s{sW}, s26, s18')
    A(f's_cselect_b32 s{sW + 1}, s27, s19')
    A(f's_cselect_b32 s{sW + 2}, 0x200000, s{sW + 2}')
    A(f's_cselect_b32 s{sE + 2}, 65536, s{sE + 2}')
    A('s_lshl_b32 s9, s6, 19')
    A(f's_add_u32 s{sX}, s{sX}, s9')
    A(f's_addc_u32 s{sX + 1}, s{sX + 1}, 0')
    A(f's_and_b32 s{sX + 1}, s{sX + 1}, 0xffff')
    A(f's_mov_b32 s{sX + 2}, 0x80000')
    A(f's_mov_b32 s{sX + 3}, 0x00020000')
    A(f's_and_b32 s{sW + 1}, s{sW + 1}, 0xffff')
    A(f's_mov_b32 s{sW + 3}, 0x00020000')
    A('s_and_b32 s9, s7, 15')
    A('s_lshl_b32 s9, s9, s11')
    A('s_add_u32 s20, s20, s9')
    A('s_addc_u32 s21, s21, 0')
    A('s_bitcmp1_b32 s7, 0')
    A('s_cselect_b32 s28, s30, s28')
    A('s_cselect_b32 s29, s31, s29')
    A('s_cmp_ge_u32 s7, 24')
    A(f's_cselect_b32 s{sE}, s28, s20')
    A(f's_cselect_b32 s{sE + 1}, s29, s21')
    A(f's_and_b32 s{sE + 1}, s{sE + 1}, 0xffff')
    A(f's_mov_b32 s{sE + 3}, 0x00020000')
    make_srd(A, sWS, 's32', 's33', WS_SIZE)
    A('s_cmp_ge_u32 s5, 4')
    A('s_cbranch_scc1 K1_loader')
    if PF: k1_prefetch(A)
    if XPF: k1_xpf(A)
    if XP2D: k1_xpf2(A)
    if SPF: k1_spf(A)
    A('s_cmp_lt_u32 s7, 16')
    A('s_cbranch_scc1 K1_kv')
    A('s_cmp_lt_u32 s7, 24')
    A('s_cbranch_scc1 K1_q')
    A('s_cmp_ge_u32 s5, 2')
    A('s_cbranch_scc1 K1_q')
    if 'n' in XP: A('s_branch K1_q')
    A('s_bitcmp1_b32 s7, 0')
    A('s_cbranch_scc1 K1_qv')
    k1_compute(A, 'qk')
    A('K1_qv:')
    k1_compute(A, 'qv')
    A('K1_q:')
    k1_compute(A, 'q')
    A('K1_kv:')
    k1_compute(A, 'kv')
    A('K1_loader:')
    A('s_cmp_ge_u32 s7, 24')
    A('s_cbranch_scc1 K1_loaderB')
    k1_loader(A, False)
    A('K1_loaderB:')
    k1_loader(A, True)
```

```python
import os
import gen_k1, gen_k2, gen_k3
from gen_k2 import *
from gen_k2 import vr, sr, mfma32, mfma16, cvtpk, make_srd, emit_selector, dpp_max_reduce, stamp, f32bits
from gen_k1 import MB, STAMP_BASE
from gen_k3 import NS, STG, LWO, XF, WF, ACC, vXA, vWA, acc, reads, kstep, sX, sW, sO, sL, sGX, sGW, sD, sCnt, sWM, sWN
FLG = 14 * MB
K23_LDS = NS * STG
F_MAP = int(os.environ.get('F_MAP', '1'))
F_EARLY = int(os.environ.get('F_EARLY', '2'))
F_PF = int(os.environ.get('F_PF', '1'))
ROT = int(os.environ.get('ROT3', '6'))
RR = int(os.environ.get('RR3', '8'))
RC = int(os.environ.get('RC3', '2'))
SPIN = 20000
F_FAST = int(os.environ.get('F_FAST', '1'))
XT = FLG + 16384
vOB = 176
sFAST, sXT = 69, 68
F_AF = int(os.environ.get('F_AF', '1'))
sMT, sNT, sMAT, sFA, sFB, sFC = 61, 62, 63, 64, 65, 34
sPA, sPB = 24, 28
vFO, vFL = 164, 165
WT = 'sc0 sc1'
vW3, vX3, vPRE = 172, 173, 174
sK0, sGO = 94, 95


def pre_dma(i):
    r = []
    for j in range(4):
        r += [f's_add_u32 m0, s31, {(4, 0)[i] * STG + j * 1024}', 's_nop 0',
              f'buffer_load_dwordx4 v{vPRE}, s[24:27], s{29 + i} offen lds']
        if j < 3: r += [f's_add_u32 s{29 + i}, s{29 + i}, s28']
    return r


def flush2(A):
    if not gen_k1.STAMPS: return
    A('s_waitcnt lgkmcnt(0)')
    A('s_lshl_b32 s3, s2, 3')
    A('s_add_u32 s3, s3, s35')
    A('s_lshl_b32 s3, s3, 6')
    A(f's_add_u32 s3, s3, {STAMP_BASE + MB}')
    A(f's_add_u32 s4, s3, {MB}')
    A('v_mov_b32 v1, 0')
    A('s_mov_b64 exec, 1')
    for i in range(12):
        A(f'v_mov_b32 v3, s{70 + 2 * i}')
        A(f'buffer_store_dword v3, v1, {sr(sWS, 4)}, s{3 + i // 6} offen offset:{4 * (i % 6)}')
    A('s_mov_b64 exec, -1')


def set_flag(A, s):
    if F_FAST:
        A(f's_mov_b32 exec_lo, s{sFAST}')
        A('s_mov_b32 exec_hi, 0')
        A(f'buffer_store_dword v{vFO + 2}, v{vFO + 3}, {sr(sWS, 4)}, s{s} offen')
        A(f's_xor_b32 exec_lo, s{sFAST}, 1')
    else:
        A('s_mov_b64 exec, 1')
    A(f'buffer_store_dword v{vFO + 2}, v{vFO + 3}, {sr(sWS, 4)}, s{s} offen {WT}')
    A('s_mov_b64 exec, -1')


def clean(A):
    if not F_FAST or F_FAST == 2: return
    for x in range(2):
        A(f'buffer_store_dwordx4 {vr(vOB + 4 * x, 4)}, v{vL16}, {sr(sWS, 4)}, s{sOB} offen offset:{1024 * x}')
    A('s_mov_b64 exec, 1')
    A(f'buffer_store_dword v{vFO + 2}, v{vFO + 3}, {sr(sWS, 4)}, s{sFB} offen {WT}')
    A('s_mov_b64 exec, -1')


def hsave(A):
    from asmlib import HState
    h = HState()
    h.vm = [({vFL}, 'flagread'), (set(), 'st'), (set(), 'st')]
    return h


def f_loader(A):
    n = 8
    vX0, vW = vX3, vW3
    sK, sN = sCnt, 58
    sT = gen_k3.sT
    A('s_sub_u32 s5, s5, 4')
    A(f's_lshl_b32 s{sL}, s5, 12')
    A(f's_lshl_b32 s{sN}, s{sNT}, 8')
    for i in range(3):
        A(f's_add_u32 s{16 + i}, s{sK0}, {2 + i}')
        A(f's_and_b32 s{16 + i}, s{16 + i}, 15')
    A(f's_add_u32 s{sK}, s{sK0}, 5')
    A('s_waitcnt vmcnt(0)')
    set_flag(A, sFB)
    stamp(A, 7)
    def issue():
        A(f's_and_b32 s{sK}, s{sK}, 15')
        A(f's_lshl_b32 s{sGX}, s{sK}, 12')
        A(f's_lshl_b32 s{sGW}, s{sK}, 17')
        A(f's_add_u32 s{sGW}, s{sGW}, s{sN}')
        for j in range(4):
            A(f's_add_u32 m0, s{sL}, {LWO + j * 1024}')
            A(f's_add_u32 s{sT}, s{sGW}, {j * 8192}')
            A(f'buffer_load_dwordx4 v{vW}, {sr(sW, 4)}, s{sT} offen lds')
            A(f's_add_u32 m0, s{sL}, {j * 1024}')
            A(f's_add_u32 s{sT}, s{sGX}, {j * 1024}')
            A(f'buffer_load_dwordx4 v{vX0}, {sr(sX, 4)}, s{sT} offen lds')
        A(f's_add_u32 s{sK}, s{sK}, 1')
        A(f's_add_u32 s{sL}, s{sL}, {STG}')
        A(f's_cmp_ge_u32 s{sL}, {NS * STG}')
        A(f's_cselect_b32 s{sT}, {NS * STG}, 0')
        A(f's_sub_u32 s{sL}, s{sL}, s{sT}')

    A('s_barrier')
    if F_AF:
        A(f's_cmp_eq_u32 s{sMAT}, 0' if F_AF == 1 else 's_cmp_eq_u32 0, 0')
        A('s_cbranch_scc1 K3_ldA')
    for i in range(3):
        A(f's_lshl_b32 s{sGW}, s{16 + i}, 17')
        A(f's_add_u32 s{sGW}, s{sGW}, s{sN}')
        for j in range(4):
            A(f's_add_u32 m0, s{sL}, {(1 + i) * STG + LWO + j * 1024}')
            A(f's_add_u32 s{sT}, s{sGW}, {j * 8192}')
            A(f'buffer_load_dwordx4 v{vW}, {sr(sW, 4)}, s{sT} offen lds')
    stamp(A, 8)
    A('s_barrier')
    stamp(A, 9)
    for i in range(3):
        A(f's_lshl_b32 s{sGX}, s{16 + i}, 12')
        for j in range(4):
            A(f's_add_u32 m0, s{sL}, {(1 + i) * STG + j * 1024}')
            A(f's_add_u32 s{sT}, s{sGX}, {j * 1024}')
            A(f'buffer_load_dwordx4 v{vX0}, {sr(sX, 4)}, s{sT} offen lds')
    A(f's_add_u32 s{sL}, s{sL}, {4 * STG}')

    A('s_barrier')
    issue()
    A('s_waitcnt vmcnt(16)')
    A('s_barrier')
    issue()
    A('s_waitcnt vmcnt(20)')
    A('s_barrier')
    issue()
    A('K3_ldJ:')
    A('s_mov_b32 s11, 8')
    L = A.label('K3LD')
    A(f'{L}:')
    A('s_waitcnt vmcnt(24)')
    A('s_barrier')
    issue()
    A('s_sub_u32 s11, s11, 1')
    A('s_cmp_lg_u32 s11, 0')
    A(f's_cbranch_scc1 {L}')
    for i in range(3, -1, -1):
        A(f's_waitcnt vmcnt({i * n})')
        A('s_barrier')
    clean(A)
    stamp(A, 10)
    A('s_barrier')
    stamp(A, 11)
    flush2(A)
    A('s_endpgm')
    if F_AF:
        A('K3_ldA:')
        stamp(A, 8)
        A('s_barrier')
        stamp(A, 9)
        A(f's_sub_u32 s{sK}, s{sK}, 3')
        A(f's_add_u32 s{sL}, s{sL}, {STG}')
        issue(); issue()
        A('s_barrier')
        issue(); issue()
        A('s_waitcnt vmcnt(24)')
        A('s_barrier')
        issue()
        A('s_waitcnt vmcnt(24)')
        A('s_barrier')
        issue()
        A('s_branch K3_ldJ')


def f_compute(A):
    t0, t1, t2, t3, r16, g = XF, XF + 1, XF + 2, XF + 3, XF + 4, XF + 5
    A(f's_bfe_u32 s{sWM}, s5, 0x10001')
    A(f's_and_b32 s{sWN}, s5, 1')
    A(f'v_and_b32 v{r16}, 15, v{vLANE}')
    A(f'v_lshrrev_b32 v{g}, 4, v{vLANE}')
    A(f's_lshl_b32 s9, s{sWM}, 13')
    A(f's_add_u32 s9, s9, {4 * STG}')
    A(f'v_lshlrev_b32 v{t0}, 4, v{r16}')
    A(f'v_add_u32 v{t0}, s9, v{t0}')
    A(f'v_and_b32 v{t1}, 1, v{g}')
    A(f'v_lshl_add_u32 v{t0}, v{t1}, 10, v{t0}')
    A(f'v_lshrrev_b32 v{t1}, 1, v{g}')
    A(f'v_lshl_add_u32 v{vXA}, v{t1}, 9, v{t0}')
    A(f'v_add_u32 v{vXA + 1}, 2048, v{vXA}')
    A(f'v_bfe_u32 v{t0}, v{vLANE}, 2, 2')
    A(f'v_and_b32 v{t2}, 1, v{g}')
    A(f'v_lshl_add_u32 v{t1}, v{t2}, 4, v{t0}')
    A(f'v_lshrrev_b32 v{t3}, 1, v{g}')
    A(f'v_lshl_add_u32 v{t1}, v{t3}, 2, v{t1}')
    A(f'v_lshl_add_u32 v{t0}, v{t2}, 2, v{t0}')
    A(f'v_and_b32 v{t3}, 3, v{vLANE}')
    A(f'v_lshlrev_b32 v{t3}, 3, v{t3}')
    A(f'v_lshl_add_u32 v{t1}, v{t1}, 8, v{t3}')
    A(f'v_add_u32 v{t1}, {LWO + 4 * STG}, v{t1}')
    A(f's_lshl_b32 s9, s{sWN}, 2')
    A(f'v_xor_b32 v{t0}, s9, v{t0}')
    for nb in range(4):
        A(f'v_xor_b32 v{t2}, {nb}, v{t0}')
        A(f'v_lshl_add_u32 v{vWA + nb}, v{t2}, 5, v{t1}')
    vo = 10
    A(f'v_lshlrev_b32 v{vo}, 12, v{r16}')
    A(f'v_and_b32 v{t2}, 1, v{g}')
    A(f'v_lshl_add_u32 v{vo}, v{t2}, 5, v{vo}')
    A(f'v_lshrrev_b32 v{t2}, 1, v{g}')
    A(f'v_lshl_add_u32 v{vo}, v{t2}, 4, v{vo}')
    A(f's_lshl_b32 s14, s{sMT}, 19')
    A(f's_lshl_b32 s9, s{sWM}, 18')
    A('s_add_u32 s14, s14, s9')
    A(f's_lshl_b32 s9, s{sMAT}, 11')
    A('s_add_u32 s14, s14, s9')
    A(f's_lshl_b32 s9, s{sNT}, 8')
    A('s_add_u32 s14, s14, s9')
    A(f's_lshl_b32 s9, s{sWN}, 7')
    A('s_add_u32 s14, s14, s9')
    for r in range(ACC, ACC + 64):
        A(f'v_mov_b32 v{r}, 0')
    A(f's_mov_b32 s{sCnt}, 4')
    A(f's_mov_b32 s15, {(-(NS - 1) * STG) & 0xffffffff}')
    A('s_waitcnt vmcnt(0)')
    set_flag(A, sFB)
    stamp(A, 7)
    A('s_barrier')
    A(f's_cmp_lg_u32 s{sGO}, 0')
    A('s_cbranch_scc1 K3_have')
    A(f's_mov_b32 s11, {SPIN}')
    A('K3_poll:')
    A(f'buffer_load_dword v{vFL}, v{vFO}, {sr(sWS, 4)}, s{sFC} offen {WT}')
    A('s_sub_u32 s11, s11, 1')
    A('s_cmp_eq_u32 s11, 0')
    A('s_cbranch_scc1 K3_ready')
    A(f'v_cmp_ne_u32 vcc, 1, v{vFL}')
    A('s_cmp_lg_u64 vcc, 0')
    A('s_cbranch_scc1 K3_poll')
    A('K3_ready:')
    stamp(A, 6)
    for i in range(2):
        for e in pre_dma(i): A(e)
    A('s_waitcnt vmcnt(0)')
    A('K3_have:')
    A('s_barrier')
    stamp(A, 8)
    if gen_k1.STAMPS: A('s_waitcnt lgkmcnt(0)')
    for r in reads(0): A(r)
    A('s_mov_b32 s11, 16')
    L = A.label('K3C')
    A('.p2align 6')
    A(f'{L}:')
    kstep(A)
    A('s_sub_u32 s11, s11, 1')
    A('s_cmp_lg_u32 s11, 0')
    A(f's_cbranch_scc1 {L}')
    stamp(A, 9)
    clean(A)
    A('s_waitcnt lgkmcnt(0)')
    k = 0
    for mb in range(4):
        for pr in range(2):
            tmp = XF + (k % 8) * 4
            k += 1
            for x in range(2):
                A(cvtpk(tmp + x, acc(mb, 2 * pr) + 2 * x))
                A(cvtpk(tmp + 2 + x, acc(mb, 2 * pr + 1) + 2 * x))
            for x in range(2):
                A(f'v_permlane16_swap_b32 v{tmp + x}, v{tmp + 2 + x}')
            A(f'buffer_store_dwordx4 {vr(tmp, 4)}, v{vo}, {sr(sO, 4)}, s14 offen offset:{pr * 64}')
        if mb < 3: A('s_add_u32 s14, s14, 65536')
    stamp(A, 10)
    if gen_k1.STAMPS: A('s_waitcnt vmcnt(0)')
    stamp(A, 11)
    flush2(A)
    A('s_endpgm')


def k23(A):
    A('k2_kernel:')
    A('s_cmp_ge_u32 s2, 256')
    A('s_cbranch_scc0 K2_go')
    A('s_endpgm')
    A('K2_go:')
    stamp(A, 0)
    A('s_load_dwordx2 s[32:33], s[0:1], 88')
    A('s_load_dwordx2 s[24:25], s[0:1], 24')
    A('s_load_dwordx4 s[28:31], s[0:1], 64')
    A('v_lshrrev_b32 v1, 6, v0')
    A(f'v_and_b32 v{vLANE}, 63, v0')
    A('v_readfirstlane_b32 s5, v1')
    A(f'v_lshlrev_b32 v{vL16}, 4, v{vLANE}')
    A(f'v_lshlrev_b32 v{vT0}, 2, v{vLANE}')
    A('s_and_b32 s3, s2, 7')
    A('s_lshl_b32 s7, s3, 2')
    A('s_bfe_u32 s4, s2, 0x20003')
    A('s_add_u32 s7, s7, s4')
    A('s_lshr_b32 s6, s2, 5')
    A('s_lshl_b32 s8, s7, 6')
    A('s_lshl_b32 s9, s6, 3')
    A('s_add_u32 s8, s8, s9')
    A('s_add_u32 s9, s8, s5')
    if F_MAP:
        A('s_lshr_b32 s27, s2, 3')
        A('s_lshl_b32 s12, s27, 3')
        A('s_add_u32 s12, s12, s3')
        A('s_lshl_b32 s12, s12, 3')
        A('s_add_u32 s12, s12, s5')
        A('s_lshl_b32 s12, s12, 11')
        A('s_mov_b32 s26, s3')
    else:
        A('s_lshl_b32 s12, s9, 11')
        A('s_mov_b32 s27, s7')
        A('s_mov_b32 s26, s6')
    A(f's_add_u32 s12, s12, {QB}')
    A('s_add_u32 s13, s12, 1024')
    A(f's_lshl_b32 s{sPH}, s9, 12')
    A(f's_add_u32 s{sPH}, s{sPH}, {PHQ}')
    A('s_lshl_b32 s14, s5, 11')
    A(f's_add_u32 s14, s14, {QL}')
    A(f's_mov_b32 s15, {KN}')
    A(f's_lshl_b32 s{sDL}, s5, 12')
    A(f's_add_u32 s{sDG}, s{sDL}, {KV}')
    A(f's_mov_b32 s{sPERM}, 0x07060302')
    A('s_mov_b32 m0, s14')
    A('s_waitcnt lgkmcnt(0)')
    make_srd(A, sWS, 's32', 's33', WS_SIZE)
    vKN, vVM = vDEN, vDEN + 1
    q2 = vDEN + 2
    A(f'buffer_load_dwordx4 v{vL16}, {sr(sWS, 4)}, s12 offen lds ; dma0')
    A('s_add_u32 m0, s14, 1024')
    A(f'buffer_load_dwordx4 v{vL16}, {sr(sWS, 4)}, s13 offen lds ; dma0')
    for i in range(4):
        for e in dma(0, i): A(e)
    A(f'buffer_load_dword v{vKN}, v{vT0}, {sr(sWS, 4)}, s15 offen')
    A(f'buffer_load_dword v{vVM}, v{vT0}, {sr(sWS, 4)}, s15 offen offset:256')
    for i in range(4):
        for e in dma(1, i): A(e)
    stamp(A, 1)
    A('s_and_b32 s3, s5, 1')
    A('s_lshl_b32 s3, s3, 13')
    A(f'v_add_u32 v{vLo}, s3, v{vL16}')
    A(f'v_add_u32 v{vHi}, 0x10000, v{vLo}')
    for r in list(range(vO, vO + 32)) + list(range(vL, vL + 8)) + list(range(vP + 8, vP + 16)) + list(range(vV + 8, vV + 16)):
        A(f'v_mov_b32 v{r}, 0')
    t0, t1 = vS, vS + 1
    emit_selector(A, vSEL, vLANE, t0, t1)
    A('s_lshl_b32 s3, s5, 12')
    A(f's_add_u32 s3, s3, {STG}')
    A(f'v_add_u32 v{vXW}, s3, v{vL16}')
    A(f'v_xor_b32 v{vXR}, 4096, v{vXW}')
    A('s_lshl_b32 s3, s5, 8')
    A(f's_add_u32 s3, s3, {2 * STG}')
    A(f'v_add_u32 v{vLW}, s3, v{vT0}')
    A(f'v_xor_b32 v{vLR}, 256, v{vLW}')
    A('s_xor_b32 s10, s5, 1')
    A('s_lshr_b32 s3, s5, 1')
    A('s_lshl_b32 s3, s3, 10')
    A('s_and_b32 s4, s5, 1')
    A('s_lshl_b32 s4, s4, 3')
    A('s_add_u32 s3, s3, s4')
    A(f's_add_u32 s3, s3, {KVF}')
    A(f'v_add_u32 v{vKFW}, s3, v{vL16}')
    A('s_lshr_b32 s3, s5, 1')
    A('s_lshl_b32 s3, s3, 5')
    A('s_add_u32 s3, s3, s4')
    A(f's_add_u32 s3, s3, {ZF}')
    A(f'v_and_b32 v{t0}, 2, v{vLANE}')
    A(f'v_lshlrev_b32 v{t0}, 3, v{t0}')
    A(f'v_and_b32 v{t1}, 1, v{vLANE}')
    A(f'v_lshl_add_u32 v{t0}, v{t1}, 2, v{t0}')
    A(f'v_bfe_u32 v{t1}, v{vLANE}, 4, 1')
    A(f'v_lshl_add_u32 v{t0}, v{t1}, 1, v{t0}')
    A(f'v_add_u32 v{vZW}, s3, v{t0}')
    A(f'v_lshrrev_b32 v{t0}, 5, v{vLANE}')
    A(f'v_lshlrev_b32 v{t0}, 4, v{t0}')
    A(f'v_add_u32 v{vZR}, {ZF}, v{t0}')
    A('s_lshl_b32 s3, s6, 3')
    A('s_add_u32 s3, s3, s5')
    A('s_lshl_b32 s3, s3, 16')
    A('s_lshl_b32 s4, s7, 11')
    A('s_add_u32 s3, s3, s4')
    A(f's_add_u32 s{sOA}, s3, {OA}')
    A('s_lshr_b32 s3, s3, 9')
    A(f's_add_u32 s{sFA}, s3, {FLG}')
    A('s_lshl_b32 s3, s26, 3')
    A('s_add_u32 s3, s3, s5')
    A('s_lshl_b32 s3, s3, 16')
    A('s_lshl_b32 s4, s27, 11')
    A('s_add_u32 s3, s3, s4')
    A(f's_add_u32 s{sOB}, s3, {OB}')
    A('s_lshr_b32 s3, s3, 9')
    A(f's_add_u32 s{sFB}, s3, {FLG + 8192}')
    A('s_and_b32 s3, s2, 7')
    if F_MAP:
        A(f's_bfe_u32 s{sMAT}, s2, 0x10003')
        A('s_lshr_b32 s4, s2, 4')
        A('s_lshl_b32 s8, s3, 1')
        A('s_and_b32 s9, s4, 1')
        A('s_add_u32 s8, s8, s9')
        A('s_lshr_b32 s9, s4, 1')
        A('s_lshr_b32 s16, s3, 1')
        A('s_lshl_b32 s16, s16, 2')
        A('s_and_b32 s11, s4, 3')
        A('s_add_u32 s16, s16, s11')
        A('s_and_b32 s11, s3, 1')
        A('s_lshl_b32 s11, s11, 2')
        A('s_lshr_b32 s4, s4, 2')
        A('s_add_u32 s11, s11, s4')
        A(f's_cmp_eq_u32 s{sMAT}, 0')
        A(f's_cselect_b32 s{sMT}, s16, s8')
        A(f's_cselect_b32 s{sNT}, s11, s9')
    else:
        A(f's_bfe_u32 s{sMAT}, s2, 0x10002')
        A('s_and_b32 s8, s2, 3')
        A('s_lshl_b32 s8, s8, 2')
        A('s_bfe_u32 s9, s2, 0x20003')
        A(f's_add_u32 s{sMT}, s8, s9')
        A(f's_lshr_b32 s{sNT}, s2, 5')
    make_srd(A, sO, 's30', 's31', 0x800000)
    make_srd(A, sPA, 's24', 's25', 0x200000)
    make_srd(A, sPB, 's28', 's29', 0x200000)
    A(f's_cmp_eq_u32 s{sMAT}, 0')
    A(f's_cselect_b32 s8, s24, s28')
    A(f's_cselect_b32 s9, s25, s29')
    make_srd(A, sW, 's8', 's9', 0x200000)
    A(f's_lshl_b32 s8, s{sMT}, 18')
    A(f's_lshl_b32 s9, s{sMAT}, 22')
    A('s_add_u32 s8, s8, s9')
    A(f's_add_u32 s8, s8, {OA}')
    A('s_add_u32 s8, s32, s8')
    A('s_addc_u32 s9, s33, 0')
    make_srd(A, sX, 's8', 's9', 0x40000)
    A(f's_lshl_b32 s8, s{sMT}, 2')
    A('s_and_b32 s9, s5, 3')
    A('s_add_u32 s8, s8, s9')
    A('s_lshl_b32 s8, s8, 7')
    A(f's_lshl_b32 s9, s{sMAT}, 13')
    A('s_add_u32 s8, s8, s9')
    A(f's_add_u32 s{sFC}, s8, {FLG}')
    A('s_mov_b32 s35, s5')
    if F_FAST:
        A('s_getreg_b32 s8, hwreg(HW_REG_XCC_ID, 0, 4)')
        A(f's_add_u32 s{sFAST}, s8, 1')
        A('s_and_b32 s8, s2, 7')
        A('s_lshl_b32 s8, s8, 7')
        A(f's_add_u32 s{sXT}, s8, {XT}')
        A('s_lshr_b32 s8, s2, 3')
        A('s_lshl_b32 s8, s8, 2')
        A(f's_add_u32 s8, s8, s{sXT}')
        A(f'v_mov_b32 v{t0}, s{sFAST}')
        A(f'v_mov_b32 v{t1}, 0')
        A('s_cmp_eq_u32 s5, 7')
        A('s_cselect_b64 exec, 1, 0')
        A(f'buffer_store_dword v{t0}, v{t1}, {sr(sWS, 4)}, s8 offen {WT}')
        A('s_mov_b64 exec, -1')
    A('s_lshl_b32 s3, s7, 17')
    A('s_lshl_b32 s4, s5, 10')
    A('s_add_u32 s3, s3, s4')
    A(f's_add_u32 s{sKVP}, s3, {KVP}')
    A(f'v_lshrrev_b32 v{t0}, 2, v{vLANE}')
    A(f'v_lshlrev_b32 v{t0}, 8, v{t0}')
    A(f'v_and_b32 v{t1}, 3, v{vLANE}')
    A(f'v_lshl_add_u32 v{vT1}, v{t1}, 3, v{t0}')
    A('s_lshl_b32 s3, s7, 12')
    A('s_lshl_b32 s4, s5, 5')
    A('s_add_u32 s3, s3, s4')
    A(f's_add_u32 s{sZP}, s3, {ZP}')
    qo, qp = vS + 16, vS + 17
    A(f'v_add_u32 v{qo}, s14, v{vL16}')
    A('s_lshl_b32 s10, s10, 11')
    A(f's_add_u32 s10, s10, {QL}')
    A(f'v_add_u32 v{qp}, s10, v{vL16}')
    stamp(A, 2)
    wait_dma(A, 0)
    A('s_barrier')
    stamp(A, 3)
    if gen_k1.STAMPS: A('s_waitcnt lgkmcnt(0)')
    for t in range(2):
        A(f'ds_read_b128 {vr(vQ + 4 * t, 4)}, v{qp} offset:{t * 1024}')
        A(rdK(0, 0, t))
    for t in range(2):
        A(f'ds_read_b128 {vr(vQ + 8 + 4 * t, 4)}, v{qo} offset:{t * 1024}')
    A(rdV(0, 0, 0)); A(rdV(0, 0, 1))
    A(rdK(1, 1, 0)); A(rdK(1, 1, 1))
    A(f'v_mov_b32 v{q2}, 0')
    A(f'v_mov_b32 v{q2 + 1}, 0')
    dl = [[], []]
    dpp_max_reduce(dl[0].append, vKN)
    dpp_max_reduce(dl[1].append, vVM)
    for a, b in zip(*dl):
        A(a); A(b)
    for m in qk(0, 0): A(m)
    for r in range(8):
        A(f'v_dot2c_f32_bf16 v{q2}, v{vQ + r}, v{vQ + r}')
        A(f'v_dot2c_f32_bf16 v{q2 + 1}, v{vQ + 8 + r}, v{vQ + 8 + r}')
    A(f'v_readlane_b32 s3, v{vKN}, 63')
    A(f'v_readlane_b32 s4, v{vVM}, 63')
    A(f'v_mov_b32 v{q2 + 2}, v{q2}')
    A(f'v_mov_b32 v{q2 + 3}, v{q2 + 1}')
    A(f's_mov_b32 s8, {f32bits(3400.0)}')
    A(f's_mov_b32 s9, {f32bits(2.0 ** 50)}')
    A(f'v_permlane32_swap_b32 v{q2}, v{q2 + 2}')
    A(f'v_permlane32_swap_b32 v{q2 + 1}, v{q2 + 3}')
    A(f'v_add_f32 v{q2}, v{q2}, v{q2 + 2}')
    A(f'v_add_f32 v{q2 + 1}, v{q2 + 1}, v{q2 + 3}')
    A(f'v_mov_b32 v{q2 + 2}, s4')
    A(f'v_mul_f32 v{q2}, s3, v{q2}')
    A(f'v_mul_f32 v{q2 + 1}, s3, v{q2 + 1}')
    A(f's_mov_b32 s10, {f32bits(2.0 ** -30)}')
    A(f'v_cmp_nge_f32 s[20:21], s9, v{q2 + 2}')
    A(f'v_cmp_nle_f32 s[22:23], s10, v{q2 + 2}')
    A(f'v_cmp_nge_f32 s[16:17], s8, v{q2}')
    A(f'v_cmp_nge_f32 s[18:19], s8, v{q2 + 1}')
    A('s_or_b64 s[20:21], s[20:21], s[22:23]')
    A('s_or_b64 s[16:17], s[16:17], s[18:19]')
    A('s_or_b64 s[16:17], s[16:17], s[20:21]')
    A(f's_or_b32 s{sFLAG}, s16, s17')

    X = [[[] for _ in range(6)] for _ in range(64)]
    for st in range(32):
        ph = 2 * st + 1
        if st + 1 < 32:
            X[ph][2].append(rdV((st + 1) & 1, st + 1, 0)); X[ph][3].append(rdV((st + 1) & 1, st + 1, 1))
        if st + 2 < 32:
            X[ph][4].append(rdK(st & 1, st + 2, 0)); X[ph][5].append(rdK(st & 1, st + 2, 1))
    if 'd' not in XP2:
        for i, ph in enumerate((0, 1, 2, 3)):
            X[ph][1] += dma(2, i)
        for c in range(5):
            for i, d in enumerate((5, 6, 8, 10)):
                X[8 * c + d][1] += dma(c + 3, i)
    lds_ = []
    for f in range(4):
        lds_.append([f'buffer_load_dwordx4 {vr(vPHI + 4 * f, 4)}, v{vL16}, {sr(sWS, 4)}, s{sPH} offen offset:{f * 1024}'])
    for p in range(16):
        lds_.append([f'buffer_load_dwordx4 {vr(vKVP + 4 * p, 4)}, v{vL16}, {sr(sWS, 4)}, s{sKVP} offen'] +
                    ([f's_add_u32 s{sKVP}, s{sKVP}, 8192'] if p < 15 else []))
    lds_.append([f'buffer_load_dwordx2 {vr(vZ, 2)}, v{vT1}, {sr(sWS, 4)}, s{sZP} offen'])
    ph = 4
    for i_, g in enumerate(lds_[4:] + lds_[:4]):
        if F_EARLY == 2:
            X[4 + i_ // 2][4 * (i_ & 1)] += g
        else:
            X[ph][4 if ph % 2 == 0 else 0] += g
        ph += 1
    sums = []
    n = 16
    while n > 1:
        n //= 2
        for p in range(n):
            for x in (0, 2):
                sums.append(f'v_pk_add_f32 {vr(vKVP + 4 * p + x, 2)}, {vr(vKVP + 4 * p + x, 2)}, {vr(vKVP + 4 * (p + n) + x, 2)}')
    zred = [[f'v_permlane16_swap_b32 v{vZ}, v{vZ + 1}'],
            [f'v_add_f32 v{vZ}, v{vZ}, v{vZ + 1}'],
            [f'v_add_f32_dpp v{vZ}, v{vZ}, v{vZ} row_shr:4 row_mask:0xf bank_mask:0xf'],
            [f'v_add_f32_dpp v{vZ}, v{vZ}, v{vZ} row_shr:8 row_mask:0xf bank_mask:0xf'],
            [f'v_mov_b32 v{vZ + 1}, v{vZ}'],
            [f'v_permlane32_swap_b32 v{vZ}, v{vZ + 1}'],
            [f'v_add_f32 v{vZ}, v{vZ}, v{vZ + 1}'],
            [cvtpk(vZ, vZ, vZ)],
            ['s_mov_b32 exec_lo, 0xf000f000', 's_mov_b32 exec_hi, 0', f'ds_write_b16 v{vZW}, v{vZ}', 's_mov_b64 exec, -1']]
    k = 0
    P0 = {2: 18, 1: 26}[F_EARLY]
    E = 8 * F_EARLY
    for ph in range(P0, P0 + 6):
        for sl in range(5):
            X[ph][sl].append(sums[k]); k += 1
    assert k == 30
    X[P0 + 6][0] += [cvtpk(vKVP + 4, vKVP), cvtpk(vKVP + 5, vKVP + 2)]
    X[P0 + 6][2] += [f'ds_write_b64 v{vKFW}, {vr(vKVP + 4, 2)}']
    for k, g in enumerate(zred):
        X[P0 + 6 + k // 3][1 + 2 * (k % 3)] += g
    KF = vKVP + 8
    ZFr = vKVP + 24
    NUM = vKVP + 40
    PA = vKVP + 56
    X[44 - E][5].append(f'v_add_u32 v{vT0}, {KVF}, v{vL16}')
    for f in range(4):
        X[45 - E + (f >> 1)][f & 1].append(f'ds_read_b128 {vr(KF + 4 * f, 4)}, v{vT0} offset:{f * 1024}')
        X[46 - E][2 + f].append(f'ds_read_b128 {vr(ZFr + 4 * f, 4)}, v{vZR} offset:{f * 32}')
    for f in range(4):
        X[47 - E + 2 * f][3].append(mfma32(NUM, KF + 4 * f, vPHI + 4 * f, '0' if f == 0 else None))
        X[48 - E + 2 * f][3].append(mfma32(vDEN, ZFr + 4 * f, vPHI + 4 * f, '0' if f == 0 else None))
    X[56 - E][0].append(f'v_add_f32 v{vDEN}, {f32bits(1e-6)}, v{vDEN}')
    X[56 - E][1].append(f'v_rcp_f32 v{vDEN}, v{vDEN}')
    for k, r in enumerate(range(0, 16, 2)):
        X[56 - E + k // 4][2 + k % 4].append(f'v_pk_mul_f32 {vr(NUM + r, 2)}, {vr(NUM + r, 2)}, {vr(vDEN, 2)} op_sel_hi:[1,0]')
        X[58 - E + k // 4][k % 4].append(cvtpk(PA + r // 2, NUM + r))
    for x in range(2):
        X[58 - E + x][5].append(f'buffer_store_dwordx4 {vr(PA + 4 * x, 4)}, v{vL16}, {sr(sWS, 4)}, s{sOA} offen offset:{1024 * x}')
    PF0 = P0 + 10
    X[PF0][0] += [f'v_and_b32 v{vFO}, 31, v{vLANE}', f'v_lshlrev_b32 v{vFO}, 2, v{vFO}']
    X[PF0][2] += [f'v_mov_b32 v{vFO + 2}, 1', f'v_mov_b32 v{vFO + 3}, 0', f'v_mov_b32 v{vFL}, 0']
    if F_PF and F_MAP:
        pa, pd = vFO + 4, vFO + 5
        X[PF0 + 2][0] += [f'v_lshlrev_b32 v{pa}, 6, v{vLANE}', 's_lshr_b32 s3, s2, 3', 's_lshl_b32 s3, s3, 3', 's_add_u32 s3, s3, s5',
                          's_lshl_b32 s4, s3, 13', 's_add_u32 s8, s4, 4096']
        X[PF0 + 2][2] += [f'buffer_load_dword v{pd}, v{pa}, {sr(sPB, 4)}, s4 offen']
        X[PF0 + 4][2] += [f'buffer_load_dword v{pd}, v{pa}, {sr(sPB, 4)}, s8 offen']
        X[PF0 + 6][0] += [f'v_lshrrev_b32 v{pa + 2}, 4, v{vLANE}', f'v_and_b32 v{pa + 3}, 15, v{vLANE}',
                          f'v_lshlrev_b32 v{pa + 2}, 11, v{pa + 2}', 's_and_b32 s9, s2, 1', 's_lshl_b32 s9, s9, 10', 's_add_u32 s4, s4, s9']
        X[PF0 + 6][2] += [f'v_lshl_add_u32 v{pa + 2}, v{pa + 3}, 6, v{pa + 2}']
        X[PF0 + 6][4] += [f'buffer_load_dword v{pd}, v{pa + 2}, {sr(sPA, 4)}, s4 offen']
    X[44 - E][4] += ['s_waitcnt lgkmcnt(4)']
    FA = {2: 47, 1: 54}[F_EARLY]
    X[FA][0] += ['s_waitcnt vmcnt(0)', 's_mov_b64 exec, 1',
                 f'buffer_store_dword v{vFO + 2}, v{vFO + 3}, {sr(sWS, 4)}, s{sFA} offen {WT}', 's_mov_b64 exec, -1']
    t0, t1, t2 = vPRE + 1, vPRE + 2, vPRE + 3
    pre = [['s_and_b32 s3, s5, 3', f'v_lshrrev_b32 v{t1}, 4, v{vLANE}', 's_and_b32 s9, s5, 1', 's_lshl_b32 s9, s9, 2'],
           [f'v_bfe_u32 v{t0}, v{vLANE}, 1, 3', f'v_xor_b32 v{t0}, v{t0}, v{t1}'],
           [f'v_xor_b32 v{t0}, s9, v{t0}', 's_lshl_b32 s9, s3, 4', f'v_add_u32 v{t1}, s9, v{t1}'],
           [f'v_lshlrev_b32 v{vW3}, 11, v{t1}', f'v_lshl_add_u32 v{vW3}, v{t0}, 5, v{vW3}'],
           [f'v_and_b32 v{t2}, 1, v{vLANE}', f'v_lshl_add_u32 v{vW3}, v{t2}, 4, v{vW3}', 's_lshl_b32 s9, s3, 16'],
           [f'v_add_u32 v{vX3}, s9, v{vL16}', 's_and_b32 s4, s2, 7', f's_mul_i32 s{sK0}, s4, {ROT}', f's_and_b32 s4, s{sMT}, 3',
            f's_mul_i32 s4, s4, {RR}', f's_add_u32 s{sK0}, s{sK0}, s4', f's_mul_i32 s4, s{sNT}, {RC}', f's_add_u32 s{sK0}, s{sK0}, s4'],
           [f's_and_b32 s4, s{sK0}, 15', f's_add_u32 s8, s{sK0}, 1', 's_and_b32 s8, s8, 15', 's_lshl_b32 s31, s3, 12',
            f's_add_u32 s9, s31, {LWO}', f's_lshl_b32 s3, s{sNT}, 8', 's_cmp_ge_u32 s5, 4',
            's_cselect_b64 vcc, -1, 0', 's_cselect_b32 s31, s9, s31', 's_cselect_b32 s9, 17, 12', 's_cselect_b32 s3, s3, 0',
            's_cselect_b32 s28, 13, 10', f's_cselect_b32 s{sGO}, 1, 0', 's_lshl_b32 s28, 1, s28'],
           [f'v_cndmask_b32 v{vPRE}, v{vX3}, v{vW3}, vcc', 's_cmp_ge_u32 s5, 4',
            f's_cselect_b32 s24, s{sW}, s{sX}', f's_cselect_b32 s25, s{sW + 1}, s{sX + 1}', f's_cselect_b32 s26, s{sW + 2}, s{sX + 2}',
            's_mov_b32 s27, 0x00020000', 's_lshl_b32 s29, s4, s9', 's_lshl_b32 s30, s8, s9', 's_add_u32 s29, s29, s3', 's_add_u32 s30, s30, s3']]
    for k, g in enumerate(pre):
        X[52 + k // 4][(0, 1, 3, 5)[k % 4]] += g
    if F_FAST:
        X[49][0] += [f'buffer_load_dword v{vFL}, v{vFO}, {sr(sWS, 4)}, s{sXT} offen {WT}']
        X[51][0] += [f'v_cmp_ne_u32 vcc, s{sFAST}, v{vFL}', 's_cmp_eq_u64 vcc, 0', f's_cselect_b32 s{sFAST}, 1, 0']
    X[55][0] += [f'buffer_load_dword v{vFL}, v{vFO}, {sr(sWS, 4)}, s{sFC} offen {WT}']
    X[57][0] += [f'v_cmp_ne_u32 vcc, 1, v{vFL}', 's_cmp_eq_u64 vcc, 0', f's_cselect_b32 s{sGO}, 1, s{sGO}']
    for i in range(2):
        X[58 + 2 * i][1] += [f's_cmp_eq_u32 s{sGO}, 0', f's_cbranch_scc1 K2_np{i}'] + pre_dma(i) + [f'K2_np{i}:']

    prio = {}
    for c in range(7):
        for d, p in ((5, 3), (7, 2), (9, 1), (11, 0)):
            prio[8 * c + d] = p
    for ph, p in ((53, 3), (56, 2), (59, 1), (62, 0)): prio[ph] = p
    for ph in (55, 57): prio.pop(ph, None)
    prio[0] = 2; prio[1] = 1; prio[3] = 0
    for st in range(32):
        c, j = st >> 2, st & 3
        for p in range(2):
            ph = 2 * st + p
            if p == 1 and j == 2 and c < 7:
                wait_dma(A, c + 1)
                if 'b' not in XP2: A('s_barrier')
            if PRIO and ph in prio: A(f's_setprio {prio[ph]}')
            if p == 0:
                phase(A, 0, st & 1, (st - 1) & 1, X[ph])
            else:
                phase(A, 1, (st + 1) & 1, st & 1, X[ph], noqk=(st == 31))
    o, l = pv(1, 1)
    for m in (o[0], l[0], o[1], l[1]): A(m)
    stamp(A, 4)
    A(f's_cmp_lg_u32 s{sFLAG}, 0')
    A('s_cbranch_scc1 K2_fallback')
    A('K2_tail:')
    for qd in range(4):
        A(f'ds_write_b128 v{vXW}, {vr(vO + 4 * qd, 4)} offset:{XCH + qd * 1024}')
    A(f'ds_write_b32 v{vLW}, v{vL} offset:0')
    A('s_waitcnt lgkmcnt(0)')
    A('s_barrier')
    Xr = vS
    XL = vV
    OBr = vO + 16
    LB = vL + 4
    A(f'ds_read_b32 v{XL}, v{vLR} offset:0')
    for qd in range(4):
        A(f'ds_read_b128 {vr(Xr + 4 * qd, 4)}, v{vXR} offset:{XCH + qd * 1024}')
    A(f'v_add_f32 v{LB}, v{LB}, v{XL}')
    A(f'v_rcp_f32 v{LB}, v{LB}')
    for x in range(2):
        for r in range(8 * x, 8 * x + 8, 2):
            A(f'v_pk_add_f32 {vr(OBr + r, 2)}, {vr(OBr + r, 2)}, {vr(Xr + r, 2)}')
        for r in range(8 * x, 8 * x + 8, 2):
            A(f'v_pk_mul_f32 {vr(OBr + r, 2)}, {vr(OBr + r, 2)}, {vr(LB, 2)} op_sel_hi:[1,0]')
        for r in range(8 * x, 8 * x + 8, 2):
            A(cvtpk(vOB + r // 2, OBr + r))
        if not F_FAST:
            A(f'buffer_store_dwordx4 {vr(vOB + 4 * x, 4)}, v{vL16}, {sr(sWS, 4)}, s{sOB} offen offset:{1024 * x}')
    if F_FAST:
        A(f's_cmp_eq_u32 s{sFAST}, 0')
        A('s_cbranch_scc1 K2_slow')
        for x in range(2):
            A(f'buffer_store_dwordx4 {vr(vOB + 4 * x, 4)}, v{vL16}, {sr(sWS, 4)}, s{sOB} offen offset:{1024 * x} ; plain')
        A('K2_stored:')
    stamp(A, 5)
    stamp(A, 6)
    A('s_cmp_ge_u32 s5, 4')
    A('s_cbranch_scc1 K3_loader')
    f_compute(A)
    A('K3_loader:')
    A.h = hsave(A)
    f_loader(A)

    if F_FAST:
        A('K2_slow:')
        for x in range(2):
            A(f'buffer_store_dwordx4 {vr(vOB + 4 * x, 4)}, v{vL16}, {sr(sWS, 4)}, s{sOB} offen offset:{1024 * x}')
        A('s_branch K2_stored')
    A('K2_fallback:')
    A('s_waitcnt vmcnt(0) lgkmcnt(0)')
    A('s_nop 15')
    A(f'v_mov_b32 v{vM}, 0xff800000')
    A(f'v_mov_b32 v{vM + 1}, 0xff800000')
    A('s_mov_b32 s11, 0')
    L1 = A.label('K2F')
    A(f'{L1}:')
    A('s_lshr_b32 s3, s11, 3')
    A('s_lshl_b32 s3, s3, 15')
    A('s_and_b32 s4, s11, 7')
    A('s_lshl_b32 s4, s4, 11')
    A('s_add_u32 s3, s3, s4')
    A(f's_add_u32 s3, s3, {KV}')
    for t in range(2):
        A(f'buffer_load_dwordx4 {vr(vK + 4 * t, 4)}, v{vL16}, {sr(sWS, 4)}, s3 offen offset:{t * 1024}')
    for x in range(2):
        for m in qk(x, 0): A(m)
    for x in range(2):
        for r in range(0, 16, 2):
            A(f'v_max3_f32 v{vM + x}, v{vM + x}, v{vS + 16 * x + r}, v{vS + 16 * x + r + 1}')
    A('s_add_u32 s11, s11, 1')
    A('s_cmp_lg_u32 s11, 64')
    A(f's_cbranch_scc1 {L1}')
    for x in range(2):
        A(f'v_mov_b32 v{vT0}, v{vM + x}')
        A(f'v_permlane32_swap_b32 v{vM + x}, v{vT0}')
        A(f'v_max_f32 v{vM + x}, v{vM + x}, v{vT0}')
        A(f'v_add_f32 v{vM + x}, {f32bits(11.0)}, v{vM + x}')
    for r in list(range(vO, vO + 32)) + list(range(vL, vL + 8)):
        A(f'v_mov_b32 v{r}, 0')
    A('s_mov_b32 s11, 0')
    A('s_and_b32 s12, s5, 1')
    A('s_lshl_b32 s12, s12, 13')
    A(f's_add_u32 s12, s12, {KV}')
    L2 = A.label('K2G')
    A(f'{L2}:')
    A('s_lshr_b32 s3, s11, 2')
    A('s_lshl_b32 s3, s3, 15')
    A('s_and_b32 s4, s11, 3')
    A('s_lshl_b32 s4, s4, 11')
    A('s_add_u32 s3, s3, s4')
    A('s_add_u32 s3, s3, s12')
    A('s_add_u32 s4, s3, 16384')
    for t in range(2):
        A(f'buffer_load_dwordx4 {vr(vK + 4 * t, 4)}, v{vL16}, {sr(sWS, 4)}, s3 offen offset:{t * 1024}')
    for t in range(2):
        A(f'buffer_load_dwordx4 {vr(vV + 4 * t, 4)}, v{vL16}, {sr(sWS, 4)}, s4 offen offset:{t * 1024}')
    for x in range(2):
        for m in qk(x, 0): A(m)
    for x in range(2):
        for r in range(16):
            A(f'v_sub_f32 v{vS + 16 * x + r}, v{vS + 16 * x + r}, v{vM + x}')
        for v in softmax_valu(x): A(v)
    for x in range(2):
        o, l = pv(x, 0)
        for m in o + l: A(m)
    A('s_add_u32 s11, s11, 1')
    A('s_cmp_lg_u32 s11, 32')
    A(f's_cbranch_scc1 {L2}')
    A('s_nop 15')
    A('s_branch K2_tail')
```

```python
import sys, os, re
STDEF={'0':'','1':'sc0 sc1','2':'sc0 sc1','3':'sc0 sc1'}
from asmlib import Asm
import gen_k1
NAME='concat_heads__linear_kernel_hedgehog__grouped_kv_mqa__prompt'
REF=open(f'cdna_kernels/{NAME}.s.ref').read().split('\n')
def desc(name, vgpr, sgpr=96):
    acc=(vgpr+3)//4*4
    return f""".section .rodata,"a"
.p2align 6
.amdhsa_kernel {name}
  .amdhsa_next_free_vgpr {vgpr}
  .amdhsa_next_free_sgpr {sgpr}
  .amdhsa_accum_offset {acc}
  .amdhsa_group_segment_fixed_size 0
  .amdhsa_kernarg_size 96
  .amdhsa_user_sgpr_count 2
  .amdhsa_user_sgpr_kernarg_segment_ptr 1
  .amdhsa_system_sgpr_workgroup_id_x 1
.end_amdhsa_kernel
"""
def build(stages, out):
    ks=[]
    gen_k1.ZFLG = 4 in stages
    if 0 in stages:
        import gen_k0
        ks.append(('k0_kernel', gen_k0.k0, 256, 64, 0, 16))
    if 1 in stages: ks.append(('k1_kernel', gen_k1.k1, 256, 512, gen_k1.K1_LDS, 256))
    if 2 in stages:
        import gen_k2
        ks.append(('k2_kernel', gen_k2.k2, 256, 512, gen_k2.K2_LDS, gen_k2.K2_VGPR))
    if 4 in stages:
        import gen_k23
        ks.append(('k2_kernel', gen_k23.k23, 256, 512, gen_k23.K23_LDS, 256))
    if 3 in stages:
        import gen_k3
        ks.append(('k3_kernel', gen_k3.k3, 256, gen_k3.K3_THREADS, gen_k3.K3_LDS, gen_k3.K3_VGPR))
    head=[l for l in REF if l.startswith(';') and '@launch' not in l and not l.startswith('; Override') and not l.startswith('; grid=')]
    head=head[:13]
    txt='\n'.join(head)+'\n'
    for n,f,g,b,l,v in ks:
        txt+=f'; @launch kernel={n} grid=({g},1,1) block=({b},1,1) lds={l}\n'
    txt+='.amdgcn_target "amdgcn-amd-amdhsa--gfx950"\n'
    nprob=0
    for n,f,g,b,l,v in ks:
        A=Asm()
        f(A)
        nprob+=len(A.verify())
        body=A.text()
        mod=os.environ.get('ST'+n[1], STDEF[n[1]])
        if mod: body=re.sub(r'(?m)^(  buffer_store_dwordx4 [^;\n]*?)\s*$', lambda m: m.group(1)+' '+mod, body)
        txt+=f'.text\n.globl {n}\n.p2align 8\n.type {n},@function\n'+body
        txt+=desc(n,v)
    open(out,'w').write(txt)
    return nprob
if __name__=='__main__':
    import os
    gen_k1.STAMPS=int(os.environ.get('STAMPS','0'))
    st=[int(c) for c in (sys.argv[1] if len(sys.argv)>1 else '123')]
    out=sys.argv[2] if len(sys.argv)>2 else f'cdna_kernels/{NAME}.s'
    sys.exit(1 if build(st,out) else 0)
```

```python
import os
import gen_k1, gen_k2, gen_k3
from gen_k2 import *
from gen_k2 import vr, sr, mfma32, mfma16, cvtpk, make_srd, emit_selector, dpp_max_reduce, stamp, f32bits
from gen_k1 import MB, STAMP_BASE
from gen_k3 import NS, STG, LWO, XF, WF, ACC, vXA, vWA, acc, reads, kstep, sX, sW, sO, sL, sGX, sGW, sD, sCnt, sWM, sWN
FLG = 14 * MB
K23_LDS = NS * STG
F_MAP = int(os.environ.get('F_MAP', '1'))
F_EARLY = int(os.environ.get('F_EARLY', '2'))
F_PF = int(os.environ.get('F_PF', '1'))
ROT = int(os.environ.get('ROT3', '6'))
RR = int(os.environ.get('RR3', '8'))
RC = int(os.environ.get('RC3', '2'))
SPIN = 20000
F_FAST = int(os.environ.get('F_FAST', '2'))
XT = FLG + 16384
vOB = 176
sFAST, sXT = 69, 68
F_AF = int(os.environ.get('F_AF', '1'))
sMT, sNT, sMAT, sFA, sFB, sFC = 61, 62, 63, 64, 65, 34
sPA, sPB = 24, 28
vFO, vFL = 164, 165
WT = 'sc0 sc1'
LW0, LX0 = 0, 16384
vW3, vX3, vPRE = 172, 173, 174
sGO2 = 21
sK0, sGO = 94, 95


def pre_dma(i):
    r = [f's_add_u32 s29, s{sK0}, {i}', 's_and_b32 s29, s29, 15', 's_lshl_b32 s29, s29, s30', 's_add_u32 s29, s29, s20']
    for j in range(4):
        r += [f's_add_u32 m0, s31, {(4, 0, 1, 2)[i] * STG + j * 1024}', 's_nop 0',
              f'buffer_load_dwordx4 v{vPRE}, s[24:27], s29 offen lds']
        if j < 3: r += ['s_add_u32 s29, s29, s28']
    return r


def flush2(A):
    if not gen_k1.STAMPS: return
    A('s_waitcnt lgkmcnt(0)')
    A('s_lshl_b32 s3, s2, 3')
    A('s_add_u32 s3, s3, s35')
    A('s_lshl_b32 s3, s3, 6')
    A(f's_add_u32 s3, s3, {STAMP_BASE + MB}')
    A(f's_add_u32 s4, s3, {MB}')
    A('v_mov_b32 v1, 0')
    A('s_mov_b64 exec, 1')
    for i in range(12):
        A(f'v_mov_b32 v3, s{70 + 2 * i}')
        A(f'buffer_store_dword v3, v1, {sr(sWS, 4)}, s{3 + i // 6} offen offset:{4 * (i % 6)}')
    A('s_mov_b64 exec, -1')


def set_flag(A, s):
    if F_FAST:
        A(f's_mov_b32 exec_lo, s{sFAST}')
        A('s_mov_b32 exec_hi, 0')
        A(f'buffer_store_dword v{vFO + 2}, v{vFO + 3}, {sr(sWS, 4)}, s{s} offen')
        A(f's_xor_b32 exec_lo, s{sFAST}, 1')
    else:
        A('s_mov_b64 exec, 1')
    A(f'buffer_store_dword v{vFO + 2}, v{vFO + 3}, {sr(sWS, 4)}, s{s} offen {WT}')
    A('s_mov_b64 exec, -1')


def clean(A):
    if not F_FAST or F_FAST == 2: return
    for x in range(2):
        A(f'buffer_store_dwordx4 {vr(vOB + 4 * x, 4)}, v{vL16}, {sr(sWS, 4)}, s{sOB} offen offset:{1024 * x}')
    A('s_mov_b64 exec, 1')
    A(f'buffer_store_dword v{vFO + 2}, v{vFO + 3}, {sr(sWS, 4)}, s{sFB} offen {WT}')
    A('s_mov_b64 exec, -1')


def hsave(A):
    from asmlib import HState
    h = HState()
    h.vm = [({vFL}, 'flagread'), (set(), 'st'), (set(), 'st')]
    return h


def f_loader(A):
    n = 8
    vX0, vW = vX3, vW3
    sK, sN = sCnt, 58
    sT = gen_k3.sT
    A('s_sub_u32 s5, s5, 4')
    A(f's_lshl_b32 s{sL}, s5, 12')
    A(f's_lshl_b32 s{sN}, s{sNT}, 8')
    for i in range(3):
        A(f's_add_u32 s{16 + i}, s{sK0}, {2 + i}')
        A(f's_and_b32 s{16 + i}, s{16 + i}, 15')
    A(f's_add_u32 s{sK}, s{sK0}, 5')
    A('s_waitcnt vmcnt(0)')
    set_flag(A, sFB)
    stamp(A, 7)
    def issue():
        A(f's_and_b32 s{sK}, s{sK}, 15')
        A(f's_lshl_b32 s{sGX}, s{sK}, 12')
        A(f's_lshl_b32 s{sGW}, s{sK}, 17')
        A(f's_add_u32 s{sGW}, s{sGW}, s{sN}')
        for j in range(4):
            A(f's_add_u32 m0, s{sL}, {LW0 + j * 1024}')
            A(f's_add_u32 s{sT}, s{sGW}, {j * 8192}')
            A(f'buffer_load_dwordx4 v{vW}, {sr(sW, 4)}, s{sT} offen lds')
            A(f's_add_u32 m0, s{sL}, {LX0 + j * 1024}')
            A(f's_add_u32 s{sT}, s{sGX}, {j * 1024}')
            A(f'buffer_load_dwordx4 v{vX0}, {sr(sX, 4)}, s{sT} offen lds')
        A(f's_add_u32 s{sK}, s{sK}, 1')
        A(f's_add_u32 s{sL}, s{sL}, {STG}')
        A(f's_cmp_ge_u32 s{sL}, {NS * STG}')
        A(f's_cselect_b32 s{sT}, {NS * STG}, 0')
        A(f's_sub_u32 s{sL}, s{sL}, s{sT}')

    A('s_barrier')
    if F_AF:
        A(f's_cmp_eq_u32 s{sMAT}, 0' if F_AF == 1 else 's_cmp_eq_u32 0, 0')
        A('s_cbranch_scc1 K3_ldA')
    for i in range(2, 3):
        A(f's_lshl_b32 s{sGW}, s{16 + i}, 17')
        A(f's_add_u32 s{sGW}, s{sGW}, s{sN}')
        for j in range(4):
            A(f's_add_u32 m0, s{sL}, {(1 + i) * STG + LW0 + j * 1024}')
            A(f's_add_u32 s{sT}, s{sGW}, {j * 8192}')
            A(f'buffer_load_dwordx4 v{vW}, {sr(sW, 4)}, s{sT} offen lds')
    stamp(A, 8)
    A('s_barrier')
    stamp(A, 9)
    for i in range(3):
        A(f's_lshl_b32 s{sGX}, s{16 + i}, 12')
        for j in range(4):
            A(f's_add_u32 m0, s{sL}, {(1 + i) * STG + LX0 + j * 1024}')
            A(f's_add_u32 s{sT}, s{sGX}, {j * 1024}')
            A(f'buffer_load_dwordx4 v{vX0}, {sr(sX, 4)}, s{sT} offen lds')
    A(f's_add_u32 s{sL}, s{sL}, {4 * STG}')

    A('s_barrier')
    issue()
    A('s_waitcnt vmcnt(16)')
    A('s_barrier')
    issue()
    A('s_waitcnt vmcnt(20)')
    A('s_barrier')
    issue()
    A('K3_ldJ:')
    A('s_mov_b32 s11, 8')
    L = A.label('K3LD')
    A(f'{L}:')
    A('s_waitcnt vmcnt(24)')
    A('s_barrier')
    issue()
    A('s_sub_u32 s11, s11, 1')
    A('s_cmp_lg_u32 s11, 0')
    A(f's_cbranch_scc1 {L}')
    for i in range(3, -1, -1):
        A(f's_waitcnt vmcnt({i * n})')
        A('s_barrier')
    clean(A)
    stamp(A, 10)
    A('s_barrier')
    stamp(A, 11)
    flush2(A)
    A('s_endpgm')
    if F_AF:
        A('K3_ldA:')
        stamp(A, 8)
        A('s_barrier')
        stamp(A, 9)
        A(f's_sub_u32 s{sK}, s{sK}, 3')
        A(f's_add_u32 s{sL}, s{sL}, {STG}')
        if int(os.environ.get('F_AD', '0')): A(f"s_sleep {os.environ['F_AD']}")
        issue(); issue()
        A('s_barrier')
        issue(); issue()
        A('s_waitcnt vmcnt(24)')
        A('s_barrier')
        issue()
        A('s_waitcnt vmcnt(24)')
        A('s_barrier')
        issue()
        A('s_branch K3_ldJ')


def f_compute(A):
    t0, t1, t2, t3, r16, g = XF, XF + 1, XF + 2, XF + 3, XF + 4, XF + 5
    A(f's_bfe_u32 s{sWM}, s5, 0x10001')
    A(f's_and_b32 s{sWN}, s5, 1')
    A(f'v_and_b32 v{r16}, 15, v{vLANE}')
    A(f'v_lshrrev_b32 v{g}, 4, v{vLANE}')
    A(f's_lshl_b32 s9, s{sWM}, 13')
    A(f's_add_u32 s9, s9, {4 * STG + LX0}')
    A(f'v_lshlrev_b32 v{t0}, 4, v{r16}')
    A(f'v_add_u32 v{t0}, s9, v{t0}')
    A(f'v_and_b32 v{t1}, 1, v{g}')
    A(f'v_lshl_add_u32 v{t0}, v{t1}, 10, v{t0}')
    A(f'v_lshrrev_b32 v{t1}, 1, v{g}')
    A(f'v_lshl_add_u32 v{vXA}, v{t1}, 9, v{t0}')
    A(f'v_add_u32 v{vXA + 1}, 2048, v{vXA}')
    A(f'v_bfe_u32 v{t0}, v{vLANE}, 2, 2')
    A(f'v_and_b32 v{t2}, 1, v{g}')
    A(f'v_lshl_add_u32 v{t1}, v{t2}, 4, v{t0}')
    A(f'v_lshrrev_b32 v{t3}, 1, v{g}')
    A(f'v_lshl_add_u32 v{t1}, v{t3}, 2, v{t1}')
    A(f'v_lshl_add_u32 v{t0}, v{t2}, 2, v{t0}')
    A(f'v_and_b32 v{t3}, 3, v{vLANE}')
    A(f'v_lshlrev_b32 v{t3}, 3, v{t3}')
    A(f'v_lshl_add_u32 v{t1}, v{t1}, 8, v{t3}')
    A(f'v_add_u32 v{t1}, {LW0 + 4 * STG}, v{t1}')
    A(f's_lshl_b32 s9, s{sWN}, 2')
    A(f'v_xor_b32 v{t0}, s9, v{t0}')
    for nb in range(4):
        A(f'v_xor_b32 v{t2}, {nb}, v{t0}')
        A(f'v_lshl_add_u32 v{vWA + nb}, v{t2}, 5, v{t1}')
    vo = 10
    A(f'v_lshlrev_b32 v{vo}, 12, v{r16}')
    A(f'v_and_b32 v{t2}, 1, v{g}')
    A(f'v_lshl_add_u32 v{vo}, v{t2}, 5, v{vo}')
    A(f'v_lshrrev_b32 v{t2}, 1, v{g}')
    A(f'v_lshl_add_u32 v{vo}, v{t2}, 4, v{vo}')
    A(f's_lshl_b32 s14, s{sMT}, 19')
    A(f's_lshl_b32 s9, s{sWM}, 18')
    A('s_add_u32 s14, s14, s9')
    A(f's_lshl_b32 s9, s{sMAT}, 11')
    A('s_add_u32 s14, s14, s9')
    A(f's_lshl_b32 s9, s{sNT}, 8')
    A('s_add_u32 s14, s14, s9')
    A(f's_lshl_b32 s9, s{sWN}, 7')
    A('s_add_u32 s14, s14, s9')
    for r in range(ACC, ACC + 64):
        A(f'v_mov_b32 v{r}, 0')
    A(f's_mov_b32 s{sCnt}, 4')
    A(f's_mov_b32 s15, {(-(NS - 1) * STG) & 0xffffffff}')
    A('s_waitcnt vmcnt(0)')
    set_flag(A, sFB)
    stamp(A, 7)
    A('s_barrier')
    A(f's_cmp_lg_u32 s{sGO}, 0')
    A('s_cbranch_scc1 K3_have')
    A(f's_mov_b32 s11, {SPIN}')
    A('K3_poll:')
    A(f"buffer_load_dword v{vFL}, v{vFO}, {sr(sWS, 4)}, s{sFC} offen {os.environ.get('F_PS', WT)}")
    A('s_sub_u32 s11, s11, 1')
    A('s_cmp_eq_u32 s11, 0')
    A('s_cbranch_scc1 K3_ready')
    A(f'v_cmp_ne_u32 vcc, 1, v{vFL}')
    A('s_cmp_lg_u64 vcc, 0')
    A('s_cbranch_scc1 K3_poll')
    A('K3_ready:')
    stamp(A, 6)
    for i in range(2):
        for e in pre_dma(i): A(e)
    if os.environ.get('F_ST') == '1': stamp(A, 4)
    A('s_waitcnt vmcnt(0)')
    if os.environ.get('F_ST') == '1': stamp(A, 5)
    A('K3_have:')
    A('s_barrier')
    stamp(A, 8)
    if gen_k1.STAMPS: A('s_waitcnt lgkmcnt(0)')
    for r in reads(0): A(r)
    A('s_mov_b32 s11, 16')
    L = A.label('K3C')
    A('.p2align 6')
    A(f'{L}:')
    kstep(A)
    A('s_sub_u32 s11, s11, 1')
    A('s_cmp_lg_u32 s11, 0')
    A(f's_cbranch_scc1 {L}')
    stamp(A, 9)
    clean(A)
    A('s_waitcnt lgkmcnt(0)')
    k = 0
    for mb in range(4):
        for pr in range(2):
            tmp = XF + (k % 8) * 4
            k += 1
            for x in range(2):
                A(cvtpk(tmp + x, acc(mb, 2 * pr) + 2 * x))
                A(cvtpk(tmp + 2 + x, acc(mb, 2 * pr + 1) + 2 * x))
            for x in range(2):
                A(f'v_permlane16_swap_b32 v{tmp + x}, v{tmp + 2 + x}')
            A(f'buffer_store_dwordx4 {vr(tmp, 4)}, v{vo}, {sr(sO, 4)}, s14 offen offset:{pr * 64}')
        if mb < 3: A('s_add_u32 s14, s14, 65536')
    stamp(A, 10)
    if gen_k1.STAMPS: A('s_waitcnt vmcnt(0)')
    stamp(A, 11)
    flush2(A)
    A('s_endpgm')


def k23(A):
    A('k2_kernel:')
    A('s_cmp_ge_u32 s2, 256')
    A('s_cbranch_scc0 K2_go')
    A('s_endpgm')
    A('K2_go:')
    stamp(A, 0)
    A('s_load_dwordx2 s[32:33], s[0:1], 88')
    A('s_load_dwordx2 s[24:25], s[0:1], 24')
    A('s_load_dwordx4 s[28:31], s[0:1], 64')
    A('v_lshrrev_b32 v1, 6, v0')
    A(f'v_and_b32 v{vLANE}, 63, v0')
    A('v_readfirstlane_b32 s5, v1')
    A(f'v_lshlrev_b32 v{vL16}, 4, v{vLANE}')
    A(f'v_lshlrev_b32 v{vT0}, 2, v{vLANE}')
    A('s_and_b32 s3, s2, 7')
    A('s_lshl_b32 s7, s3, 2')
    A('s_bfe_u32 s4, s2, 0x20003')
    A('s_add_u32 s7, s7, s4')
    A('s_lshr_b32 s6, s2, 5')
    A('s_lshl_b32 s8, s7, 6')
    A('s_lshl_b32 s9, s6, 3')
    A('s_add_u32 s8, s8, s9')
    A('s_add_u32 s9, s8, s5')
    if F_MAP:
        A('s_lshr_b32 s27, s2, 3')
        A('s_lshl_b32 s12, s27, 3')
        A('s_add_u32 s12, s12, s3')
        A('s_lshl_b32 s12, s12, 3')
        A('s_add_u32 s12, s12, s5')
        A('s_lshl_b32 s12, s12, 11')
        A('s_mov_b32 s26, s3')
    else:
        A('s_lshl_b32 s12, s9, 11')
        A('s_mov_b32 s27, s7')
        A('s_mov_b32 s26, s6')
    A(f's_add_u32 s12, s12, {QB}')
    A('s_add_u32 s13, s12, 1024')
    A(f's_lshl_b32 s{sPH}, s9, 12')
    A(f's_add_u32 s{sPH}, s{sPH}, {PHQ}')
    A('s_lshl_b32 s14, s5, 11')
    A(f's_add_u32 s14, s14, {QL}')
    A(f's_mov_b32 s15, {KN}')
    A(f's_lshl_b32 s{sDL}, s5, 12')
    A(f's_add_u32 s{sDG}, s{sDL}, {KV}')
    A(f's_mov_b32 s{sPERM}, 0x07060302')
    A('s_mov_b32 m0, s14')
    A('s_waitcnt lgkmcnt(0)')
    make_srd(A, sWS, 's32', 's33', WS_SIZE)
    vKN, vVM = vDEN, vDEN + 1
    q2 = vDEN + 2
    A(f'buffer_load_dwordx4 v{vL16}, {sr(sWS, 4)}, s12 offen lds ; dma0')
    A('s_add_u32 m0, s14, 1024')
    A(f'buffer_load_dwordx4 v{vL16}, {sr(sWS, 4)}, s13 offen lds ; dma0')
    for i in range(4):
        for e in dma(0, i): A(e)
    A(f'buffer_load_dword v{vKN}, v{vT0}, {sr(sWS, 4)}, s15 offen')
    A(f'buffer_load_dword v{vVM}, v{vT0}, {sr(sWS, 4)}, s15 offen offset:256')
    for i in range(4):
        for e in dma(1, i): A(e)
    stamp(A, 1)
    A('s_and_b32 s3, s5, 1')
    A('s_lshl_b32 s3, s3, 13')
    A(f'v_add_u32 v{vLo}, s3, v{vL16}')
    A(f'v_add_u32 v{vHi}, 0x10000, v{vLo}')
    for r in list(range(vO, vO + 32)) + list(range(vL, vL + 8)) + list(range(vP + 8, vP + 16)) + list(range(vV + 8, vV + 16)):
        A(f'v_mov_b32 v{r}, 0')
    t0, t1 = vS, vS + 1
    emit_selector(A, vSEL, vLANE, t0, t1)
    A('s_lshl_b32 s3, s5, 12')
    A(f's_add_u32 s4, s3, {4 * STG + LX0}')
    A('s_cmp_ge_u32 s5, 4')
    A('s_cselect_b32 s4, s3, s4')
    A(f's_add_u32 s3, s3, {STG}')
    A('s_bitcmp1_b32 s2, 3')
    A('s_cselect_b32 s3, s4, s3')
    A(f'v_add_u32 v{vXW}, s3, v{vL16}')
    A(f'v_xor_b32 v{vXR}, 4096, v{vXW}')
    A('s_lshl_b32 s3, s5, 8')
    A(f's_add_u32 s3, s3, {2 * STG + LX0}')
    A(f'v_add_u32 v{vLW}, s3, v{vT0}')
    A(f'v_xor_b32 v{vLR}, 256, v{vLW}')
    A('s_xor_b32 s10, s5, 1')
    A('s_lshr_b32 s3, s5, 1')
    A('s_lshl_b32 s3, s3, 10')
    A('s_and_b32 s4, s5, 1')
    A('s_lshl_b32 s4, s4, 3')
    A('s_add_u32 s3, s3, s4')
    A(f's_add_u32 s3, s3, {KVF}')
    A(f'v_add_u32 v{vKFW}, s3, v{vL16}')
    A('s_lshr_b32 s3, s5, 1')
    A('s_lshl_b32 s3, s3, 5')
    A('s_add_u32 s3, s3, s4')
    A(f's_add_u32 s3, s3, {ZF}')
    A(f'v_and_b32 v{t0}, 2, v{vLANE}')
    A(f'v_lshlrev_b32 v{t0}, 3, v{t0}')
    A(f'v_and_b32 v{t1}, 1, v{vLANE}')
    A(f'v_lshl_add_u32 v{t0}, v{t1}, 2, v{t0}')
    A(f'v_bfe_u32 v{t1}, v{vLANE}, 4, 1')
    A(f'v_lshl_add_u32 v{t0}, v{t1}, 1, v{t0}')
    A(f'v_add_u32 v{vZW}, s3, v{t0}')
    A(f'v_lshrrev_b32 v{t0}, 5, v{vLANE}')
    A(f'v_lshlrev_b32 v{t0}, 4, v{t0}')
    A(f'v_add_u32 v{vZR}, {ZF}, v{t0}')
    A('s_lshl_b32 s3, s6, 3')
    A('s_add_u32 s3, s3, s5')
    A('s_lshl_b32 s3, s3, 16')
    A('s_lshl_b32 s4, s7, 11')
    A('s_add_u32 s3, s3, s4')
    A(f's_add_u32 s{sOA}, s3, {OA}')
    A('s_lshr_b32 s3, s3, 9')
    A(f's_add_u32 s{sFA}, s3, {FLG}')
    A('s_lshl_b32 s3, s26, 3')
    A('s_add_u32 s3, s3, s5')
    A('s_lshl_b32 s3, s3, 16')
    A('s_lshl_b32 s4, s27, 11')
    A('s_add_u32 s3, s3, s4')
    A(f's_add_u32 s{sOB}, s3, {OB}')
    F_PT = int(os.environ.get('F_PT', '1'))
    if F_PT & 4: A(f'buffer_load_dword v{vOB}, v{vL16}, {sr(sWS, 4)}, s{sOB} offen')
    if F_PT & 8: A(f'buffer_load_dword v{vOB + 1}, v{vL16}, {sr(sWS, 4)}, s{sOB} offen offset:1024')
    A('s_lshr_b32 s3, s3, 9')
    A(f's_add_u32 s{sFB}, s3, {FLG + 8192}')
    A('s_and_b32 s3, s2, 7')
    if F_MAP:
        A(f's_bfe_u32 s{sMAT}, s2, 0x10003')
        A('s_lshr_b32 s4, s2, 4')
        A('s_lshl_b32 s8, s3, 1')
        A('s_and_b32 s9, s4, 1')
        A('s_add_u32 s8, s8, s9')
        A('s_lshr_b32 s9, s4, 1')
        A('s_lshr_b32 s16, s3, 1')
        A('s_lshl_b32 s16, s16, 2')
        A('s_and_b32 s11, s4, 3')
        A('s_add_u32 s16, s16, s11')
        A('s_and_b32 s11, s3, 1')
        A('s_lshl_b32 s11, s11, 2')
        A('s_lshr_b32 s4, s4, 2')
        A('s_add_u32 s11, s11, s4')
        A(f's_cmp_eq_u32 s{sMAT}, 0')
        A(f's_cselect_b32 s{sMT}, s16, s8')
        A(f's_cselect_b32 s{sNT}, s11, s9')
    else:
        A(f's_bfe_u32 s{sMAT}, s2, 0x10002')
        A('s_and_b32 s8, s2, 3')
        A('s_lshl_b32 s8, s8, 2')
        A('s_bfe_u32 s9, s2, 0x20003')
        A(f's_add_u32 s{sMT}, s8, s9')
        A(f's_lshr_b32 s{sNT}, s2, 5')
    make_srd(A, sO, 's30', 's31', 0x800000)
    make_srd(A, sPA, 's24', 's25', 0x200000)
    make_srd(A, sPB, 's28', 's29', 0x200000)
    A(f's_cmp_eq_u32 s{sMAT}, 0')
    A(f's_cselect_b32 s8, s24, s28')
    A(f's_cselect_b32 s9, s25, s29')
    make_srd(A, sW, 's8', 's9', 0x200000)
    A(f's_lshl_b32 s8, s{sMT}, 18')
    A(f's_lshl_b32 s9, s{sMAT}, 22')
    A('s_add_u32 s8, s8, s9')
    A(f's_add_u32 s8, s8, {OA}')
    A('s_add_u32 s8, s32, s8')
    A('s_addc_u32 s9, s33, 0')
    make_srd(A, sX, 's8', 's9', 0x40000)
    A(f's_lshl_b32 s8, s{sMT}, 2')
    A('s_and_b32 s9, s5, 3')
    A('s_add_u32 s8, s8, s9')
    A('s_lshl_b32 s8, s8, 7')
    A(f's_lshl_b32 s9, s{sMAT}, 13')
    A('s_add_u32 s8, s8, s9')
    A(f's_add_u32 s{sFC}, s8, {FLG}')
    A('s_mov_b32 s35, s5')
    if F_FAST:
        A('s_getreg_b32 s8, hwreg(HW_REG_XCC_ID, 0, 4)')
        A(f's_add_u32 s{sFAST}, s8, 1')
        A('s_and_b32 s8, s2, 7')
        A('s_lshl_b32 s8, s8, 7')
        A(f's_add_u32 s{sXT}, s8, {XT}')
        A('s_lshr_b32 s8, s2, 3')
        A('s_lshl_b32 s8, s8, 2')
        A(f's_add_u32 s8, s8, s{sXT}')
        A(f'v_mov_b32 v{t0}, s{sFAST}')
        A(f'v_mov_b32 v{t1}, 0')
        A('s_cmp_eq_u32 s5, 7')
        A('s_cselect_b64 exec, 1, 0')
        A(f'buffer_store_dword v{t0}, v{t1}, {sr(sWS, 4)}, s8 offen {WT}')
        A('s_mov_b64 exec, -1')
    A('s_lshl_b32 s3, s7, 17')
    A('s_lshl_b32 s4, s5, 10')
    A('s_add_u32 s3, s3, s4')
    A(f's_add_u32 s{sKVP}, s3, {KVP}')
    A(f'v_lshrrev_b32 v{t0}, 2, v{vLANE}')
    A(f'v_lshlrev_b32 v{t0}, 8, v{t0}')
    A(f'v_and_b32 v{t1}, 3, v{vLANE}')
    A(f'v_lshl_add_u32 v{vT1}, v{t1}, 3, v{t0}')
    A('s_lshl_b32 s3, s7, 12')
    A('s_lshl_b32 s4, s5, 5')
    A('s_add_u32 s3, s3, s4')
    A(f's_add_u32 s{sZP}, s3, {ZP}')
    qo, qp = vS + 16, vS + 17
    A(f'v_add_u32 v{qo}, s14, v{vL16}')
    A('s_lshl_b32 s10, s10, 11')
    A(f's_add_u32 s10, s10, {QL}')
    A(f'v_add_u32 v{qp}, s10, v{vL16}')
    stamp(A, 2)
    wait_dma(A, 0)
    A('s_barrier')
    stamp(A, 3)
    if gen_k1.STAMPS: A('s_waitcnt lgkmcnt(0)')
    for t in range(2):
        A(f'ds_read_b128 {vr(vQ + 4 * t, 4)}, v{qp} offset:{t * 1024}')
        A(rdK(0, 0, t))
    for t in range(2):
        A(f'ds_read_b128 {vr(vQ + 8 + 4 * t, 4)}, v{qo} offset:{t * 1024}')
    A(rdV(0, 0, 0)); A(rdV(0, 0, 1))
    A(rdK(1, 1, 0)); A(rdK(1, 1, 1))
    A(f'v_mov_b32 v{q2}, 0')
    A(f'v_mov_b32 v{q2 + 1}, 0')
    dl = [[], []]
    dpp_max_reduce(dl[0].append, vKN)
    dpp_max_reduce(dl[1].append, vVM)
    for a, b in zip(*dl):
        A(a); A(b)
    for m in qk(0, 0): A(m)
    for r in range(8):
        A(f'v_dot2c_f32_bf16 v{q2}, v{vQ + r}, v{vQ + r}')
        A(f'v_dot2c_f32_bf16 v{q2 + 1}, v{vQ + 8 + r}, v{vQ + 8 + r}')
    A(f'v_readlane_b32 s3, v{vKN}, 63')
    A(f'v_readlane_b32 s4, v{vVM}, 63')
    A(f'v_mov_b32 v{q2 + 2}, v{q2}')
    A(f'v_mov_b32 v{q2 + 3}, v{q2 + 1}')
    A(f's_mov_b32 s8, {f32bits(3400.0)}')
    A(f's_mov_b32 s9, {f32bits(2.0 ** 50)}')
    A(f'v_permlane32_swap_b32 v{q2}, v{q2 + 2}')
    A(f'v_permlane32_swap_b32 v{q2 + 1}, v{q2 + 3}')
    A(f'v_add_f32 v{q2}, v{q2}, v{q2 + 2}')
    A(f'v_add_f32 v{q2 + 1}, v{q2 + 1}, v{q2 + 3}')
    A(f'v_mov_b32 v{q2 + 2}, s4')
    A(f'v_mul_f32 v{q2}, s3, v{q2}')
    A(f'v_mul_f32 v{q2 + 1}, s3, v{q2 + 1}')
    A(f's_mov_b32 s10, {f32bits(2.0 ** -30)}')
    A(f'v_cmp_nge_f32 s[20:21], s9, v{q2 + 2}')
    A(f'v_cmp_nle_f32 s[22:23], s10, v{q2 + 2}')
    A(f'v_cmp_nge_f32 s[16:17], s8, v{q2}')
    A(f'v_cmp_nge_f32 s[18:19], s8, v{q2 + 1}')
    A('s_or_b64 s[20:21], s[20:21], s[22:23]')
    A('s_or_b64 s[16:17], s[16:17], s[18:19]')
    A('s_or_b64 s[16:17], s[16:17], s[20:21]')
    A(f's_or_b32 s{sFLAG}, s16, s17')

    X = [[[] for _ in range(6)] for _ in range(64)]
    for st in range(32):
        ph = 2 * st + 1
        if st + 1 < 32:
            X[ph][2].append(rdV((st + 1) & 1, st + 1, 0)); X[ph][3].append(rdV((st + 1) & 1, st + 1, 1))
        if st + 2 < 32:
            X[ph][4].append(rdK(st & 1, st + 2, 0)); X[ph][5].append(rdK(st & 1, st + 2, 1))
    if 'd' not in XP2:
        for i, ph in enumerate((0, 1, 2, 3)):
            X[ph][1] += dma(2, i)
        for c in range(5):
            for i, d in enumerate((5, 6, 8, 10)):
                X[8 * c + d][1] += dma(c + 3, i)
    lds_ = []
    for f in range(4):
        lds_.append([f'buffer_load_dwordx4 {vr(vPHI + 4 * f, 4)}, v{vL16}, {sr(sWS, 4)}, s{sPH} offen offset:{f * 1024}'])
    for p in range(16):
        lds_.append([f'buffer_load_dwordx4 {vr(vKVP + 4 * p, 4)}, v{vL16}, {sr(sWS, 4)}, s{sKVP} offen'] +
                    ([f's_add_u32 s{sKVP}, s{sKVP}, 8192'] if p < 15 else []))
    lds_.append([f'buffer_load_dwordx2 {vr(vZ, 2)}, v{vT1}, {sr(sWS, 4)}, s{sZP} offen'])
    ph = 4
    for i_, g in enumerate(lds_[4:] + lds_[:4]):
        if F_EARLY == 2:
            X[4 + i_ // 2][4 * (i_ & 1)] += g
        else:
            X[ph][4 if ph % 2 == 0 else 0] += g
        ph += 1
    sums = []
    n = 16
    while n > 1:
        n //= 2
        for p in range(n):
            for x in (0, 2):
                sums.append(f'v_pk_add_f32 {vr(vKVP + 4 * p + x, 2)}, {vr(vKVP + 4 * p + x, 2)}, {vr(vKVP + 4 * (p + n) + x, 2)}')
    zred = [[f'v_permlane16_swap_b32 v{vZ}, v{vZ + 1}'],
            [f'v_add_f32 v{vZ}, v{vZ}, v{vZ + 1}'],
            [f'v_add_f32_dpp v{vZ}, v{vZ}, v{vZ} row_shr:4 row_mask:0xf bank_mask:0xf'],
            [f'v_add_f32_dpp v{vZ}, v{vZ}, v{vZ} row_shr:8 row_mask:0xf bank_mask:0xf'],
            [f'v_mov_b32 v{vZ + 1}, v{vZ}'],
            [f'v_permlane32_swap_b32 v{vZ}, v{vZ + 1}'],
            [f'v_add_f32 v{vZ}, v{vZ}, v{vZ + 1}'],
            [cvtpk(vZ, vZ, vZ)],
            ['s_mov_b32 exec_lo, 0xf000f000', 's_mov_b32 exec_hi, 0', f'ds_write_b16 v{vZW}, v{vZ}', 's_mov_b64 exec, -1']]
    k = 0
    P0 = {2: 18, 1: 26}[F_EARLY]
    E = 8 * F_EARLY
    for ph in range(P0, P0 + 6):
        for sl in range(5):
            X[ph][sl].append(sums[k]); k += 1
    assert k == 30
    X[P0 + 6][0] += [cvtpk(vKVP + 4, vKVP), cvtpk(vKVP + 5, vKVP + 2)]
    X[P0 + 6][2] += [f'ds_write_b64 v{vKFW}, {vr(vKVP + 4, 2)}']
    for k, g in enumerate(zred):
        X[P0 + 6 + k // 3][1 + 2 * (k % 3)] += g
    KF = vKVP + 8
    ZFr = vKVP + 24
    NUM = vKVP + 40
    PA = vKVP + 56
    X[44 - E][5].append(f'v_add_u32 v{vT0}, {KVF}, v{vL16}')
    for f in range(4):
        X[45 - E + (f >> 1)][f & 1].append(f'ds_read_b128 {vr(KF + 4 * f, 4)}, v{vT0} offset:{f * 1024}')
        X[46 - E][2 + f].append(f'ds_read_b128 {vr(ZFr + 4 * f, 4)}, v{vZR} offset:{f * 32}')
    for f in range(4):
        X[47 - E + 2 * f][3].append(mfma32(NUM, KF + 4 * f, vPHI + 4 * f, '0' if f == 0 else None))
        X[48 - E + 2 * f][3].append(mfma32(vDEN, ZFr + 4 * f, vPHI + 4 * f, '0' if f == 0 else None))
    X[56 - E][0].append(f'v_add_f32 v{vDEN}, {f32bits(1e-6)}, v{vDEN}')
    X[56 - E][1].append(f'v_rcp_f32 v{vDEN}, v{vDEN}')
    for k, r in enumerate(range(0, 16, 2)):
        X[56 - E + k // 4][2 + k % 4].append(f'v_pk_mul_f32 {vr(NUM + r, 2)}, {vr(NUM + r, 2)}, {vr(vDEN, 2)} op_sel_hi:[1,0]')
        X[58 - E + k // 4][k % 4].append(cvtpk(PA + r // 2, NUM + r))
    for x in range(2):
        X[58 - E + x][5].append(f'buffer_store_dwordx4 {vr(PA + 4 * x, 4)}, v{vL16}, {sr(sWS, 4)}, s{sOA} offen offset:{1024 * x}')
    PF0 = P0 + 10
    X[PF0][0] += [f'v_and_b32 v{vFO}, 31, v{vLANE}', f'v_lshlrev_b32 v{vFO}, 2, v{vFO}']
    X[PF0][2] += [f'v_mov_b32 v{vFO + 2}, 1', f'v_mov_b32 v{vFO + 3}, 0', f'v_mov_b32 v{vFL}, 0']
    if F_PF and F_MAP:
        pa, pd = vFO + 4, vFO + 5
        X[PF0 + 2][0] += [f'v_lshlrev_b32 v{pa}, 6, v{vLANE}', 's_lshr_b32 s3, s2, 3', 's_lshl_b32 s3, s3, 3', 's_add_u32 s3, s3, s5',
                          's_lshl_b32 s4, s3, 13', 's_add_u32 s8, s4, 4096']
        X[PF0 + 2][2] += [f'buffer_load_dword v{pd}, v{pa}, {sr(sPB, 4)}, s4 offen']
        X[PF0 + 4][2] += [f'buffer_load_dword v{pd}, v{pa}, {sr(sPB, 4)}, s8 offen']
        X[PF0 + 6][0] += [f'v_lshrrev_b32 v{pa + 2}, 4, v{vLANE}', f'v_and_b32 v{pa + 3}, 15, v{vLANE}',
                          f'v_lshlrev_b32 v{pa + 2}, 11, v{pa + 2}', 's_and_b32 s9, s2, 1', 's_lshl_b32 s9, s9, 10', 's_add_u32 s4, s4, s9']
        X[PF0 + 6][2] += [f'v_lshl_add_u32 v{pa + 2}, v{pa + 3}, 6, v{pa + 2}']
        X[PF0 + 6][4] += [f'buffer_load_dword v{pd}, v{pa + 2}, {sr(sPA, 4)}, s4 offen']
        F_PT = int(os.environ.get('F_PT', '1'))
        PTP = int(os.environ.get('F_PTP', 52))
        if F_PT & 1: X[PTP][2] += [f'buffer_load_dword v{pd}, v{pa}, {sr(sWS, 4)}, s{sOB} offen']
        if F_PT & 16: X[PTP][2] += ['s_mov_b32 exec_hi, 0', f'buffer_load_dword v{pd}, v{pa}, {sr(sWS, 4)}, s{sOB} offen', 's_mov_b32 exec_hi, -1']
        if F_PT & 2: X[PTP][4] += [f'buffer_load_dword v{pd}, v{vFO + 3}, {sr(sWS, 4)}, s{sFB} offen']
    X[44 - E][4] += ['s_waitcnt lgkmcnt(4)']
    FA = {2: 47, 1: 54}[F_EARLY]
    X[FA][0] += ['s_waitcnt vmcnt(0)', 's_mov_b64 exec, 1',
                 f'buffer_store_dword v{vFO + 2}, v{vFO + 3}, {sr(sWS, 4)}, s{sFA} offen {WT}', 's_mov_b64 exec, -1']
    t0, t1, t2 = vPRE + 1, vPRE + 2, vPRE + 3
    pre = [['s_and_b32 s3, s5, 3', f'v_lshrrev_b32 v{t1}, 4, v{vLANE}', 's_and_b32 s9, s5, 1', 's_lshl_b32 s9, s9, 2'],
           [f'v_bfe_u32 v{t0}, v{vLANE}, 1, 3', f'v_xor_b32 v{t0}, v{t0}, v{t1}'],
           [f'v_xor_b32 v{t0}, s9, v{t0}', 's_lshl_b32 s9, s3, 4', f'v_add_u32 v{t1}, s9, v{t1}'],
           [f'v_lshlrev_b32 v{vW3}, 11, v{t1}', f'v_lshl_add_u32 v{vW3}, v{t0}, 5, v{vW3}'],
           [f'v_and_b32 v{t2}, 1, v{vLANE}', f'v_lshl_add_u32 v{vW3}, v{t2}, 4, v{vW3}', 's_lshl_b32 s9, s3, 16'],
           [f'v_add_u32 v{vX3}, s9, v{vL16}', 's_and_b32 s4, s2, 7', f's_mul_i32 s{sK0}, s4, {ROT}', f's_and_b32 s4, s{sMT}, 3',
            f's_mul_i32 s4, s4, {RR}', f's_add_u32 s{sK0}, s{sK0}, s4', f's_mul_i32 s4, s{sNT}, {RC}', f's_add_u32 s{sK0}, s{sK0}, s4'],
           ['s_lshl_b32 s9, s3, 12', f's_add_u32 s31, s9, {LX0}', f's_lshl_b32 s3, s{sNT}, 8', 's_cmp_ge_u32 s5, 4',
            's_cselect_b64 vcc, -1, 0', 's_cselect_b32 s31, s9, s31', 's_cselect_b32 s30, 17, 12', 's_cselect_b32 s20, s3, 0',
            's_cselect_b32 s28, 13, 10', f's_cselect_b32 s{sGO}, 1, 0', f's_cselect_b32 s{sGO2}, s{sMAT}, 0', 's_lshl_b32 s28, 1, s28'],
           [f'v_cndmask_b32 v{vPRE}, v{vX3}, v{vW3}, vcc', 's_cmp_ge_u32 s5, 4',
            f's_cselect_b32 s24, s{sW}, s{sX}', f's_cselect_b32 s25, s{sW + 1}, s{sX + 1}', f's_cselect_b32 s26, s{sW + 2}, s{sX + 2}',
            's_mov_b32 s27, 0x00020000']]
    for k, g in enumerate(pre):
        X[52 + k // 4][(0, 1, 3, 5)[k % 4]] += g
    if F_FAST:
        X[49][0] += [f'buffer_load_dword v{vFL}, v{vFO}, {sr(sWS, 4)}, s{sXT} offen {WT}']
        X[51][0] += [f'v_cmp_ne_u32 vcc, s{sFAST}, v{vFL}', 's_cmp_eq_u64 vcc, 0', f's_cselect_b32 s{sFAST}, 1, 0']
    X[55][0] += [f'buffer_load_dword v{vFL}, v{vFO}, {sr(sWS, 4)}, s{sFC} offen {WT}']
    X[57][0] += [f'v_cmp_ne_u32 vcc, 1, v{vFL}', 's_cmp_eq_u64 vcc, 0', f's_cselect_b32 s{sGO}, 1, s{sGO}']
    for i in range(4):
        X[(58, 60, 54, 54)[i]][(1, 1, 1, 4)[i]] += [f's_cmp_eq_u32 s{sGO if i < 2 else sGO2}, 0', f's_cbranch_scc1 K2_np{i}'] + pre_dma(i) + [f'K2_np{i}:']

    prio = {}
    for c in range(7):
        for d, p in ((5, 3), (7, 2), (9, 1), (11, 0)):
            prio[8 * c + d] = p
    for ph, p in ((53, 3), (56, 2), (59, 1), (62, 0)): prio[ph] = p
    for ph in (55, 57): prio.pop(ph, None)
    prio[0] = 2; prio[1] = 1; prio[3] = 0
    for st in range(32):
        c, j = st >> 2, st & 3
        for p in range(2):
            ph = 2 * st + p
            if p == 1 and j == 2 and c < 7:
                wait_dma(A, c + 1)
                if 'b' not in XP2: A('s_barrier')
            if PRIO and ph in prio: A(f's_setprio {prio[ph]}')
            if p == 0:
                phase(A, 0, st & 1, (st - 1) & 1, X[ph])
            else:
                phase(A, 1, (st + 1) & 1, st & 1, X[ph], noqk=(st == 31))
    o, l = pv(1, 1)
    for m in (o[0], l[0], o[1], l[1]): A(m)
    stamp(A, 4)
    A(f's_cmp_lg_u32 s{sFLAG}, 0')
    A('s_cbranch_scc1 K2_fallback')
    A('K2_tail:')
    for qd in range(4):
        A(f'ds_write_b128 v{vXW}, {vr(vO + 4 * qd, 4)} offset:{XCH + qd * 1024}')
    A(f'ds_write_b32 v{vLW}, v{vL} offset:0')
    A('s_waitcnt lgkmcnt(0)')
    A('s_barrier')
    Xr = vS
    XL = vV
    OBr = vO + 16
    LB = vL + 4
    A(f'ds_read_b32 v{XL}, v{vLR} offset:0')
    for qd in range(4):
        A(f'ds_read_b128 {vr(Xr + 4 * qd, 4)}, v{vXR} offset:{XCH + qd * 1024}')
    A(f'v_add_f32 v{LB}, v{LB}, v{XL}')
    A(f'v_rcp_f32 v{LB}, v{LB}')
    for x in range(2):
        for r in range(8 * x, 8 * x + 8, 2):
            A(f'v_pk_add_f32 {vr(OBr + r, 2)}, {vr(OBr + r, 2)}, {vr(Xr + r, 2)}')
        for r in range(8 * x, 8 * x + 8, 2):
            A(f'v_pk_mul_f32 {vr(OBr + r, 2)}, {vr(OBr + r, 2)}, {vr(LB, 2)} op_sel_hi:[1,0]')
        for r in range(8 * x, 8 * x + 8, 2):
            A(cvtpk(vOB + r // 2, OBr + r))
        if not F_FAST:
            A(f'buffer_store_dwordx4 {vr(vOB + 4 * x, 4)}, v{vL16}, {sr(sWS, 4)}, s{sOB} offen offset:{1024 * x}')
    if F_FAST:
        A(f's_cmp_eq_u32 s{sFAST}, 0')
        A('s_cbranch_scc1 K2_slow')
        for x in range(2):
            A(f'buffer_store_dwordx4 {vr(vOB + 4 * x, 4)}, v{vL16}, {sr(sWS, 4)}, s{sOB} offen offset:{1024 * x} ; plain')
        A('K2_stored:')
    stamp(A, 5)
    stamp(A, 6)
    A('s_cmp_ge_u32 s5, 4')
    A('s_cbranch_scc1 K3_loader')
    f_compute(A)
    A('K3_loader:')
    A.h = hsave(A)
    f_loader(A)

    if F_FAST:
        A('K2_slow:')
        for x in range(2):
            A(f'buffer_store_dwordx4 {vr(vOB + 4 * x, 4)}, v{vL16}, {sr(sWS, 4)}, s{sOB} offen offset:{1024 * x}')
        A('s_branch K2_stored')
    A('K2_fallback:')
    A('s_waitcnt vmcnt(0) lgkmcnt(0)')
    A('s_nop 15')
    A(f'v_mov_b32 v{vM}, 0xff800000')
    A(f'v_mov_b32 v{vM + 1}, 0xff800000')
    A('s_mov_b32 s11, 0')
    L1 = A.label('K2F')
    A(f'{L1}:')
    A('s_lshr_b32 s3, s11, 3')
    A('s_lshl_b32 s3, s3, 15')
    A('s_and_b32 s4, s11, 7')
    A('s_lshl_b32 s4, s4, 11')
    A('s_add_u32 s3, s3, s4')
    A(f's_add_u32 s3, s3, {KV}')
    for t in range(2):
        A(f'buffer_load_dwordx4 {vr(vK + 4 * t, 4)}, v{vL16}, {sr(sWS, 4)}, s3 offen offset:{t * 1024}')
    for x in range(2):
        for m in qk(x, 0): A(m)
    for x in range(2):
        for r in range(0, 16, 2):
            A(f'v_max3_f32 v{vM + x}, v{vM + x}, v{vS + 16 * x + r}, v{vS + 16 * x + r + 1}')
    A('s_add_u32 s11, s11, 1')
    A('s_cmp_lg_u32 s11, 64')
    A(f's_cbranch_scc1 {L1}')
    for x in range(2):
        A(f'v_mov_b32 v{vT0}, v{vM + x}')
        A(f'v_permlane32_swap_b32 v{vM + x}, v{vT0}')
        A(f'v_max_f32 v{vM + x}, v{vM + x}, v{vT0}')
        A(f'v_add_f32 v{vM + x}, {f32bits(11.0)}, v{vM + x}')
    for r in list(range(vO, vO + 32)) + list(range(vL, vL + 8)):
        A(f'v_mov_b32 v{r}, 0')
    A('s_mov_b32 s11, 0')
    A('s_and_b32 s12, s5, 1')
    A('s_lshl_b32 s12, s12, 13')
    A(f's_add_u32 s12, s12, {KV}')
    L2 = A.label('K2G')
    A(f'{L2}:')
    A('s_lshr_b32 s3, s11, 2')
    A('s_lshl_b32 s3, s3, 15')
    A('s_and_b32 s4, s11, 3')
    A('s_lshl_b32 s4, s4, 11')
    A('s_add_u32 s3, s3, s4')
    A('s_add_u32 s3, s3, s12')
    A('s_add_u32 s4, s3, 16384')
    for t in range(2):
        A(f'buffer_load_dwordx4 {vr(vK + 4 * t, 4)}, v{vL16}, {sr(sWS, 4)}, s3 offen offset:{t * 1024}')
    for t in range(2):
        A(f'buffer_load_dwordx4 {vr(vV + 4 * t, 4)}, v{vL16}, {sr(sWS, 4)}, s4 offen offset:{t * 1024}')
    for x in range(2):
        for m in qk(x, 0): A(m)
    for x in range(2):
        for r in range(16):
            A(f'v_sub_f32 v{vS + 16 * x + r}, v{vS + 16 * x + r}, v{vM + x}')
        for v in softmax_valu(x): A(v)
    for x in range(2):
        o, l = pv(x, 0)
        for m in o + l: A(m)
    A('s_add_u32 s11, s11, 1')
    A('s_cmp_lg_u32 s11, 32')
    A(f's_cbranch_scc1 {L2}')
    A('s_nop 15')
    A('s_branch K2_tail')
```

```python
import os
import gen_k1, gen_k2, gen_k3
from gen_k2 import *
from gen_k2 import vr, sr, mfma32, mfma16, cvtpk, make_srd, emit_selector, dpp_max_reduce, stamp, f32bits
from gen_k1 import MB, STAMP_BASE
from gen_k3 import NS, STG, LWO, XF, WF, ACC, vXA, vWA, acc, reads, kstep, sX, sW, sO, sL, sGX, sGW, sD, sCnt, sWM, sWN
FLG = 14 * MB
K23_LDS = NS * STG
F_MAP = int(os.environ.get('F_MAP', '1'))
F_EARLY = int(os.environ.get('F_EARLY', '2'))
F_PF = int(os.environ.get('F_PF', '2'))
ROT = int(os.environ.get('ROT3', '6'))
RR = int(os.environ.get('RR3', '8'))
RC = int(os.environ.get('RC3', '2'))
SPIN = 20000
F_FAST = int(os.environ.get('F_FAST', '2'))
XT = FLG + 16384
vOB = 176
sFAST, sXT = 69, 68
F_AF = int(os.environ.get('F_AF', '1'))
sMT, sNT, sMAT, sFA, sFB, sFC = 61, 62, 63, 64, 65, 34
sPA, sPB = 24, 28
vFO, vFL = 164, 165
WT = 'sc0 sc1'
LW0, LX0 = 0, 16384
vW3, vX3, vPRE = 172, 173, 174
sGO2 = 21
sK0, sGO = 94, 95


def pre_dma(i):
    r = [f's_add_u32 s29, s{sK0}, {i}', 's_and_b32 s29, s29, 15', 's_lshl_b32 s29, s29, s30', 's_add_u32 s29, s29, s20']
    for j in range(4):
        r += [f's_add_u32 m0, s31, {(4, 0, 1, 2)[i] * STG + j * 1024}', 's_nop 0',
              f'buffer_load_dwordx4 v{vPRE}, s[24:27], s29 offen lds']
        if j < 3: r += ['s_add_u32 s29, s29, s28']
    return r


def flush2(A):
    if not gen_k1.STAMPS: return
    A('s_waitcnt lgkmcnt(0)')
    A('s_lshl_b32 s3, s2, 3')
    A('s_add_u32 s3, s3, s35')
    A('s_lshl_b32 s3, s3, 6')
    A(f's_add_u32 s3, s3, {STAMP_BASE + MB}')
    A(f's_add_u32 s4, s3, {MB}')
    A('v_mov_b32 v1, 0')
    A('s_mov_b64 exec, 1')
    for i in range(12):
        A(f'v_mov_b32 v3, s{70 + 2 * i}')
        A(f'buffer_store_dword v3, v1, {sr(sWS, 4)}, s{3 + i // 6} offen offset:{4 * (i % 6)}')
    A('s_mov_b64 exec, -1')


def set_flag(A, s):
    if F_FAST:
        A(f's_mov_b32 exec_lo, s{sFAST}')
        A('s_mov_b32 exec_hi, 0')
        A(f'buffer_store_dword v{vFO + 2}, v{vFO + 3}, {sr(sWS, 4)}, s{s} offen')
        A(f's_xor_b32 exec_lo, s{sFAST}, 1')
    else:
        A('s_mov_b64 exec, 1')
    A(f'buffer_store_dword v{vFO + 2}, v{vFO + 3}, {sr(sWS, 4)}, s{s} offen {WT}')
    A('s_mov_b64 exec, -1')


def clean(A):
    if not F_FAST or F_FAST == 2: return
    for x in range(2):
        A(f'buffer_store_dwordx4 {vr(vOB + 4 * x, 4)}, v{vL16}, {sr(sWS, 4)}, s{sOB} offen offset:{1024 * x}')
    A('s_mov_b64 exec, 1')
    A(f'buffer_store_dword v{vFO + 2}, v{vFO + 3}, {sr(sWS, 4)}, s{sFB} offen {WT}')
    A('s_mov_b64 exec, -1')


def hsave(A):
    from asmlib import HState
    h = HState()
    h.vm = [({vFL}, 'flagread'), (set(), 'st'), (set(), 'st')]
    return h


def f_loader(A):
    n = 8
    vX0, vW = vX3, vW3
    sK, sN = sCnt, 58
    sT = gen_k3.sT
    A('s_sub_u32 s5, s5, 4')
    A(f's_lshl_b32 s{sL}, s5, 12')
    A(f's_lshl_b32 s{sN}, s{sNT}, 8')
    for i in range(3):
        A(f's_add_u32 s{16 + i}, s{sK0}, {2 + i}')
        A(f's_and_b32 s{16 + i}, s{16 + i}, 15')
    A(f's_add_u32 s{sK}, s{sK0}, 5')
    A('s_waitcnt vmcnt(0)')
    set_flag(A, sFB)
    stamp(A, 7)
    def issue():
        A(f's_and_b32 s{sK}, s{sK}, 15')
        A(f's_lshl_b32 s{sGX}, s{sK}, 12')
        A(f's_lshl_b32 s{sGW}, s{sK}, 17')
        A(f's_add_u32 s{sGW}, s{sGW}, s{sN}')
        for j in range(4):
            A(f's_add_u32 m0, s{sL}, {LW0 + j * 1024}')
            A(f's_add_u32 s{sT}, s{sGW}, {j * 8192}')
            A(f'buffer_load_dwordx4 v{vW}, {sr(sW, 4)}, s{sT} offen lds')
            A(f's_add_u32 m0, s{sL}, {LX0 + j * 1024}')
            A(f's_add_u32 s{sT}, s{sGX}, {j * 1024}')
            A(f'buffer_load_dwordx4 v{vX0}, {sr(sX, 4)}, s{sT} offen lds')
        A(f's_add_u32 s{sK}, s{sK}, 1')
        A(f's_add_u32 s{sL}, s{sL}, {STG}')
        A(f's_cmp_ge_u32 s{sL}, {NS * STG}')
        A(f's_cselect_b32 s{sT}, {NS * STG}, 0')
        A(f's_sub_u32 s{sL}, s{sL}, s{sT}')

    A('s_barrier')
    if F_AF:
        A(f's_cmp_eq_u32 s{sMAT}, 0' if F_AF == 1 else 's_cmp_eq_u32 0, 0')
        A('s_cbranch_scc1 K3_ldA')
    for i in range(2, 3):
        A(f's_lshl_b32 s{sGW}, s{16 + i}, 17')
        A(f's_add_u32 s{sGW}, s{sGW}, s{sN}')
        for j in range(4):
            A(f's_add_u32 m0, s{sL}, {(1 + i) * STG + LW0 + j * 1024}')
            A(f's_add_u32 s{sT}, s{sGW}, {j * 8192}')
            A(f'buffer_load_dwordx4 v{vW}, {sr(sW, 4)}, s{sT} offen lds')
    stamp(A, 8)
    A('s_barrier')
    stamp(A, 9)
    for i in range(3):
        A(f's_lshl_b32 s{sGX}, s{16 + i}, 12')
        for j in range(4):
            A(f's_add_u32 m0, s{sL}, {(1 + i) * STG + LX0 + j * 1024}')
            A(f's_add_u32 s{sT}, s{sGX}, {j * 1024}')
            A(f'buffer_load_dwordx4 v{vX0}, {sr(sX, 4)}, s{sT} offen lds')
    A(f's_add_u32 s{sL}, s{sL}, {4 * STG}')

    A('s_barrier')
    issue()
    A('s_waitcnt vmcnt(16)')
    A('s_barrier')
    issue()
    A('s_waitcnt vmcnt(20)')
    A('s_barrier')
    issue()
    A('K3_ldJ:')
    A('s_mov_b32 s11, 8')
    L = A.label('K3LD')
    A(f'{L}:')
    A('s_waitcnt vmcnt(24)')
    A('s_barrier')
    issue()
    A('s_sub_u32 s11, s11, 1')
    A('s_cmp_lg_u32 s11, 0')
    A(f's_cbranch_scc1 {L}')
    for i in range(3, -1, -1):
        A(f's_waitcnt vmcnt({i * n})')
        A('s_barrier')
    clean(A)
    stamp(A, 10)
    A('s_barrier')
    stamp(A, 11)
    flush2(A)
    A('s_endpgm')
    if F_AF:
        A('K3_ldA:')
        stamp(A, 8)
        A('s_barrier')
        stamp(A, 9)
        A(f's_sub_u32 s{sK}, s{sK}, 3')
        A(f's_add_u32 s{sL}, s{sL}, {STG}')
        if int(os.environ.get('F_AD', '0')): A(f"s_sleep {os.environ['F_AD']}")
        issue(); issue()
        A('s_barrier')
        issue(); issue()
        A('s_waitcnt vmcnt(24)')
        A('s_barrier')
        issue()
        A('s_waitcnt vmcnt(24)')
        A('s_barrier')
        issue()
        A('s_branch K3_ldJ')


def f_compute(A):
    t0, t1, t2, t3, r16, g = XF, XF + 1, XF + 2, XF + 3, XF + 4, XF + 5
    A(f's_bfe_u32 s{sWM}, s5, 0x10001')
    A(f's_and_b32 s{sWN}, s5, 1')
    A(f'v_and_b32 v{r16}, 15, v{vLANE}')
    A(f'v_lshrrev_b32 v{g}, 4, v{vLANE}')
    A(f's_lshl_b32 s9, s{sWM}, 13')
    A(f's_add_u32 s9, s9, {4 * STG + LX0}')
    A(f'v_lshlrev_b32 v{t0}, 4, v{r16}')
    A(f'v_add_u32 v{t0}, s9, v{t0}')
    A(f'v_and_b32 v{t1}, 1, v{g}')
    A(f'v_lshl_add_u32 v{t0}, v{t1}, 10, v{t0}')
    A(f'v_lshrrev_b32 v{t1}, 1, v{g}')
    A(f'v_lshl_add_u32 v{vXA}, v{t1}, 9, v{t0}')
    A(f'v_add_u32 v{vXA + 1}, 2048, v{vXA}')
    A(f'v_bfe_u32 v{t0}, v{vLANE}, 2, 2')
    A(f'v_and_b32 v{t2}, 1, v{g}')
    A(f'v_lshl_add_u32 v{t1}, v{t2}, 4, v{t0}')
    A(f'v_lshrrev_b32 v{t3}, 1, v{g}')
    A(f'v_lshl_add_u32 v{t1}, v{t3}, 2, v{t1}')
    A(f'v_lshl_add_u32 v{t0}, v{t2}, 2, v{t0}')
    A(f'v_and_b32 v{t3}, 3, v{vLANE}')
    A(f'v_lshlrev_b32 v{t3}, 3, v{t3}')
    A(f'v_lshl_add_u32 v{t1}, v{t1}, 8, v{t3}')
    A(f'v_add_u32 v{t1}, {LW0 + 4 * STG}, v{t1}')
    A(f's_lshl_b32 s9, s{sWN}, 2')
    A(f'v_xor_b32 v{t0}, s9, v{t0}')
    for nb in range(4):
        A(f'v_xor_b32 v{t2}, {nb}, v{t0}')
        A(f'v_lshl_add_u32 v{vWA + nb}, v{t2}, 5, v{t1}')
    vo = 10
    A(f'v_lshlrev_b32 v{vo}, 12, v{r16}')
    A(f'v_and_b32 v{t2}, 1, v{g}')
    A(f'v_lshl_add_u32 v{vo}, v{t2}, 5, v{vo}')
    A(f'v_lshrrev_b32 v{t2}, 1, v{g}')
    A(f'v_lshl_add_u32 v{vo}, v{t2}, 4, v{vo}')
    A(f's_lshl_b32 s14, s{sMT}, 19')
    A(f's_lshl_b32 s9, s{sWM}, 18')
    A('s_add_u32 s14, s14, s9')
    A(f's_lshl_b32 s9, s{sMAT}, 11')
    A('s_add_u32 s14, s14, s9')
    A(f's_lshl_b32 s9, s{sNT}, 8')
    A('s_add_u32 s14, s14, s9')
    A(f's_lshl_b32 s9, s{sWN}, 7')
    A('s_add_u32 s14, s14, s9')
    for r in range(ACC, ACC + 64):
        A(f'v_mov_b32 v{r}, 0')
    A(f's_mov_b32 s{sCnt}, 4')
    A(f's_mov_b32 s15, {(-(NS - 1) * STG) & 0xffffffff}')
    A('s_waitcnt vmcnt(0)')
    set_flag(A, sFB)
    stamp(A, 7)
    A('s_barrier')
    A(f's_cmp_lg_u32 s{sGO}, 0')
    A('s_cbranch_scc1 K3_have')
    A(f's_mov_b32 s11, {SPIN}')
    A('K3_poll:')
    A(f"buffer_load_dword v{vFL}, v{vFO}, {sr(sWS, 4)}, s{sFC} offen {os.environ.get('F_PS', WT)}")
    A('s_sub_u32 s11, s11, 1')
    A('s_cmp_eq_u32 s11, 0')
    A('s_cbranch_scc1 K3_ready')
    A(f'v_cmp_ne_u32 vcc, 1, v{vFL}')
    A('s_cmp_lg_u64 vcc, 0')
    A('s_cbranch_scc1 K3_poll')
    A('K3_ready:')
    stamp(A, 6)
    for i in range(2):
        for e in pre_dma(i): A(e)
    if os.environ.get('F_ST') == '1': stamp(A, 4)
    A('s_waitcnt vmcnt(0)')
    if os.environ.get('F_ST') == '1': stamp(A, 5)
    A('K3_have:')
    A('s_barrier')
    stamp(A, 8)
    if gen_k1.STAMPS: A('s_waitcnt lgkmcnt(0)')
    for r in reads(0): A(r)
    if int(os.environ.get('F_PO', '0')):
        A(f'v_lshlrev_b32 v{vFO}, 12, v{vLANE}')
        A(f'buffer_load_dword v{vFL}, v{vFO}, {sr(sO, 4)}, s14 offen')
    A('s_mov_b32 s11, 16')
    L = A.label('K3C')
    A('.p2align 6')
    A(f'{L}:')
    kstep(A)
    A('s_sub_u32 s11, s11, 1')
    A('s_cmp_lg_u32 s11, 0')
    A(f's_cbranch_scc1 {L}')
    stamp(A, 9)
    clean(A)
    A('s_waitcnt lgkmcnt(0)')
    k = 0
    for mb in range(4):
        for pr in range(2):
            tmp = XF + (k % 8) * 4
            k += 1
            for x in range(2):
                A(cvtpk(tmp + x, acc(mb, 2 * pr) + 2 * x))
                A(cvtpk(tmp + 2 + x, acc(mb, 2 * pr + 1) + 2 * x))
            for x in range(2):
                A(f'v_permlane16_swap_b32 v{tmp + x}, v{tmp + 2 + x}')
            A(f'buffer_store_dwordx4 {vr(tmp, 4)}, v{vo}, {sr(sO, 4)}, s14 offen offset:{pr * 64}')
        if mb < 3: A('s_add_u32 s14, s14, 65536')
    stamp(A, 10)
    if gen_k1.STAMPS: A('s_waitcnt vmcnt(0)')
    stamp(A, 11)
    flush2(A)
    A('s_endpgm')


def k23(A):
    A('k2_kernel:')
    A('s_cmp_ge_u32 s2, 256')
    A('s_cbranch_scc0 K2_go')
    A('s_endpgm')
    A('K2_go:')
    stamp(A, 0)
    A('s_load_dwordx2 s[32:33], s[0:1], 88')
    A('s_load_dwordx2 s[24:25], s[0:1], 24')
    A('s_load_dwordx4 s[28:31], s[0:1], 64')
    A('v_lshrrev_b32 v1, 6, v0')
    A(f'v_and_b32 v{vLANE}, 63, v0')
    A('v_readfirstlane_b32 s5, v1')
    A(f'v_lshlrev_b32 v{vL16}, 4, v{vLANE}')
    A(f'v_lshlrev_b32 v{vT0}, 2, v{vLANE}')
    A('s_and_b32 s3, s2, 7')
    A('s_lshl_b32 s7, s3, 2')
    A('s_bfe_u32 s4, s2, 0x20003')
    A('s_add_u32 s7, s7, s4')
    A('s_lshr_b32 s6, s2, 5')
    A('s_lshl_b32 s8, s7, 6')
    A('s_lshl_b32 s9, s6, 3')
    A('s_add_u32 s8, s8, s9')
    A('s_add_u32 s9, s8, s5')
    if F_MAP:
        A('s_lshr_b32 s27, s2, 3')
        A('s_lshl_b32 s12, s27, 3')
        A('s_add_u32 s12, s12, s3')
        A('s_lshl_b32 s12, s12, 3')
        A('s_add_u32 s12, s12, s5')
        A('s_lshl_b32 s12, s12, 11')
        A('s_mov_b32 s26, s3')
    else:
        A('s_lshl_b32 s12, s9, 11')
        A('s_mov_b32 s27, s7')
        A('s_mov_b32 s26, s6')
    A(f's_add_u32 s12, s12, {QB}')
    A('s_add_u32 s13, s12, 1024')
    A(f's_lshl_b32 s{sPH}, s9, 12')
    A(f's_add_u32 s{sPH}, s{sPH}, {PHQ}')
    A('s_lshl_b32 s14, s5, 11')
    A(f's_add_u32 s14, s14, {QL}')
    A(f's_mov_b32 s15, {KN}')
    A(f's_lshl_b32 s{sDL}, s5, 12')
    A(f's_add_u32 s{sDG}, s{sDL}, {KV}')
    A(f's_mov_b32 s{sPERM}, 0x07060302')
    A('s_mov_b32 m0, s14')
    A('s_waitcnt lgkmcnt(0)')
    make_srd(A, sWS, 's32', 's33', WS_SIZE)
    vKN, vVM = vDEN, vDEN + 1
    q2 = vDEN + 2
    A(f'buffer_load_dwordx4 v{vL16}, {sr(sWS, 4)}, s12 offen lds ; dma0')
    A('s_add_u32 m0, s14, 1024')
    A(f'buffer_load_dwordx4 v{vL16}, {sr(sWS, 4)}, s13 offen lds ; dma0')
    for i in range(4):
        for e in dma(0, i): A(e)
    A(f'buffer_load_dword v{vKN}, v{vT0}, {sr(sWS, 4)}, s15 offen')
    A(f'buffer_load_dword v{vVM}, v{vT0}, {sr(sWS, 4)}, s15 offen offset:256')
    for i in range(4):
        for e in dma(1, i): A(e)
    stamp(A, 1)
    A('s_and_b32 s3, s5, 1')
    A('s_lshl_b32 s3, s3, 13')
    A(f'v_add_u32 v{vLo}, s3, v{vL16}')
    A(f'v_add_u32 v{vHi}, 0x10000, v{vLo}')
    for r in list(range(vO, vO + 32)) + list(range(vL, vL + 8)) + list(range(vP + 8, vP + 16)) + list(range(vV + 8, vV + 16)):
        A(f'v_mov_b32 v{r}, 0')
    t0, t1 = vS, vS + 1
    emit_selector(A, vSEL, vLANE, t0, t1)
    A('s_lshl_b32 s3, s5, 12')
    A(f's_add_u32 s4, s3, {4 * STG + LX0}')
    A('s_cmp_ge_u32 s5, 4')
    A('s_cselect_b32 s4, s3, s4')
    A(f's_add_u32 s3, s3, {STG}')
    A('s_bitcmp1_b32 s2, 3')
    A('s_cselect_b32 s3, s4, s3')
    A(f'v_add_u32 v{vXW}, s3, v{vL16}')
    A(f'v_xor_b32 v{vXR}, 4096, v{vXW}')
    A('s_lshl_b32 s3, s5, 8')
    A(f's_add_u32 s3, s3, {2 * STG + LX0}')
    A(f'v_add_u32 v{vLW}, s3, v{vT0}')
    A(f'v_xor_b32 v{vLR}, 256, v{vLW}')
    A('s_xor_b32 s10, s5, 1')
    A('s_lshr_b32 s3, s5, 1')
    A('s_lshl_b32 s3, s3, 10')
    A('s_and_b32 s4, s5, 1')
    A('s_lshl_b32 s4, s4, 3')
    A('s_add_u32 s3, s3, s4')
    A(f's_add_u32 s3, s3, {KVF}')
    A(f'v_add_u32 v{vKFW}, s3, v{vL16}')
    A('s_lshr_b32 s3, s5, 1')
    A('s_lshl_b32 s3, s3, 5')
    A('s_add_u32 s3, s3, s4')
    A(f's_add_u32 s3, s3, {ZF}')
    A(f'v_and_b32 v{t0}, 2, v{vLANE}')
    A(f'v_lshlrev_b32 v{t0}, 3, v{t0}')
    A(f'v_and_b32 v{t1}, 1, v{vLANE}')
    A(f'v_lshl_add_u32 v{t0}, v{t1}, 2, v{t0}')
    A(f'v_bfe_u32 v{t1}, v{vLANE}, 4, 1')
    A(f'v_lshl_add_u32 v{t0}, v{t1}, 1, v{t0}')
    A(f'v_add_u32 v{vZW}, s3, v{t0}')
    A(f'v_lshrrev_b32 v{t0}, 5, v{vLANE}')
    A(f'v_lshlrev_b32 v{t0}, 4, v{t0}')
    A(f'v_add_u32 v{vZR}, {ZF}, v{t0}')
    A('s_lshl_b32 s3, s6, 3')
    A('s_add_u32 s3, s3, s5')
    A('s_lshl_b32 s3, s3, 16')
    A('s_lshl_b32 s4, s7, 11')
    A('s_add_u32 s3, s3, s4')
    A(f's_add_u32 s{sOA}, s3, {OA}')
    A('s_lshr_b32 s3, s3, 9')
    A(f's_add_u32 s{sFA}, s3, {FLG}')
    A('s_lshl_b32 s3, s26, 3')
    A('s_add_u32 s3, s3, s5')
    A('s_lshl_b32 s3, s3, 16')
    A('s_lshl_b32 s4, s27, 11')
    A('s_add_u32 s3, s3, s4')
    A(f's_add_u32 s{sOB}, s3, {OB}')
    F_PT = int(os.environ.get('F_PT', '32'))
    if F_PT & 4: A(f'buffer_load_dword v{vOB}, v{vL16}, {sr(sWS, 4)}, s{sOB} offen')
    if F_PT & 8: A(f'buffer_load_dword v{vOB + 1}, v{vL16}, {sr(sWS, 4)}, s{sOB} offen offset:1024')
    A('s_lshr_b32 s3, s3, 9')
    A(f's_add_u32 s{sFB}, s3, {FLG + 8192}')
    A('s_and_b32 s3, s2, 7')
    if F_MAP:
        A(f's_bfe_u32 s{sMAT}, s2, 0x10003')
        A('s_lshr_b32 s4, s2, 4')
        A('s_lshl_b32 s8, s3, 1')
        A('s_and_b32 s9, s4, 1')
        A('s_add_u32 s8, s8, s9')
        A('s_lshr_b32 s9, s4, 1')
        A('s_lshr_b32 s16, s3, 1')
        A('s_lshl_b32 s16, s16, 2')
        A('s_and_b32 s11, s4, 3')
        A('s_add_u32 s16, s16, s11')
        A('s_and_b32 s11, s3, 1')
        A('s_lshl_b32 s11, s11, 2')
        A('s_lshr_b32 s4, s4, 2')
        A('s_add_u32 s11, s11, s4')
        A(f's_cmp_eq_u32 s{sMAT}, 0')
        A(f's_cselect_b32 s{sMT}, s16, s8')
        A(f's_cselect_b32 s{sNT}, s11, s9')
    else:
        A(f's_bfe_u32 s{sMAT}, s2, 0x10002')
        A('s_and_b32 s8, s2, 3')
        A('s_lshl_b32 s8, s8, 2')
        A('s_bfe_u32 s9, s2, 0x20003')
        A(f's_add_u32 s{sMT}, s8, s9')
        A(f's_lshr_b32 s{sNT}, s2, 5')
    make_srd(A, sO, 's30', 's31', 0x800000)
    make_srd(A, sPA, 's24', 's25', 0x200000)
    make_srd(A, sPB, 's28', 's29', 0x200000)
    A(f's_cmp_eq_u32 s{sMAT}, 0')
    A(f's_cselect_b32 s8, s24, s28')
    A(f's_cselect_b32 s9, s25, s29')
    make_srd(A, sW, 's8', 's9', 0x200000)
    A(f's_lshl_b32 s8, s{sMT}, 18')
    A(f's_lshl_b32 s9, s{sMAT}, 22')
    A('s_add_u32 s8, s8, s9')
    A(f's_add_u32 s8, s8, {OA}')
    A('s_add_u32 s8, s32, s8')
    A('s_addc_u32 s9, s33, 0')
    make_srd(A, sX, 's8', 's9', 0x40000)
    A(f's_lshl_b32 s8, s{sMT}, 2')
    A('s_and_b32 s9, s5, 3')
    A('s_add_u32 s8, s8, s9')
    A('s_lshl_b32 s8, s8, 7')
    A(f's_lshl_b32 s9, s{sMAT}, 13')
    A('s_add_u32 s8, s8, s9')
    A(f's_add_u32 s{sFC}, s8, {FLG}')
    A('s_mov_b32 s35, s5')
    if F_FAST:
        A('s_getreg_b32 s8, hwreg(HW_REG_XCC_ID, 0, 4)')
        A(f's_add_u32 s{sFAST}, s8, 1')
        A('s_and_b32 s8, s2, 7')
        A('s_lshl_b32 s8, s8, 7')
        A(f's_add_u32 s{sXT}, s8, {XT}')
        A('s_lshr_b32 s8, s2, 3')
        A('s_lshl_b32 s8, s8, 2')
        A(f's_add_u32 s8, s8, s{sXT}')
        A(f'v_mov_b32 v{t0}, s{sFAST}')
        A(f'v_mov_b32 v{t1}, 0')
        A('s_cmp_eq_u32 s5, 7')
        A('s_cselect_b64 exec, 1, 0')
        A(f'buffer_store_dword v{t0}, v{t1}, {sr(sWS, 4)}, s8 offen {WT}')
        A('s_mov_b64 exec, -1')
    A('s_lshl_b32 s3, s7, 17')
    A('s_lshl_b32 s4, s5, 10')
    A('s_add_u32 s3, s3, s4')
    A(f's_add_u32 s{sKVP}, s3, {KVP}')
    A(f'v_lshrrev_b32 v{t0}, 2, v{vLANE}')
    A(f'v_lshlrev_b32 v{t0}, 8, v{t0}')
    A(f'v_and_b32 v{t1}, 3, v{vLANE}')
    A(f'v_lshl_add_u32 v{vT1}, v{t1}, 3, v{t0}')
    A('s_lshl_b32 s3, s7, 12')
    A('s_lshl_b32 s4, s5, 5')
    A('s_add_u32 s3, s3, s4')
    A(f's_add_u32 s{sZP}, s3, {ZP}')
    qo, qp = vS + 16, vS + 17
    A(f'v_add_u32 v{qo}, s14, v{vL16}')
    A('s_lshl_b32 s10, s10, 11')
    A(f's_add_u32 s10, s10, {QL}')
    A(f'v_add_u32 v{qp}, s10, v{vL16}')
    stamp(A, 2)
    wait_dma(A, 0)
    A('s_barrier')
    stamp(A, 3)
    if gen_k1.STAMPS: A('s_waitcnt lgkmcnt(0)')
    for t in range(2):
        A(f'ds_read_b128 {vr(vQ + 4 * t, 4)}, v{qp} offset:{t * 1024}')
        A(rdK(0, 0, t))
    for t in range(2):
        A(f'ds_read_b128 {vr(vQ + 8 + 4 * t, 4)}, v{qo} offset:{t * 1024}')
    A(rdV(0, 0, 0)); A(rdV(0, 0, 1))
    A(rdK(1, 1, 0)); A(rdK(1, 1, 1))
    A(f'v_mov_b32 v{q2}, 0')
    A(f'v_mov_b32 v{q2 + 1}, 0')
    dl = [[], []]
    dpp_max_reduce(dl[0].append, vKN)
    dpp_max_reduce(dl[1].append, vVM)
    for a, b in zip(*dl):
        A(a); A(b)
    for m in qk(0, 0): A(m)
    for r in range(8):
        A(f'v_dot2c_f32_bf16 v{q2}, v{vQ + r}, v{vQ + r}')
        A(f'v_dot2c_f32_bf16 v{q2 + 1}, v{vQ + 8 + r}, v{vQ + 8 + r}')
    A(f'v_readlane_b32 s3, v{vKN}, 63')
    A(f'v_readlane_b32 s4, v{vVM}, 63')
    A(f'v_mov_b32 v{q2 + 2}, v{q2}')
    A(f'v_mov_b32 v{q2 + 3}, v{q2 + 1}')
    A(f's_mov_b32 s8, {f32bits(3400.0)}')
    A(f's_mov_b32 s9, {f32bits(2.0 ** 50)}')
    A(f'v_permlane32_swap_b32 v{q2}, v{q2 + 2}')
    A(f'v_permlane32_swap_b32 v{q2 + 1}, v{q2 + 3}')
    A(f'v_add_f32 v{q2}, v{q2}, v{q2 + 2}')
    A(f'v_add_f32 v{q2 + 1}, v{q2 + 1}, v{q2 + 3}')
    A(f'v_mov_b32 v{q2 + 2}, s4')
    A(f'v_mul_f32 v{q2}, s3, v{q2}')
    A(f'v_mul_f32 v{q2 + 1}, s3, v{q2 + 1}')
    A(f's_mov_b32 s10, {f32bits(2.0 ** -30)}')
    A(f'v_cmp_nge_f32 s[20:21], s9, v{q2 + 2}')
    A(f'v_cmp_nle_f32 s[22:23], s10, v{q2 + 2}')
    A(f'v_cmp_nge_f32 s[16:17], s8, v{q2}')
    A(f'v_cmp_nge_f32 s[18:19], s8, v{q2 + 1}')
    A('s_or_b64 s[20:21], s[20:21], s[22:23]')
    A('s_or_b64 s[16:17], s[16:17], s[18:19]')
    A('s_or_b64 s[16:17], s[16:17], s[20:21]')
    A(f's_or_b32 s{sFLAG}, s16, s17')

    X = [[[] for _ in range(6)] for _ in range(64)]
    for st in range(32):
        ph = 2 * st + 1
        if st + 1 < 32:
            X[ph][2].append(rdV((st + 1) & 1, st + 1, 0)); X[ph][3].append(rdV((st + 1) & 1, st + 1, 1))
        if st + 2 < 32:
            X[ph][4].append(rdK(st & 1, st + 2, 0)); X[ph][5].append(rdK(st & 1, st + 2, 1))
    if 'd' not in XP2:
        for i, ph in enumerate((0, 1, 2, 3)):
            X[ph][1] += dma(2, i)
        for c in range(5):
            for i, d in enumerate((5, 6, 8, 10)):
                X[8 * c + d][1] += dma(c + 3, i)
    lds_ = []
    for f in range(4):
        lds_.append([f'buffer_load_dwordx4 {vr(vPHI + 4 * f, 4)}, v{vL16}, {sr(sWS, 4)}, s{sPH} offen offset:{f * 1024}'])
    for p in range(16):
        lds_.append([f'buffer_load_dwordx4 {vr(vKVP + 4 * p, 4)}, v{vL16}, {sr(sWS, 4)}, s{sKVP} offen'] +
                    ([f's_add_u32 s{sKVP}, s{sKVP}, 8192'] if p < 15 else []))
    lds_.append([f'buffer_load_dwordx2 {vr(vZ, 2)}, v{vT1}, {sr(sWS, 4)}, s{sZP} offen'])
    ph = 4
    for i_, g in enumerate(lds_[4:] + lds_[:4]):
        if F_EARLY == 2:
            X[4 + i_ // 2][4 * (i_ & 1)] += g
        else:
            X[ph][4 if ph % 2 == 0 else 0] += g
        ph += 1
    sums = []
    n = 16
    while n > 1:
        n //= 2
        for p in range(n):
            for x in (0, 2):
                sums.append(f'v_pk_add_f32 {vr(vKVP + 4 * p + x, 2)}, {vr(vKVP + 4 * p + x, 2)}, {vr(vKVP + 4 * (p + n) + x, 2)}')
    zred = [[f'v_permlane16_swap_b32 v{vZ}, v{vZ + 1}'],
            [f'v_add_f32 v{vZ}, v{vZ}, v{vZ + 1}'],
            [f'v_add_f32_dpp v{vZ}, v{vZ}, v{vZ} row_shr:4 row_mask:0xf bank_mask:0xf'],
            [f'v_add_f32_dpp v{vZ}, v{vZ}, v{vZ} row_shr:8 row_mask:0xf bank_mask:0xf'],
            [f'v_mov_b32 v{vZ + 1}, v{vZ}'],
            [f'v_permlane32_swap_b32 v{vZ}, v{vZ + 1}'],
            [f'v_add_f32 v{vZ}, v{vZ}, v{vZ + 1}'],
            [cvtpk(vZ, vZ, vZ)],
            ['s_mov_b32 exec_lo, 0xf000f000', 's_mov_b32 exec_hi, 0', f'ds_write_b16 v{vZW}, v{vZ}', 's_mov_b64 exec, -1']]
    k = 0
    P0 = {2: 18, 1: 26}[F_EARLY]
    E = 8 * F_EARLY
    for ph in range(P0, P0 + 6):
        for sl in range(5):
            X[ph][sl].append(sums[k]); k += 1
    assert k == 30
    X[P0 + 6][0] += [cvtpk(vKVP + 4, vKVP), cvtpk(vKVP + 5, vKVP + 2)]
    X[P0 + 6][2] += [f'ds_write_b64 v{vKFW}, {vr(vKVP + 4, 2)}']
    for k, g in enumerate(zred):
        X[P0 + 6 + k // 3][1 + 2 * (k % 3)] += g
    KF = vKVP + 8
    ZFr = vKVP + 24
    NUM = vKVP + 40
    PA = vKVP + 56
    X[44 - E][5].append(f'v_add_u32 v{vT0}, {KVF}, v{vL16}')
    for f in range(4):
        X[45 - E + (f >> 1)][f & 1].append(f'ds_read_b128 {vr(KF + 4 * f, 4)}, v{vT0} offset:{f * 1024}')
        X[46 - E][2 + f].append(f'ds_read_b128 {vr(ZFr + 4 * f, 4)}, v{vZR} offset:{f * 32}')
    for f in range(4):
        X[47 - E + 2 * f][3].append(mfma32(NUM, KF + 4 * f, vPHI + 4 * f, '0' if f == 0 else None))
        X[48 - E + 2 * f][3].append(mfma32(vDEN, ZFr + 4 * f, vPHI + 4 * f, '0' if f == 0 else None))
    X[56 - E][0].append(f'v_add_f32 v{vDEN}, {f32bits(1e-6)}, v{vDEN}')
    X[56 - E][1].append(f'v_rcp_f32 v{vDEN}, v{vDEN}')
    for k, r in enumerate(range(0, 16, 2)):
        X[56 - E + k // 4][2 + k % 4].append(f'v_pk_mul_f32 {vr(NUM + r, 2)}, {vr(NUM + r, 2)}, {vr(vDEN, 2)} op_sel_hi:[1,0]')
        X[58 - E + k // 4][k % 4].append(cvtpk(PA + r // 2, NUM + r))
    for x in range(2):
        X[58 - E + x][5].append(f'buffer_store_dwordx4 {vr(PA + 4 * x, 4)}, v{vL16}, {sr(sWS, 4)}, s{sOA} offen offset:{1024 * x}')
    PF0 = P0 + 10
    X[PF0][0] += [f'v_and_b32 v{vFO}, 31, v{vLANE}', f'v_lshlrev_b32 v{vFO}, 2, v{vFO}']
    X[PF0][2] += [f'v_mov_b32 v{vFO + 2}, 1', f'v_mov_b32 v{vFO + 3}, 0', f'v_mov_b32 v{vFL}, 0']
    if F_PF and F_MAP:
        pa, pd = vFO + 4, vFO + 5
        X[PF0 + 2][0] += [f'v_lshlrev_b32 v{pa}, 6, v{vLANE}', 's_lshr_b32 s3, s2, 3', 's_lshl_b32 s3, s3, 3', 's_add_u32 s3, s3, s5',
                          's_lshl_b32 s4, s3, 13', 's_add_u32 s8, s4, 4096']
        e0 = ['s_mov_b32 exec_lo, 0x55555555', 's_mov_b32 exec_hi, 0x55555555'] if F_PF == 2 else []
        e1 = ['s_mov_b64 exec, -1'] if F_PF == 2 else []
        X[PF0 + 2][2] += e0 + [f'buffer_load_dword v{pd}, v{pa}, {sr(sPB, 4)}, s4 offen'] + e1
        X[PF0 + 4][2] += e0 + [f'buffer_load_dword v{pd}, v{pa}, {sr(sPB, 4)}, s8 offen'] + e1
        X[PF0 + 6][0] += [f'v_lshrrev_b32 v{pa + 2}, 4, v{vLANE}', f'v_and_b32 v{pa + 3}, 15, v{vLANE}',
                          f'v_lshlrev_b32 v{pa + 2}, 11, v{pa + 2}', 's_and_b32 s9, s2, 1', 's_lshl_b32 s9, s9, 10', 's_add_u32 s4, s4, s9']
        X[PF0 + 6][2] += [f'v_lshl_add_u32 v{pa + 2}, v{pa + 3}, 6, v{pa + 2}']
        X[PF0 + 6][4] += e0 + [f'buffer_load_dword v{pd}, v{pa + 2}, {sr(sPA, 4)}, s4 offen'] + e1
        F_PT = int(os.environ.get('F_PT', '32'))
        PTP = int(os.environ.get('F_PTP', 52))
        if F_PT & 1: X[PTP][2] += [f'buffer_load_dword v{pd}, v{pa}, {sr(sWS, 4)}, s{sOB} offen']
        if F_PT & 16: X[PTP][2] += ['s_mov_b32 exec_hi, 0', f'buffer_load_dword v{pd}, v{pa}, {sr(sWS, 4)}, s{sOB} offen', 's_mov_b32 exec_hi, -1']
        if F_PT & 32: X[PTP][2] += ['s_mov_b64 exec, 0x55555555', f'buffer_load_dword v{pd}, v{pa}, {sr(sWS, 4)}, s{sOB} offen', 's_mov_b64 exec, -1']
        if F_PT & 2: X[PTP][4] += [f'buffer_load_dword v{pd}, v{vFO + 3}, {sr(sWS, 4)}, s{sFB} offen']
    X[44 - E][4] += ['s_waitcnt lgkmcnt(4)']
    FA = {2: 47, 1: 54}[F_EARLY]
    X[FA][0] += ['s_waitcnt vmcnt(0)', 's_mov_b64 exec, 1',
                 f'buffer_store_dword v{vFO + 2}, v{vFO + 3}, {sr(sWS, 4)}, s{sFA} offen {WT}', 's_mov_b64 exec, -1']
    t0, t1, t2 = vPRE + 1, vPRE + 2, vPRE + 3
    pre = [['s_and_b32 s3, s5, 3', f'v_lshrrev_b32 v{t1}, 4, v{vLANE}', 's_and_b32 s9, s5, 1', 's_lshl_b32 s9, s9, 2'],
           [f'v_bfe_u32 v{t0}, v{vLANE}, 1, 3', f'v_xor_b32 v{t0}, v{t0}, v{t1}'],
           [f'v_xor_b32 v{t0}, s9, v{t0}', 's_lshl_b32 s9, s3, 4', f'v_add_u32 v{t1}, s9, v{t1}'],
           [f'v_lshlrev_b32 v{vW3}, 11, v{t1}', f'v_lshl_add_u32 v{vW3}, v{t0}, 5, v{vW3}'],
           [f'v_and_b32 v{t2}, 1, v{vLANE}', f'v_lshl_add_u32 v{vW3}, v{t2}, 4, v{vW3}', 's_lshl_b32 s9, s3, 16'],
           [f'v_add_u32 v{vX3}, s9, v{vL16}', 's_and_b32 s4, s2, 7', f's_mul_i32 s{sK0}, s4, {ROT}', f's_and_b32 s4, s{sMT}, 3',
            f's_mul_i32 s4, s4, {RR}', f's_add_u32 s{sK0}, s{sK0}, s4', f's_mul_i32 s4, s{sNT}, {RC}', f's_add_u32 s{sK0}, s{sK0}, s4'],
           ['s_lshl_b32 s9, s3, 12', f's_add_u32 s31, s9, {LX0}', f's_lshl_b32 s3, s{sNT}, 8', 's_cmp_ge_u32 s5, 4',
            's_cselect_b64 vcc, -1, 0', 's_cselect_b32 s31, s9, s31', 's_cselect_b32 s30, 17, 12', 's_cselect_b32 s20, s3, 0',
            's_cselect_b32 s28, 13, 10', f's_cselect_b32 s{sGO}, 1, 0', f's_cselect_b32 s{sGO2}, s{sMAT}, 0', 's_lshl_b32 s28, 1, s28'],
           [f'v_cndmask_b32 v{vPRE}, v{vX3}, v{vW3}, vcc', 's_cmp_ge_u32 s5, 4',
            f's_cselect_b32 s24, s{sW}, s{sX}', f's_cselect_b32 s25, s{sW + 1}, s{sX + 1}', f's_cselect_b32 s26, s{sW + 2}, s{sX + 2}',
            's_mov_b32 s27, 0x00020000']]
    for k, g in enumerate(pre):
        X[52 + k // 4][(0, 1, 3, 5)[k % 4]] += g
    if F_FAST:
        X[49][0] += [f'buffer_load_dword v{vFL}, v{vFO}, {sr(sWS, 4)}, s{sXT} offen {WT}']
        X[51][0] += [f'v_cmp_ne_u32 vcc, s{sFAST}, v{vFL}', 's_cmp_eq_u64 vcc, 0', f's_cselect_b32 s{sFAST}, 1, 0']
    X[55][0] += [f'buffer_load_dword v{vFL}, v{vFO}, {sr(sWS, 4)}, s{sFC} offen {WT}']
    X[57][0] += [f'v_cmp_ne_u32 vcc, 1, v{vFL}', 's_cmp_eq_u64 vcc, 0', f's_cselect_b32 s{sGO}, 1, s{sGO}']
    for i in range(4):
        X[(58, 60, 54, 54)[i]][(1, 1, 1, 4)[i]] += [f's_cmp_eq_u32 s{sGO if i < 2 else sGO2}, 0', f's_cbranch_scc1 K2_np{i}'] + pre_dma(i) + [f'K2_np{i}:']

    prio = {}
    for c in range(7):
        for d, p in ((5, 3), (7, 2), (9, 1), (11, 0)):
            prio[8 * c + d] = p
    for ph, p in ((53, 3), (56, 2), (59, 1), (62, 0)): prio[ph] = p
    for ph in (55, 57): prio.pop(ph, None)
    prio[0] = 2; prio[1] = 1; prio[3] = 0
    for st in range(32):
        c, j = st >> 2, st & 3
        for p in range(2):
            ph = 2 * st + p
            if p == 1 and j == 2 and c < 7:
                wait_dma(A, c + 1)
                if 'b' not in XP2: A('s_barrier')
            if PRIO and ph in prio: A(f's_setprio {prio[ph]}')
            if p == 0:
                phase(A, 0, st & 1, (st - 1) & 1, X[ph])
            else:
                phase(A, 1, (st + 1) & 1, st & 1, X[ph], noqk=(st == 31))
    o, l = pv(1, 1)
    for m in (o[0], l[0], o[1], l[1]): A(m)
    stamp(A, 4)
    A(f's_cmp_lg_u32 s{sFLAG}, 0')
    A('s_cbranch_scc1 K2_fallback')
    A('K2_tail:')
    for qd in range(4):
        A(f'ds_write_b128 v{vXW}, {vr(vO + 4 * qd, 4)} offset:{XCH + qd * 1024}')
    A(f'ds_write_b32 v{vLW}, v{vL} offset:0')
    A('s_waitcnt lgkmcnt(0)')
    A('s_barrier')
    Xr = vS
    XL = vV
    OBr = vO + 16
    LB = vL + 4
    A(f'ds_read_b32 v{XL}, v{vLR} offset:0')
    for qd in range(4):
        A(f'ds_read_b128 {vr(Xr + 4 * qd, 4)}, v{vXR} offset:{XCH + qd * 1024}')
    A(f'v_add_f32 v{LB}, v{LB}, v{XL}')
    A(f'v_rcp_f32 v{LB}, v{LB}')
    for x in range(2):
        for r in range(8 * x, 8 * x + 8, 2):
            A(f'v_pk_add_f32 {vr(OBr + r, 2)}, {vr(OBr + r, 2)}, {vr(Xr + r, 2)}')
        for r in range(8 * x, 8 * x + 8, 2):
            A(f'v_pk_mul_f32 {vr(OBr + r, 2)}, {vr(OBr + r, 2)}, {vr(LB, 2)} op_sel_hi:[1,0]')
        for r in range(8 * x, 8 * x + 8, 2):
            A(cvtpk(vOB + r // 2, OBr + r))
        if not F_FAST:
            A(f'buffer_store_dwordx4 {vr(vOB + 4 * x, 4)}, v{vL16}, {sr(sWS, 4)}, s{sOB} offen offset:{1024 * x}')
    if F_FAST:
        A(f's_cmp_eq_u32 s{sFAST}, 0')
        A('s_cbranch_scc1 K2_slow')
        for x in range(2):
            A(f'buffer_store_dwordx4 {vr(vOB + 4 * x, 4)}, v{vL16}, {sr(sWS, 4)}, s{sOB} offen offset:{1024 * x} ; plain')
        A('K2_stored:')
    stamp(A, 5)
    stamp(A, 6)
    A('s_cmp_ge_u32 s5, 4')
    A('s_cbranch_scc1 K3_loader')
    f_compute(A)
    A('K3_loader:')
    A.h = hsave(A)
    f_loader(A)

    if F_FAST:
        A('K2_slow:')
        for x in range(2):
            A(f'buffer_store_dwordx4 {vr(vOB + 4 * x, 4)}, v{vL16}, {sr(sWS, 4)}, s{sOB} offen offset:{1024 * x}')
        A('s_branch K2_stored')
    A('K2_fallback:')
    A('s_waitcnt vmcnt(0) lgkmcnt(0)')
    A('s_nop 15')
    A(f'v_mov_b32 v{vM}, 0xff800000')
    A(f'v_mov_b32 v{vM + 1}, 0xff800000')
    A('s_mov_b32 s11, 0')
    L1 = A.label('K2F')
    A(f'{L1}:')
    A('s_lshr_b32 s3, s11, 3')
    A('s_lshl_b32 s3, s3, 15')
    A('s_and_b32 s4, s11, 7')
    A('s_lshl_b32 s4, s4, 11')
    A('s_add_u32 s3, s3, s4')
    A(f's_add_u32 s3, s3, {KV}')
    for t in range(2):
        A(f'buffer_load_dwordx4 {vr(vK + 4 * t, 4)}, v{vL16}, {sr(sWS, 4)}, s3 offen offset:{t * 1024}')
    for x in range(2):
        for m in qk(x, 0): A(m)
    for x in range(2):
        for r in range(0, 16, 2):
            A(f'v_max3_f32 v{vM + x}, v{vM + x}, v{vS + 16 * x + r}, v{vS + 16 * x + r + 1}')
    A('s_add_u32 s11, s11, 1')
    A('s_cmp_lg_u32 s11, 64')
    A(f's_cbranch_scc1 {L1}')
    for x in range(2):
        A(f'v_mov_b32 v{vT0}, v{vM + x}')
        A(f'v_permlane32_swap_b32 v{vM + x}, v{vT0}')
        A(f'v_max_f32 v{vM + x}, v{vM + x}, v{vT0}')
        A(f'v_add_f32 v{vM + x}, {f32bits(11.0)}, v{vM + x}')
    for r in list(range(vO, vO + 32)) + list(range(vL, vL + 8)):
        A(f'v_mov_b32 v{r}, 0')
    A('s_mov_b32 s11, 0')
    A('s_and_b32 s12, s5, 1')
    A('s_lshl_b32 s12, s12, 13')
    A(f's_add_u32 s12, s12, {KV}')
    L2 = A.label('K2G')
    A(f'{L2}:')
    A('s_lshr_b32 s3, s11, 2')
    A('s_lshl_b32 s3, s3, 15')
    A('s_and_b32 s4, s11, 3')
    A('s_lshl_b32 s4, s4, 11')
    A('s_add_u32 s3, s3, s4')
    A('s_add_u32 s3, s3, s12')
    A('s_add_u32 s4, s3, 16384')
    for t in range(2):
        A(f'buffer_load_dwordx4 {vr(vK + 4 * t, 4)}, v{vL16}, {sr(sWS, 4)}, s3 offen offset:{t * 1024}')
    for t in range(2):
        A(f'buffer_load_dwordx4 {vr(vV + 4 * t, 4)}, v{vL16}, {sr(sWS, 4)}, s4 offen offset:{t * 1024}')
    for x in range(2):
        for m in qk(x, 0): A(m)
    for x in range(2):
        for r in range(16):
            A(f'v_sub_f32 v{vS + 16 * x + r}, v{vS + 16 * x + r}, v{vM + x}')
        for v in softmax_valu(x): A(v)
    for x in range(2):
        o, l = pv(x, 0)
        for m in o + l: A(m)
    A('s_add_u32 s11, s11, 1')
    A('s_cmp_lg_u32 s11, 32')
    A(f's_cbranch_scc1 {L2}')
    A('s_nop 15')
    A('s_branch K2_tail')
```
